```python
import torch

def _softmax(x, axis=-1):
    return torch.softmax(x, dim=axis)
def _gelu(x):
    return torch.nn.functional.gelu(x, approximate="tanh")
def _silu(x):
    return torch.nn.functional.silu(x)
def _sigmoid(x):
    return torch.sigmoid(x)
def _layernorm(x, axis=-1, eps=1e-5):
    m = x.mean(dim=axis, keepdim=True)
    v = x.var(dim=axis, keepdim=True, unbiased=False)
    return (x - m) / torch.sqrt(v + eps)
def _scatter_add(tgt, idx, src, axis=0):
    return tgt.clone().index_add_(axis, idx, src)
def _segment_sum(src, seg, n):
    out = torch.zeros((n,) + src.shape[1:], dtype=src.dtype)
    return out.index_add_(0, seg, src)
def _pad(x, pw):
    flat = tuple(v for pair in reversed(pw) for v in pair)
    return torch.nn.functional.pad(x, flat)

kernel_name = 'parallel_sum__linear_attn_block__dense_activation_squared_relu__prompt'

def setup_inputs():

    _w = (lambda a: (lambda t: t.to(torch.bfloat16) if t.is_floating_point() else t)(torch.as_tensor(a)))
    def _A_setup():
        B, S, D = 1, 2048, 448
        return {
            "x": _w((lambda *s: torch.randn(*s, dtype=torch.bfloat16) * 0.05)(B, S, D)),
            "wqkv": _w((lambda *s: torch.randn(*s, dtype=torch.bfloat16) * 0.4)(D, 3 * D)),
            "wo": _w((lambda *s: torch.randn(*s, dtype=torch.bfloat16) * 0.4)(D, D)),
        }
    _A_in = _A_setup()

    def _B_setup():
        B, S, D, F = 1, 2048, 448, 1792
        return {
            "x": _w((lambda *s: torch.randn(*s, dtype=torch.bfloat16) * 0.05)(B, S, D)),
            "w1": _w((lambda *s: torch.randn(*s, dtype=torch.bfloat16) * 0.05)(D, F)),
            "b1": _w((lambda *s: torch.randn(*s, dtype=torch.bfloat16) * 0.4)(F)),
            "w2": _w((lambda *s: torch.randn(*s, dtype=torch.bfloat16) * 0.05)(F, D)),
            "b2": _w((lambda *s: torch.randn(*s, dtype=torch.bfloat16) * 1.6)(D)),
        }
    _B_in = _B_setup()

    return {
        "A_x": _A_in["x"],
        "A_wqkv": _A_in["wqkv"],
        "A_wo": _A_in["wo"],
        "B_x": _B_in["x"],
        "B_w1": _B_in["w1"],
        "B_b1": _B_in["b1"],
        "B_w2": _B_in["w2"],
        "B_b2": _B_in["b2"],
    }

def reference(A_x, A_wqkv, A_wo, B_x, B_w1, B_b1, B_w2, B_b2):
    def _A_ref(x, wqkv, wo):
        B, S, D = x.shape
        H = 16; Dh = D // H
        qkv = (lambda x, *d: x.permute(*d))((x @ wqkv).reshape(B, S, 3, H, Dh), 2, 0, 3, 1, 4)
        q, k, v = qkv[0], qkv[1], qkv[2]
        phi = lambda t: torch.where(t > 0, t + 1, torch.exp(t)) + 1e-6
        pq, pk = phi(q), phi(k)
        kv = torch.einsum("bhsd,bhse->bhde", pk, v)
        z = torch.einsum("bhsd->bhd", pk)
        num = torch.einsum("bhqd,bhde->bhqe", pq, kv)
        den = torch.einsum("bhqd,bhd->bhq", pq, z)[..., None] + 1e-6
        o = num / den
        return (lambda x, *d: x.permute(*d))(o, 0, 2, 1, 3).reshape(B, S, D) @ wo

    def _B_ref(x, w1, b1, w2, b2):
        h = torch.einsum("bsd,df->bsf", x, w1) + b1
        zero = torch.zeros_like(h)
        r = torch.where(h > zero, h, zero)
        h = r * r
        out = torch.einsum("bsf,fd->bsd", h, w2) + b2
        return out

    x = A_x
    xn = _layernorm(x, axis=-1)
    return x + _A_ref(xn, A_wqkv, A_wo) + _B_ref(xn, B_w1, B_b1, B_w2, B_b2)
```

```python
import re
RE_RANGE = re.compile(r'^(-|abs\(|\|)?([vsa])\[(\d+):(\d+)\]')
RE_ONE = re.compile(r'^(-|abs\(|\||-abs\()?([vsa])(\d+)\b')
TRANS = ('v_exp_f32', 'v_log_f32', 'v_rcp_f32', 'v_rsq_f32', 'v_sqrt_f32', 'v_sin_f32', 'v_cos_f32')

def regs_of(tok):
    tok = tok.strip()
    m = RE_RANGE.match(tok)
    if m: return [(m.group(2), i) for i in range(int(m.group(3)), int(m.group(4))+1)]
    m = RE_ONE.match(tok)
    if m: return [(m.group(2), int(m.group(3)))]
    if tok in ('vcc', 'vcc_lo', 'vcc_hi'): return [('x', 'vcc')]
    if tok in ('exec', 'exec_lo', 'exec_hi'): return [('x', 'exec')]
    if tok == 'm0': return [('x', 'm0')]
    return []

class I:
    __slots__ = ('text', 'op', 'kind', 'rd', 'wr', 'srcc', 'need', 'wide', 'passes', 'note')
    def __init__(self, text, need=None):
        self.text = text = text.strip(); self.need = need; self.srcc = set(); self.wide = False; self.passes = 8
        self.rd = set(); self.wr = set(); self.note = None
        if need is not None: self.op = 'need'; self.kind = 'need'; return
        if text.endswith(':'): self.op = text; self.kind = 'label'; return
        if text.startswith(';') or text.startswith('.'): self.op = text; self.kind = 'comment'; return
        parts = text.split(None, 1); op = self.op = parts[0]
        rest = parts[1] if len(parts) > 1 else ''
        toks = [t.strip() for t in re.split(r',(?![^\[]*\])', rest)] if rest else []
        mods = ''
        if toks:
            lt = toks[-1].split(None, 1); toks[-1] = lt[0]; mods = lt[1] if len(lt) > 1 else ''
        R = [regs_of(t) for t in toks]
        allr = lambda xs: set(r for x in xs for r in x)
        k = 'other'
        if op.startswith('v_mfma'):
            k = 'mfma'; self.wr = set(R[0]); self.rd = allr(R[1:]); self.srcc = set(R[3]); self.passes = 8 if '32x32' in op else 4
        elif op.startswith('v_permlane'):
            k = 'valu'; self.wr = allr(R); self.rd = allr(R); self.note = 'perm'
        elif op.startswith('v_'):
            k = 'valu'; self.wr = set(R[0]); self.rd = allr(R[1:])
            if op.startswith(('v_fmac', 'v_dot2c')) or '_dpp' in op: self.rd |= set(R[0])
            if op.startswith('v_dot'): self.note = 'dot'
            if '_dpp' in op: self.note = 'dpp'
            if op.startswith(TRANS): self.note = 'trans'
            if op.startswith(('v_readfirstlane', 'v_readlane')): self.note = 'rdlane'
            if op.startswith(('v_add_co', 'v_addc_co')): self.wr |= set(R[1]); self.rd = allr(R[2:])
        elif op.startswith('ds_'):
            if op.startswith(('ds_read', 'ds_bpermute')): k = 'ds_r'; self.wr = set(R[0]); self.rd = allr(R[1:])
            else: k = 'ds_w'; self.rd = allr(R)
        elif op.startswith('buffer_load'):
            if re.search(r'\blds\b', mods): k = 'dma'; self.rd = allr(R) | {('x', 'm0')}
            else: k = 'vm_l'; self.wr = set(R[0]); self.rd = allr(R[1:])
        elif op.startswith(('buffer_store', 'buffer_atomic')):
            k = 'vm_s'; self.rd = allr(R); self.wide = op.endswith(('x3', 'x4'))
            if self.wide: self.srcc = set(R[0])
        elif op == 's_waitcnt': k = 'wait'
        elif op == 's_nop': k = 'nop'
        elif op.startswith(('s_branch', 's_cbranch', 's_endpgm', 's_barrier', 's_setprio', 's_sleep')): k = 'ctl'
        elif op.startswith(('s_load', 's_memtime', 's_memrealtime')): k = 'smem'; self.wr = set(R[0]); self.rd = allr(R[1:])
        elif op.startswith(('s_cmp', 's_bitcmp')): k = 'salu'; self.rd = allr(R)
        elif op.startswith('s_'): k = 'salu'; self.wr = set(R[0]) if R else set(); self.rd = allr(R[1:])
        self.kind = k
    def states(self):
        if self.kind in ('label', 'comment', 'need'): return 0
        if self.kind == 'nop': return int(self.text.split()[1]) + 1
        return 1

def vr(b, n=1): return f"v{b}" if n == 1 else f"v[{b}:{b+n-1}]"
def sr(b, n=1): return f"s{b}" if n == 1 else f"s[{b}:{b+n-1}]"
def vset(b, n): return {('v', i) for i in range(b, b+n)}

def insert_waits(ins):
    out = []; q = {'lgkm': [], 'vm': []}; mx = {'lgkm': 15, 'vm': 63}
    for x in ins:
        if x.kind == 'wait':
            for c, nm in (('vm', 'vmcnt'), ('lgkm', 'lgkmcnt')):
                m = re.search(nm + r'\((\d+)\)', x.text)
                if m:
                    n = int(m.group(1))
                    if len(q[c]) > n: q[c] = q[c][len(q[c])-n:] if n else []
            out.append(x); continue
        touched = x.need if x.kind == 'need' else (x.rd | x.wr)
        w = []
        for c, nm in (('vm', 'vmcnt'), ('lgkm', 'lgkmcnt')):
            last = -1
            for p, regs in enumerate(q[c]):
                if regs & touched: last = p
            if last >= 0:
                n = min(len(q[c]) - last - 1, mx[c])
                w.append(f"{nm}({n})"); q[c] = q[c][len(q[c])-n:] if n else []
        if w: out.append(I("s_waitcnt " + " ".join(w)))
        if x.kind == 'need': continue
        out.append(x)
        if x.kind == 'ds_r': q['lgkm'].append(x.wr)
        elif x.kind == 'ds_w': q['lgkm'].append(set())
        elif x.kind == 'vm_l': q['vm'].append(x.wr)
        elif x.kind in ('vm_s', 'dma'): q['vm'].append(set())
    return out

def hazard_need(p, c):
    isv = lambda s: {r for r in s if r[0] in 'va'}
    iss = lambda s: {r for r in s if r[0] == 's' or r == ('x', 'vcc')}
    n = 0
    mem = c.kind in ('ds_r', 'ds_w', 'vm_l', 'vm_s', 'dma')
    if p.kind == 'valu':
        w = isv(p.wr)
        if c.kind == 'mfma' and w & c.rd: n = max(n, 2)
        if c.kind == 'valu':
            if c.note in ('dpp', 'perm') and w & c.rd: n = max(n, 2)
            if c.note == 'rdlane' and w & c.rd: n = max(n, 1)
            if p.note == 'trans' and w & c.rd: n = max(n, 1)
            if iss(p.wr) & c.rd: n = max(n, 4 if c.note == 'rdlane' else 2)
        if p.note == 'trans' and mem and w & c.rd: n = max(n, 1)
        if p.note == 'dot' and w & (c.rd | c.wr):
            same_acc = c.op == p.op and c.wr == p.wr
            if not same_acc: n = max(n, 3)
        if c.kind in ('vm_l', 'vm_s', 'dma') and iss(p.wr) & c.rd: n = max(n, 5)
        if c.kind in ('salu', 'smem') and iss(p.wr) & c.rd: n = max(n, 2)
    if p.kind == 'mfma':
        big = p.passes == 8
        if c.kind == 'mfma':
            if p.wr & (c.rd - c.srcc) or (p.wr & c.rd and any(r in p.wr for r in (c.rd - c.srcc))): n = max(n, 12 if big else 8)
            if p.wr & c.srcc and not (c.srcc == p.wr and c.passes == p.passes): n = max(n, 10 if big else 6)
            if p.wr & c.wr and not (c.srcc == p.wr): n = max(n, 10 if big else 6)
        elif (c.kind == 'valu' or mem) and p.wr & (c.rd | c.wr): n = max(n, 12 if big else 8)
        if c.kind == 'valu' and p.srcc & c.wr: n = max(n, 7 if big else 3)
    if p.kind == 'vm_s' and p.wide and p.srcc & c.wr: n = max(n, 2)
    if p.kind == 'salu' and ('x', 'm0') in p.wr and c.kind == 'dma': n = max(n, 1)
    return n

def insert_nops(ins, stats=None):
    out = []
    for x in ins:
        if x.kind not in ('label', 'comment', 'wait', 'nop', 'ctl'):
            d = 0; pad = 0
            for p in reversed(out):
                if d >= 13: break
                need = hazard_need(p, x)
                if need > d: pad = max(pad, need - d)
                d += p.states()
            if pad:
                out.append(I(f"s_nop {pad-1}"))
                if stats is not None: stats.append((pad, x.text))
        out.append(x)
    return out

class W:
    def __init__(self, name):
        self.name = name; self.ins = []; self.ool = []; self.nlab = 0
    def a(self, text):
        for t in text.split("\n"):
            if t.strip(): self.ins.append(I(t))
    def need(self, regs): self.ins.append(I("", need=set(regs)))
    def lab(self, s):
        self.nlab += 1; return f"{self.name}_{s}{self.nlab}"
    def finish(self, stats=None):
        main = insert_nops(insert_waits(self.ins), stats)
        return [x.text for x in main], list(self.ool)
```

```python
import sys, struct
sys.path.insert(0, 'work')
from dsl import *
NAME = "parallel_sum__linear_attn_block__dense_activation_squared_relu__prompt_kernel"
f2h = lambda f: hex(struct.unpack("<I", struct.pack("<f", f))[0])
OOB = 0x80000000
CNT, BIAS, NONC, STG, HALF, RING, NSLOT = 0, 2048, 3072, 4096, 30720, 65536, 24
HOFF, OOFF = 8192, 16384
KVP, KVF, XP, PROF, WSZ = 1 << 20, 3 << 20, 4 << 20, 32 << 20, 64 << 20
MSG = 2176
sJ, sRB, sG, sT = 4, 5, 6, 7
pX, pQKV, pWO, pW1, pB1, pW2, pB2, pOUT, pDBG, pWS = 8, 10, 12, 16, 18, 20, 22, 24, 26, 28
sSPIN = 63
SPINMAX = 1 << 17

class Cfg:
    G = 16; JN = 0; BASE_N = 6; D = 4; NB = 5; CH = 4; REL = 4; KG = 8; FILL = 3; prof = False
    pf = True; codepf = True
    def __init__(self, **kw):
        for k, v in kw.items():
            assert hasattr(Cfg, k), k
            setattr(self, k, v)

def srd(w, d, p, nbytes, off=None):
    if off is None:
        w.a(f"s_mov_b32 s{d}, s{p}\ns_and_b32 s{d+1}, s{p+1}, 0xffff\ns_mov_b32 s{d+2}, {nbytes}")
    else:
        w.a(f"s_add_u32 s{d}, s{p}, s{off}\ns_addc_u32 s{d+1}, s{p+1}, 0\ns_and_b32 s{d+1}, s{d+1}, 0xffff\ns_sub_u32 s{d+2}, {nbytes}, s{off}")
    w.a(f"s_mov_b32 s{d+3}, 0x20000")

class Wave(W):
    def __init__(self, name, cfg):
        super().__init__(name); self.cfg = cfg; self.stamps = []
    def stamp(self, label):
        if self.cfg.prof and len(self.stamps) < 17:
            k = 66 + 2*len(self.stamps); self.stamps.append(label); self.a(f"s_memtime s[{k}:{k+1}]")
    def flagread(self, vf, vaddr): return f"ds_read_b32 v{vf}, v{vaddr}"
    def check(self, vf, vaddr, thr, pre=""):
        slow, back = self.lab("slow"), self.lab("back")
        self.a(f"v_cmp_gt_u32 vcc, {thr}, v{vf}\ns_cbranch_vccnz {slow}\n{back}:")
        o = [f"{slow}:"]
        if pre:
            o += [f"ds_read_b32 v{vf}, v{vaddr}", "s_waitcnt lgkmcnt(0)", f"v_cmp_gt_u32 vcc, {thr}, v{vf}", f"s_cbranch_vccz {back}"]
            o += pre.split("\n"); slow += "b"; o.append(f"{slow}:")
        o += [f"ds_read_b32 v{vf}, v{vaddr}", f"s_sub_u32 s{sSPIN}, s{sSPIN}, 1", f"s_cmp_lt_i32 s{sSPIN}, 0", "s_waitcnt lgkmcnt(0)",
              f"s_cbranch_scc1 {back}", f"v_cmp_gt_u32 vcc, {thr}, v{vf}", f"s_cbranch_vccnz {slow}", f"s_branch {back}"]
        self.ool += o
    def wait_flag(self, vf, vaddr, thr):
        self.a(self.flagread(vf, vaddr)); self.check(vf, vaddr, thr)
    def retry(self, label):
        x = self.lab("giveup")
        self.a(f"s_sub_u32 s{sSPIN}, s{sSPIN}, 64\ns_cmp_lt_i32 s{sSPIN}, 0\ns_cbranch_scc1 {x}\ns_cbranch_vccnz {label}\n{x}:")
    def end(self):
        if self.cfg.prof:
            self.a("s_memrealtime s[100:101]\ns_waitcnt vmcnt(0) lgkmcnt(0)")
            srd(self, 32, pWS, WSZ)
            self.a(f"s_lshl_b32 s{sT}, s2, 3\ns_add_u32 s{sT}, s{sT}, s3\ns_lshl_b32 s{sT}, s{sT}, 7\ns_add_u32 s{sT}, s{sT}, {PROF}")
            self.a("v_mov_b32 v1, 0\ns_mov_b64 exec, 1")
            vals = [64, 100, 62, sSPIN] + [66 + 2*i for i in range(len(self.stamps))]
            for i, s in enumerate(vals):
                self.a(f"v_mov_b32 v2, s{s}\nbuffer_store_dword v2, v1, s[32:35], s{sT} offen offset:{4*i}")
        self.a("s_endpgm")

def chunk_order(w, cfg, dst, mul, own=None):
    w.a(f"s_add_u32 s{sT}, s{sJ}, 1\ns_cmp_gt_u32 s{sJ}, {cfg.JN}\ns_cselect_b32 s{sT}, s{sJ}, s{sT}")
    w.a(f"s_cmp_eq_u32 s{sJ}, {cfg.JN}\ns_cselect_b32 s{sT}, {cfg.BASE_N}, s{sT}")
    for t in range(7):
        w.a(f"s_cmp_ge_u32 s{sT}, 7\ns_cselect_b32 s{sT}, 0, s{sT}\ns_mul_i32 s{dst+t}, s{sT}, {mul}")
        if t < 6: w.a(f"s_add_u32 s{sT}, s{sT}, 1")
    if own is not None: w.a(f"s_mov_b32 s{own}, s{sT}")

def make_groups(role):
    g = []
    if role == 'M':
        for kb in range(14): g += [('k', kb, 0), ('k', kb, 1), ('v', kb, 0), ('v', kb, 1)]
        for t in range(4): g += [('w1', kb, t) for kb in range(14)]
        g += [('w2', kb, 0) for kb in range(6)] + [('w2', kb, 1) for kb in range(6)]
        g += [('w2', kb, 0) for kb in (6, 7)] + [('w2', kb, 1) for kb in (6, 7)]
        for t in range(2, 7): g += [('w2', kb, t) for kb in range(8)]
    else:
        for kb in range(14): g += [('k', kb, 0), ('v', kb, 0)]
        for t in range(2): g += [('w1', kb, t) for kb in range(14)]
        for kb in range(14): g += [('q', kb, l) for l in range(4)]
        for kb in range(4): g += [('w2', kb, t) for t in range(7)]
        for t in range(7): g += [('wo', kb, t) for kb in range(7)]
    return g

vLANE, vPR, vONE, vPART, vLD, vPW, vF0, vF1 = 0, 1, 2, 3, 4, 5, 6, 7
vXW, vXR, vFR, vFW, vBIAS = 8, 9, 10, 11, 12
vKVA, vHA, vOA = 13, 15, 17
vMSG, vFOFF, vCK, vNON, vHIM = 19, 20, 22, 23, 21
vKB, vOWA, vOWB, vT0 = 24, 25, 26, 27
vQA = 28
vB = 36
XF = 64; ACC = [176 + 16*i for i in range(5)]
sR, sC, sMSG, sOWN, sL2E, sEPS, sMASK = 30, 31, 48, 55, 56, 57, 58
rX, rWS, rOUT, rB2 = 32, 36, 40, 44

class Job:
    def __init__(s, acc, act, g, sub, base, wfirst, first=False, span=1, pre=None):
        s.acc, s.act, s.g, s.sub, s.base, s.wfirst, s.first, s.span, s.pre = acc, act, g, sub, base, wfirst, first, span, pre or []
class Code:
    def __init__(s, fn, fence=True): s.fn, s.fence = fn, fence
class Fill:
    def __init__(s, items, delay=2): s.items, s.delay = items, delay
class Flush: pass

class Compute(Wave):
    def __init__(self, role, cfg):
        super().__init__("c" + role, cfg); self.role = role; self.groups = make_groups(role)
        self.gi = {g: i for i, g in enumerate(self.groups)}
        self.pr = 0; self.rel = {}; self.ev = {}; self.acq_pr = []
    def signal(self, name=None):
        self.a(f"ds_add_u32 v{vPR}, v{vONE}"); self.pr += 1
        for g in self.pending: self.rel[g] = self.pr
        self.pending = []
        if name: self.ev[name] = self.pr
    def emit_fill(self, it):
        if callable(it): it()
        else: self.a(it)
    def run(self, items):
        cfg = self.cfg; jobs = [x for x in items if isinstance(x, Job)]
        for n, j in enumerate(jobs): j.n = n
        lastuse = {}
        for j in jobs:
            for g in range(j.g, j.g + j.span): lastuse[g] = j.n
        acq = 0; N = len(self.groups)
        for j in jobs:
            j.chk = None
            if j.g + j.span > acq:
                acq = min(N, max(j.g + j.span, acq + cfg.CH)); j.chk = acq
        lim = {}; cur = len(jobs)
        for x in reversed(items):
            if isinstance(x, Job): lim[x.n] = cur
            elif isinstance(x, Code) and x.fence:
                nxt = [y for y in items[items.index(x):] if isinstance(y, Job)]
                cur = nxt[0].n if nxt else len(jobs)
        self.pending = []; st = dict(rd=0, flag=-1); fq = []
        def reads(n):
            j = jobs[n]
            if j.chk is not None:
                if st['flag'] != n: self.a(self.flagread(vF0, vLD))
                self.check(vF0, vLD, j.chk); self.acq_pr.append((j.chk, self.pr))
            for p in j.pre: self.emit_fill(p)
            slot = j.g % NSLOT; base = j.base + (slot >= 16); imm = (slot % 16)*4096 + j.sub*2048
            b = vB + 4*(n % cfg.NB)
            self.a(f"ds_read_b64_tr_b16 {vr(b, 2)}, v{base} offset:{imm}\nds_read_b64_tr_b16 {vr(b+2, 2)}, v{base} offset:{imm+256}")
            self.pending += [g for g in range(j.g, j.g + j.span) if lastuse[g] == n]
            if len(self.pending) >= cfg.REL or (n + 1 == lim[n] and self.pending): self.signal()
            for k in (n+1, n+2):
                if k < lim[n] and jobs[k].chk is not None:
                    if st['flag'] != k: self.a(self.flagread(vF0, vLD)); st['flag'] = k
                    break
            st['rd'] = n + 1
        def operands(j):
            return vset(vB + 4*(j.n % cfg.NB), 4) | vset(j.act, 4) | (set() if j.first else vset(j.acc, 16))
        for x in items:
            if isinstance(x, Job):
                if st['rd'] <= x.n:
                    while st['rd'] < min(x.n + cfg.D, lim[x.n]): reads(st['rd'])
                b = vr(vB + 4*(x.n % cfg.NB), 4); act = vr(x.act, 4); acc = vr(x.acc, 16)
                A, B = (b, act) if x.wfirst else (act, b)
                self.a(f"v_mfma_f32_32x32x16_bf16 {acc}, {A}, {B}, {'0' if x.first else acc}")
                if st['rd'] < min(x.n + 1 + cfg.D, lim[x.n]): reads(st['rd'])
                if x.n + 1 < st['rd']: self.need(operands(jobs[x.n + 1]))
                bud = cfg.FILL
                while fq and bud > 0 and fq[0][0] <= x.n:
                    it = fq.pop(0)[1]; self.emit_fill(it)
                    bud -= 2 if (isinstance(it, str) and it.startswith(TRANS)) or callable(it) else 1
                self.lastjob = x.n
            elif isinstance(x, Fill):
                fq += [(self.lastjob + x.delay, it) for it in x.items]
            elif isinstance(x, Flush):
                while fq: self.emit_fill(fq.pop(0)[1])
            else:
                x.fn()
        assert not fq and not self.pending
        for thr, pr in self.acq_pr:
            for g in range(NSLOT, thr): assert self.rel[g - NSLOT] <= pr, (g, thr, pr)

    def tile_addr(self, dst, col):
        self.a(f"""v_lshrrev_b32 v{vT0}, 6, v{col}
v_lshl_add_u32 v{dst}, v{vT0}, 12, v{vF1}
v_bfe_u32 v{vT0}, v{col}, 5, 1
v_lshl_add_u32 v{dst}, v{vT0}, 9, v{dst}
v_and_b32 v{vT0}, 31, v{col}
v_lshl_add_u32 v{dst}, v{vT0}, 1, v{dst}
v_add_u32 v{dst+1}, 0x10000, v{dst}""")
    def head_addr(self, dst, soff, width):
        c = vB
        self.a(f"""v_add_u32 v{c}, s{soff}, v{vF0}
v_subrev_u32 v{c+1}, 32, v{c}
v_cmp_le_u32 vcc, {width}, v{c}
v_cndmask_b32 v{c}, v{c}, v{c+1}, vcc""")
        self.tile_addr(dst, c)
    def setup(self):
        a = self.a; cfg = self.cfg; E = self.role == 'E'
        a(f"s_mov_b32 s{sL2E}, 0x3fb8aa3b\ns_mov_b32 s{sEPS}, 0x358637bd")
        srd(self, rWS, pWS, WSZ); srd(self, rOUT, pOUT, 1835008); srd(self, rB2, pB2, 896)
        a(f"""v_lshrrev_b32 v{vT0}, 5, v{vLANE}
v_lshlrev_b32 v{vF1}, 10, v{vT0}
v_bfe_u32 v{vT0}, v{vLANE}, 2, 2
v_lshl_add_u32 v{vF1}, v{vT0}, 6, v{vF1}
v_add_u32 v{vF1}, {RING}, v{vF1}
v_bfe_u32 v{vT0}, v{vLANE}, 4, 1
v_and_b32 v{vF0}, 3, v{vLANE}
v_lshl_add_u32 v{vF0}, v{vT0}, 2, v{vF0}
v_lshlrev_b32 v{vF0}, 2, v{vF0}""")
        a(f"s_mul_i32 s59, s{sJ}, 56\ns_and_b32 s59, s59, 63\ns_mul_i32 s60, s{sC}, 28\ns_add_u32 s59, s59, s60")
        self.head_addr(vKVA, 59, 64 if E else 128)
        if E:
            a(f"s_and_b32 s59, s{sJ}, 1\ns_lshl_b32 s59, s59, 5\ns_mul_i32 s60, s{sC}, 112\ns_add_u32 s59, s59, s60")
            for hh in range(4):
                self.head_addr(vQA + 2*hh, 59, 256)
                if hh < 3: a("s_add_u32 s59, s59, 28")
        c = vB
        a(f"s_lshl_b32 s59, s{sC}, 5")
        a(f"""v_and_b32 v{c}, 16, v{vLANE}
v_and_b32 v{c+1}, 1, v{vLANE}
v_lshl_add_u32 v{c}, v{c+1}, 3, v{c}
v_bfe_u32 v{c+1}, v{vLANE}, 1, 1
v_lshl_add_u32 v{c}, v{c+1}, 2, v{c}
v_add_u32 v{c}, s59, v{c}""")
        self.tile_addr(vHA, c)
        a(f"""v_and_b32 v{c}, 1, v{vLANE}
v_lshlrev_b32 v{c}, 4, v{c}
v_bfe_u32 v{c+1}, v{vLANE}, 4, 1
v_lshl_add_u32 v{c}, v{c+1}, 3, v{c}
v_bfe_u32 v{c+1}, v{vLANE}, 1, 1
v_lshl_add_u32 v{c}, v{c+1}, 2, v{c}
v_add_u32 v{c}, s59, v{c}""")
        self.tile_addr(vOA, c)
        a(f"""v_lshlrev_b32 v{vT0}, 2, v{vLANE}
s_lshl_b32 s59, s3, 8
v_add_u32 v{vPR}, s59, v{vT0}
v_xor_b32 v{vPART}, 0x100, v{vPR}
v_mov_b32 v{vONE}, 1
v_and_b32 v{vLD}, 1, v{vLANE}
v_lshl_add_u32 v{vLD}, v{vLD}, 8, v{vT0}
v_add_u32 v{vLD}, 1024, v{vLD}
s_lshl_b32 s59, s{sC}, 8
s_add_u32 s59, s59, 1536
v_add_u32 v{vPW}, s59, v{vT0}
v_lshlrev_b32 v{vMSG}, 4, v{vLANE}
s_mul_i32 s59, s{sR}, {HALF}
s_add_u32 s59, s59, {STG}
v_add_u32 v{vFR}, s59, v{vMSG}
s_lshl_b32 s60, s{sC}, 11
v_add_u32 v{vFW}, s60, v{vFR}
s_add_u32 s60, s60, {STG}
v_add_u32 v{vKB}, s60, v{vMSG}
v_lshrrev_b32 v{vT0}, 5, v{vLANE}
v_and_b32 v{vXR}, 31, v{vLANE}
v_lshlrev_b32 v{vXR}, 4, v{vXR}
v_add_u32 v{vOWA}, s59, v{vXR}
v_mul_u32_u24 v{vXR}, 528, v{vT0}
v_add_u32 v{vXR}, v{vXR}, v{vOWA}
s_mul_i32 s60, s{sC}, 7168
v_add_u32 v{vOWA}, s60, v{vOWA}
v_mul_u32_u24 v{vOWB}, 504, v{vT0}
v_add_u32 v{vOWB}, v{vOWB}, v{vOWA}
v_lshl_add_u32 v{vOWA}, v{vT0}, 3, v{vOWA}
v_add_u32 v{vHIM}, -1, v{vT0}
s_lshl_b32 s60, s{sC}, 7
s_add_u32 s60, s60, {BIAS}
v_lshlrev_b32 v{vBIAS}, 5, v{vT0}
v_add_u32 v{vBIAS}, s60, v{vBIAS}
v_mov_b32 v{vFOFF}, 2048
v_mov_b32 v{vT0}, {OOB}
v_cmp_eq_u32 vcc, 63, v{vLANE}
v_cndmask_b32 v{vFOFF}, v{vT0}, v{vFOFF}, vcc""")
        chunk_order(self, cfg, sMSG, 32*MSG, sOWN)
        a(f"s_mul_i32 s59, s{sRB}, {7*32*MSG}\ns_mul_i32 s60, s3, {MSG}\ns_add_u32 s59, s59, s60\ns_add_u32 s61, s59, {XP}")
        a(f"s_mul_i32 s60, s{sJ}, {4*MSG}\ns_add_u32 s59, s61, s60\ns_add_u32 s61, s61, s{sMSG+6}")
        for t in range(7): a(f"s_add_u32 s{sMSG+t}, s{sMSG+t}, s59")
    def layernorm(self):
        a = self.a; T = ACC[0] + 56
        a(f"v_mov_b32 v{T+8}, 0x3f803f80\ns_mov_b32 s{sMASK}, 0xffff0000")
        for grp in range(2):
            X = ACC[0] + 28*grp; s1, s2 = T, T+1
            a(f"v_mov_b32 v{s1}, 0\nv_mov_b32 v{s2}, 0")
            for i in range(28): a(f"v_dot2c_f32_bf16 v{s1}, v{X+i}, v{T+8}\nv_dot2c_f32_bf16 v{s2}, v{X+i}, v{X+i}")
            for m in ("quad_perm:[1,0,3,2]", "quad_perm:[2,3,0,1]", "row_half_mirror"):
                for s in (s1, s2): a(f"v_add_f32_dpp v{s}, v{s}, v{s} {m} row_mask:0xf bank_mask:0xf")
            a(f"""v_mul_f32 v{s1}, {f2h(1/448)}, v{s1}
v_mul_f32 v{s2}, {f2h(1/448)}, v{s2}
v_fma_f32 v{s2}, -v{s1}, v{s1}, v{s2}
v_max_f32 v{s2}, 0, v{s2}
v_add_f32 v{s2}, {f2h(1e-5)}, v{s2}
v_rsq_f32 v{T+2}, v{s2}
v_mul_f32 v{T+3}, -v{s1}, v{T+2}""")
            for i in range(28):
                t = T + 4 + 2*(i & 1)
                a(f"""v_lshlrev_b32 v{t}, 16, v{X+i}
v_and_b32 v{t+1}, s{sMASK}, v{X+i}
v_pk_fma_f32 {vr(t,2)}, {vr(t,2)}, {vr(T+2,2)}, {vr(T+2,2)} op_sel:[0,0,1] op_sel_hi:[1,0,1]
v_cvt_pk_bf16_f32 v{X+i}, v{t}, v{t+1}""")
                if i % 4 == 3: a(f"ds_write_b128 v{vXW}, {vr(X+i-3, 4)} offset:{(i//4)*4224 + grp*128}")
            if grp == 0: self.stamp("ln0")
    def phi(self, acc, dst, tmp):
        L = []
        for i0 in range(0, 16, 4):
            r = [acc + i0 + k for k in range(4)]
            L += [f"v_mul_f32 v{tmp+k}, s{sL2E}, v{r[k]}" for k in range(4)]
            for k in range(4): L += [f"v_exp_f32 v{tmp+k}, v{tmp+k} clamp", f"v_max_f32 v{r[k]}, s{sEPS}, v{r[k]}"]
            L += [f"v_add_f32 v{r[k]}, v{r[k]}, v{tmp+k}" for k in range(4)]
            L += [f"v_cvt_pk_bf16_f32 v{dst + i0//2 + k}, v{r[2*k]}, v{r[2*k+1]}" for k in range(2)]
        return L
    def pack(self, acc): return [f"v_cvt_pk_bf16_f32 v{acc+i}, v{acc+2*i}, v{acc+2*i+1}" for i in range(8)]
    def bias_init(self, acc, t):
        return [f"ds_read_b128 {vr(acc+4*i, 4)}, v{vBIAS} offset:{(64*t + 16*(i>>1) + 4*(i&1))*4}" for i in range(4)]
    def h_epi(self, acc, t):
        L = []
        for h in range(2):
            for i in range(8*h, 8*h+8): L += [f"v_max_f32 v{acc+i}, 0, v{acc+i}"]
            for i in range(8*h, 8*h+8): L += [f"v_mul_f32 v{acc+i}, v{acc+i}, v{acc+i}"]
            L += self.pack(acc)[4*h:4*h+4]
            L += [f"ds_write_b128 v{vFW}, {vr(acc+4*h, 4)} offset:{HOFF + (4*t+h)*1024}"]
        L.append(lambda: self.signal(f"h{t}"))
        return L
    def wsum(self, v):
        L = [f"v_add_u32_dpp v{v}, v{v}, v{v} row_ror:{k} row_mask:0xf bank_mask:0xf" for k in (8, 4, 2, 1)]
        L += [f"v_add_u32_dpp v{v}, v{v}, v{v} row_bcast:15 row_mask:0xa bank_mask:0xf", f"v_add_u32_dpp v{v}, v{v}, v{v} row_bcast:31 row_mask:0xc bank_mask:0xf"]
        return L
    def send(self, acc, t):
        L = self.pack(acc)
        L.insert(4, f"buffer_store_dwordx4 {vr(acc, 4)}, v{vMSG}, s[{rWS}:{rWS+3}], s{sMSG+t} offen sc1")
        L += [f"buffer_store_dwordx4 {vr(acc+4, 4)}, v{vMSG}, s[{rWS}:{rWS+3}], s{sMSG+t} offen offset:1024 sc1"]
        L += [f"v_add3_u32 v{vCK}, v{acc}, v{acc+1}, v{acc+2}", f"v_add3_u32 v{vT0}, v{acc+3}, v{acc+4}, v{acc+5}",
              f"v_add3_u32 v{vCK}, v{vCK}, v{acc+6}, v{acc+7}", f"v_add_u32 v{vCK}, v{vCK}, v{vT0}"]
        L += [(lambda s=s: self.a(s)) for s in self.wsum(vCK)]
        L += [f"v_add_u32 v{vCK}, v{vCK}, v{vNON}", f"buffer_store_dwordx2 {vr(vCK, 2)}, v{vFOFF}, s[{rWS}:{rWS+3}], s{sMSG+t} offen sc1"]
        return L
    def partner(self, ev):
        return [self.flagread(vF1, vPART), lambda: self.check(vF1, vPART, self.ev[ev])]
    def kv_phase(self, items):
        L = 1 if self.role == 'E' else 2
        for s in range(28):
            kb = s >> 1
            pre = [f"ds_read_b128 {vr(XF+4*s, 4)}, v{vXR} offset:{s*1056}"]
            if s == 9: pre.append(lambda: self.signal("x8"))
            items.append(Job(ACC[0], XF+4*s, self.gi[('k', kb, 0)], s & 1, vKVA, False, s == 0, L, pre))
            items.append(Job(ACC[1], XF+4*s, self.gi[('v', kb, 0)], s & 1, vKVA, False, s == 0, L))
        def epi():
            self.ev["xall"] = self.pr
            self.stamp("kvmm")
            self.a(self.flagread(vF1, vPART)); self.a(self.flagread(vF0, vPW))
            for x in self.phi(ACC[0], ACC[0], ACC[3]): self.a(x)
            self.check(vF1, vPART, self.ev["x8"])
            for f in range(2): self.a(f"ds_write_b128 v{vFW}, {vr(ACC[0]+4*f, 4)} offset:{f*1024}")
            for x in self.pack(ACC[1]): self.a(x)
            for f in range(2): self.a(f"ds_write_b128 v{vFW}, {vr(ACC[1]+4*f, 4)} offset:{4096 + f*1024}")
            self.signal("pkv")
            self.check(vF0, vPW, 1)
            self.a(f"ds_read_b32 v{vNON}, v{vPW} offset:{NONC-1536}")
            for x in self.bias_init(ACC[2], 0) + self.bias_init(ACC[4], 1): self.a(x)
            self.stamp("kvepi")
        items.append(Code(epi))
    def gather(self, acc, batches, R):
        a = self.a; lo, hi, vo, vs = vF0, vF1, vXW, vXR
        a(f"""v_mov_b32 v{lo}, 0x3f80
v_mov_b32 v{hi}, 1.0
v_and_b32 v{vo}, 31, v{vLANE}
v_mul_u32_u24 v{vo}, 896, v{vo}
v_lshrrev_b32 v{vT0}, 5, v{vLANE}
v_lshlrev_b32 v{vT0}, 5, v{vT0}
v_add_u32 v{vo}, v{vo}, v{vT0}
s_lshl_b32 s59, s{sOWN}, 7
s_lshl_b32 s60, s{sC}, 6
s_add_u32 s59, s59, s60
s_lshl_b32 s60, s{sRB}, 1
s_add_u32 s60, s60, s{sR}
s_mul_i32 s60, s60, {32*896}
s_add_u32 s60, s60, s59""")
        Y = R + 52
        for h in range(2):
            a(f"buffer_load_dwordx4 {vr(Y+4*h, 4)}, v{vo}, s[{rX}:{rX+3}], s60 offen offset:{16*h}")
            a(f"buffer_load_dwordx4 {vr(Y+8+4*h, 4)}, v{vT0}, s[{rB2}:{rB2+3}], s59 offen offset:{16*h}")
        def add(x):
            for i in range(8): a(f"v_dot2c_f32_bf16 v{acc+2*i}, v{x+i}, v{lo}\nv_dot2c_f32_bf16 v{acc+2*i+1}, v{x+i}, v{hi}")
        first = True
        for bi, srcs in enumerate(batches):
            n = len(srcs)
            a(f"v_mov_b32 v{vs}, {OOB}")
            for i, s in enumerate(srcs):
                s(sMSG + i); a(f"s_mul_i32 s{sMSG+i}, s{sMSG+i}, {4*MSG}")
                a(f"s_add_u32 s{sT}, s{sMSG+i}, 2048\nv_writelane_b32 v{vs}, s{sT}, {i}\ns_add_u32 s{sMSG+i}, s{sMSG+i}, s61")
            if first: add(Y); add(Y+8); first = False
            lp = self.lab("gl"); a("s_waitcnt vmcnt(0)"); self.stamp(f"g{bi}go"); a(f"{lp}:")
            a(f"buffer_load_dword v{R+48}, v{vs}, s[{rWS}:{rWS+3}], s61 offen sc1")
            for i in range(n):
                for h in range(2): a(f"buffer_load_dwordx4 {vr(R+8*i+4*h, 4)}, v{vMSG}, s[{rWS}:{rWS+3}], s{sMSG+i} offen offset:{1024*h} sc1")
            a(f"v_sub_u32 v{vCK}, 0, v{R+48}")
            for i in range(4*n): a(f"v_add3_u32 v{vCK}, v{vCK}, v{R+2*i}, v{R+2*i+1}")
            for s in self.wsum(vCK): a(s)
            a(f"v_mul_lo_u32 v{vT0}, v{vNON}, {n}\nv_add_u32 v{vCK}, v{vCK}, v{vT0}\nv_readlane_b32 s{sT}, v{vCK}, 63")
            a(f"s_cmp_lg_u32 s{sT}, 0\ns_cselect_b64 vcc, -1, 0")
            self.retry(lp)
            self.stamp(f"g{bi}ok")
            for i in range(n): add(R + 8*i)
        for x in self.pack(acc): a(x)
        for h in range(2): a(f"buffer_store_dwordx4 {vr(acc+4*h, 4)}, v{vo}, s[{rOUT}:{rOUT+3}], s60 offen offset:{16*h}")
    def finale(self, acc, batches, R, can_non, can_own):
        self.stamp("mmend")
        a = self.a
        if can_non and can_own:
            own = self.lab("own")
            a(f"s_nop 7\ns_nop 3\ns_cmp_lg_u32 s{sJ}, {self.cfg.JN}\ns_cbranch_scc1 {own}")
            for x in self.send(acc, 6): self.emit_fill(x)
            fin = self.lab("fin"); a(f"s_branch {fin}\n{own}:")
            self.gather(acc, batches, R); a(f"{fin}:")
        else: self.gather(acc, batches, R)
        if self.cfg.prof: a("s_waitcnt vmcnt(0)"); self.stamp("end")
        self.end()

    def build(self):
        a = self.a; cfg = self.cfg; gi = self.gi; it = []
        self.setup(); self.stamp("setup")
        self.layernorm()
        self.pending = []; self.signal("xn"); self.stamp("ln1")
        self.wait_flag(vF1, vPART, self.ev["xn"])
        self.lastjob = -1
        self.kv_phase(it)
        if self.role == 'M':
            buf = [ACC[2], ACC[4], ACC[2], ACC[4]]
            for t in range(4):
                for s in range(28):
                    pre = []
                    if t == 3 and s == 20: pre = self.partner("h2")[:1]
                    if t == 3 and s == 22: pre = self.partner("h2")[1:]
                    if t == 3 and s >= 22: pre += [f"ds_read_b128 {vr(XF+4*k, 4)}, v{vFR} offset:{HOFF + k*1024}" for k in (2*(s-22), 2*(s-22)+1)]
                    if s == 18 - cfg.D + 2: it.append(Flush())
                    it.append(Job(buf[t], XF+4*s, gi[('w1', s >> 1, t)], s & 1, vHA, True, False, 1, pre))
                f = (self.partner("xall") if t == 0 else []) + self.h_epi(buf[t], t)
                if t < 2: f += self.bias_init(buf[t], t+2)
                if t == 3: f += self.partner("h3") + [f"ds_read_b128 {vr(XF+4*k, 4)}, v{vFR} offset:{HOFF + k*1024}" for k in range(12, 16)]
                it.append(Fill(f))
            it.append(Code(lambda: self.stamp("ffn1"), False))
            ob = lambda t: ACC[t % 3] if t < 6 else ACC[3]
            J = lambda t, s: Job(ob(t), XF+4*s, gi[('w2', s >> 1, t)], s & 1, vOA, True, s == 0)
            it += [J(0, s) for s in range(12)] + [J(1, s) for s in range(11)] + [Flush(), J(1, 11)]
            it += [J(0, s) for s in range(12, 16)] + [Fill(self.send(ob(0), 0))] + [J(1, s) for s in range(12, 16)] + [Fill(self.send(ob(1), 1))]
            for t in range(2, 7):
                it += [J(t, s) for s in range(16)] + [Flush()]
                if t < 6: it.append(Fill(self.send(ob(t), t)))
            self.run(it)
            mid = lambda i: (lambda d: a(f"s_add_u32 s{d}, s{sJ}, {i+1}\ns_cmp_gt_u32 s{d}, 6\ns_cselect_b32 s{sT}, 6, 0\ns_sub_u32 s{d}, s{d}, s{sT}"))
            const = lambda v: (lambda d: a(f"s_mov_b32 s{d}, {v}"))
            self.finale(ob(6), [[mid(i) for i in range(5)], [const(0), const(7)]], XF, 1 <= cfg.JN <= 6, True)
        else:
            buf = [ACC[2], ACC[4]]
            for t in range(2):
                it += [Job(buf[t], XF+4*s, gi[('w1', s >> 1, t)], s & 1, vHA, True) for s in range(28)] + [Flush()]
                it.append(Fill((self.partner("xall") if t == 0 else []) + self.h_epi(buf[t], t) + (self.partner("h1") if t else [])))
            it.append(Code(lambda: self.stamp("ffn1"), False))
            for s in range(28):
                it += [Job(ACC[hh], XF+4*s, gi[('q', s >> 1, 0)], s & 1, vQA + 2*hh, True, s == 0, 4) for hh in range(4)]
                if s == 20: it.append(Flush())
            it.append(Code(lambda: self.stamp("q"), False))
            f = []
            for hh in range(4):
                d = ACC[0] + 8*hh
                f += self.phi(ACC[hh], d, ACC[4]) + [f"v_and_b32 v{d+k}, v{d+k}, v{vHIM}" for k in (6, 7)]
            it.append(Fill(f))
            for s in range(8):
                hb = vQA + 4*(s & 1)
                for t in range(7):
                    pre = [f"ds_read_b128 {vr(hb, 4)}, v{vFR} offset:{HOFF + s*1024}"] if t == 0 else []
                    it.append(Job(XF + 16*t, hb, gi[('w2', s >> 1, t)], s & 1, vOA, True, s == 0, 1, pre))
            it.append(Flush())
            def ocalc():
                self.stamp("ffn2a")
                self.wait_flag(vF0, vPW, 2)
                self.stamp("kvok")
                kb = [vQA, vB, vB+8, vQA]; nb = [ACC[2], ACC[3], ACC[4], ACC[2]]
                def rd(hh):
                    for kk in range(2): a(f"ds_read_b128 {vr(kb[hh]+4*kk, 4)}, v{vKB} offset:{(hh>>1)*HALF + (hh&1)*4096 + kk*1024}")
                def mm(hh):
                    for kk in range(2):
                        a(f"v_mfma_f32_32x32x16_bf16 {vr(nb[hh],16)}, {vr(kb[hh]+4*kk,4)}, {vr(ACC[0]+8*hh+4*kk,4)}, {vr(nb[hh],16) if kk else 0}")
                def ep(hh):
                    n = nb[hh]
                    a(f"v_mov_b32 v{vT0}, v{n+12}\nv_mov_b32 v{vCK}, v{n+12}\nv_permlane32_swap_b32 v{vT0}, v{vCK}")
                    a(f"v_add_f32 v{vCK}, s{sEPS}, v{vCK}\nv_rcp_f32 v{vCK}, v{vCK}")
                    for i in range(4):
                        for k in range(4): a(f"v_mul_f32 v{n+4*i+k}, v{n+4*i+k}, v{vCK}")
                        for k in range(2): a(self.pack(n)[2*i+k])
                        g0 = 7*hh + 2*i
                        off = OOFF + (g0 >> 2)*1024 + ((g0 >> 1) & 1)*512 + (g0 & 1)*8
                        if i == 3: a("s_mov_b32 exec_hi, 0")
                        a(f"ds_write_b64 v{vOWB if g0 & 1 else vOWA}, {vr(n+2*i, 2)} offset:{off}")
                        if i == 3: a("s_mov_b32 exec_hi, -1")
                rd(0); rd(1); rd(2); mm(0); rd(3); mm(1); mm(2); ep(0); mm(3); ep(1); ep(2); ep(3)
                self.signal("o")
                self.wait_flag(vF1, vPART, self.ev["o"])
                self.stamp("o")
            it.append(Code(ocalc))
            for t in range(7):
                for s in range(14):
                    pre = [f"ds_read_b128 {vr(ACC[0]+4*s, 4)}, v{vFR} offset:{OOFF + s*1024}"] if t == 0 else []
                    it.append(Job(XF + 16*t, ACC[0]+4*s, gi[('wo', s >> 1, t)], s & 1, vOA, True, False, 1, pre))
                it.append(Flush())
                if t < 6: it.append(Fill(self.send(XF + 16*t, t)))
            self.run(it)
            const = lambda v: (lambda d: a(f"s_mov_b32 s{d}, {v}"))
            other = lambda d: a(f"s_sub_u32 s{d}, 7, s{sJ}")
            self.finale(XF + 96, [[const(i) for i in range(1, 7)], [other]], XF, cfg.JN in (0, 7), True)

def ffn_line0(w, d):
    w.a(f"s_lshl_b32 s{d}, s{sJ}, 2\ns_sub_u32 s{d}, s{d}, 2\ns_max_i32 s{d}, s{d}, 0")

def weight_srds(w, E):
    w.a(f"s_mul_i32 s59, s{sJ}, 56\ns_lshr_b32 s59, s59, 6\ns_lshl_b32 s59, s59, 7")
    if E:
        srd(w, 32, pQKV, 1204224)
        w.a(f"s_mov_b32 s49, s59\ns_and_b32 s48, s{sJ}, 1\ns_mul_i32 s59, s48, {224*896}\ns_mul_i32 s48, s48, 384")
        srd(w, 44, pWO, 401408, 59)
    else:
        srd(w, 32, pQKV, 1204224, 59)
    ffn_line0(w, 60)
    w.a("s_lshl_b32 s59, s60, 7"); srd(w, 36, pW1, 1605632, 59)
    w.a(f"s_mul_i32 s59, s60, {64*896}"); srd(w, 40, pW2, 1605632, 59)

def build_loader(role, cfg, comp):
    w = Wave("l" + role, cfg); a = w.a; E = role == 'E'
    weight_srds(w, E)
    vo = {2688: 2, 3584: 4, 896: 6}; vC, vCA, vPA, vF = 8, 9, 10, 11
    a(f"""s_sub_u32 s30, s3, 4
s_lshl_b32 s31, s30, 11
s_add_u32 s31, s31, {RING}
s_lshl_b32 s59, s30, 4
v_bfe_u32 v12, v0, 2, 3
v_add_u32 v12, s59, v12
v_lshrrev_b32 v13, 5, v0
v_lshlrev_b32 v13, 6, v13
v_and_b32 v14, 3, v0
v_lshl_add_u32 v13, v14, 4, v13""")
    for st, r in vo.items():
        a(f"v_mul_u32_u24 v{r}, {st}, v12\nv_add_u32 v{r}, v{r}, v13\nv_add_u32 v{r+1}, {8*st-1024}, v{r}")
    a(f"v_lshlrev_b32 v12, 2, v0\ns_lshl_b32 s59, s3, 8\nv_add_u32 v{vCA}, s59, v12\nv_lshl_add_u32 v{vPA}, v14, 8, v12")
    N = len(comp.groups); have = 0; ordered = False
    pub = lambda n: f"v_mov_b32 v{vC}, {n}\nds_max_u32 v{vCA}, v{vC}"
    nextchk = {}
    h = 0
    for g in range(NSLOT, N):
        if comp.rel[g-NSLOT] > h: h = comp.rel[g-NSLOT]; nextchk[g] = h
    w.stamp("start")
    for g, (m, kb, l) in enumerate(comp.groups):
        if g == 4: a("s_barrier")
        if m in ('w2', 'wo') and not ordered: chunk_order(w, cfg, 50, 128); ordered = True
        if g in nextchk: w.check(vF, vPA, nextchk[g], pre="s_waitcnt vmcnt(0)\n" + pub(g))
        rs, st, base, lit = {'k': (32, 2688, 49 if E else None, 896 + l*128), 'v': (32, 2688, 49 if E else None, 1792 + l*128),
                             'q': (32, 2688, 48, l*128), 'w1': (36, 3584, None, l*128),
                             'w2': (40, 896, 50 + l, 0), 'wo': (44, 896, 50 + l, 0)}[m]
        lit += kb*32*st
        a(f"s_add_u32 m0, s31, {(g % NSLOT)*4096}")
        a(f"s_mov_b32 s59, {lit}" if base is None else f"s_add_u32 s59, s{base}, {lit}")
        a(f"buffer_load_dwordx4 v{vo[st]}, s[{rs}:{rs+3}], s59 offen lds\nbuffer_load_dwordx4 v{vo[st]+1}, s[{rs}:{rs+3}], s59 offen offset:1024 lds")
        if g + 1 in nextchk: a(w.flagread(vF, vPA))
        if g + 1 > cfg.KG: a(f"s_waitcnt vmcnt({2*cfg.KG})\n" + pub(g + 1 - cfg.KG))
        if g in (23, 55, 111): w.stamp(f"iss{g}")
    w.stamp("issend")
    for k in range(cfg.KG - 1, -1, -1): a(f"s_waitcnt vmcnt({2*k})\n" + pub(N - k))
    w.stamp("end")
    w.end()
    return w

def build_proto(role, cfg, comp, code_range):
    w = Wave("p" + role, cfg); a = w.a; E = role == 'E'; G = cfg.G
    rWS_, rAUX = 52, 44
    a(f"s_sub_u32 s30, s3, 6")
    srd(w, rWS_, pWS, WSZ)
    if E:
        nn = w.lab("nn")
        a(f"s_lshl_b32 s59, s2, 1\ns_add_u32 s59, s59, s30\ns_cmp_lg_u32 s59, 0\ns_cbranch_scc1 {nn}")
        srd(w, 36, pDBG, 256)
        a(f"""v_mov_b32 v7, 0
s_mov_b64 exec, 1
buffer_load_dword v14, v7, s[{rWS_}:{rWS_+3}], 0 offen sc1
v_mov_b32 v15, 1
s_waitcnt vmcnt(0)
v_add_u32 v14, 1, v14
buffer_store_dwordx2 v[14:15], v7, s[36:39], 0 offen sc1
buffer_store_dword v14, v7, s[{rWS_}:{rWS_+3}], 0 offen sc1
s_mov_b64 exec, -1
{nn}:""")
    def pf(rs, sbase, stride, nrows, lines, lstep):
        lg = max(nrows-1, 0).bit_length(); per = 64 >> lg
        a(f"""v_and_b32 v2, {(1 << lg)-1}, v0
v_lshrrev_b32 v3, {lg}, v0
v_mul_u32_u24 v4, {stride}, v2
v_mul_u32_u24 v5, {lstep}, v3
v_add_u32 v4, v4, v5
v_mov_b32 v6, {OOB}
v_cmp_gt_u32 vcc, {nrows}, v2
v_cndmask_b32 v4, v6, v4, vcc""")
        if lines < per: a(f"v_cmp_gt_u32 vcc, {lines}, v3\nv_cndmask_b32 v4, v6, v4, vcc")
        a(f"s_mul_i32 s59, s{sG}, {nrows*stride}")
        if sbase is not None: a(f"s_add_u32 s59, s59, {sbase}")
        for l0 in range(0, lines, per):
            a(f"buffer_load_dword v{40 + pf.n}, v4, s[{rs}:{rs+3}], s59 offen"); pf.n += 1
            if l0 + per < lines: a(f"s_add_u32 s59, s59, {per*lstep}")
    pf.n = 0
    def pfc(rs, nlines):
        a(f"v_lshlrev_b32 v4, 7, v0\ns_mul_i32 s59, s{sG}, {nlines*128}")
        for l0 in range(0, nlines, 64):
            if nlines - l0 < 64: a(f"v_mov_b32 v6, {OOB}\nv_cmp_gt_u32 vcc, {nlines-l0}, v0\nv_cndmask_b32 v4, v6, v4, vcc")
            a(f"buffer_load_dword v{40 + pf.n}, v4, s[{rs}:{rs+3}], s59 offen"); pf.n += 1
            if l0 + 64 < nlines: a("s_add_u32 s59, s59, 8192")
    p1, pj = w.lab("p1_"), w.lab("pj_")
    if cfg.pf:
        weight_srds(w, E); nr = 448 // G
        a(f"s_cmp_eq_u32 s30, 1\ns_cbranch_scc1 {p1}")
        if E:
            a("s_add_u32 s61, s49, 896"); pf(32, "s61", 2688, nr, 2, 896); pf(32, "s48", 2688, nr, 4, 128); pfc(40, 128*7//G)
        else:
            pf(32, 896, 2688, nr, 2, 128); pf(36, None, 3584, nr, 4, 128)
        a(f"s_branch {pj}\n{p1}:")
        if E: pf(36, None, 3584, nr, 2, 128); pfc(44, 224*7//G)
        else: pf(32, 1792, 2688, nr, 2, 128); pfc(40, 256*7//G)
        a(f"{pj}:")
    a("s_barrier")
    w.stamp("pfiss")
    vPWA, vONE_, vCA, vF, vTAG, vL16 = 8, 9, 10, 11, 12, 13
    a(f"""v_lshlrev_b32 v2, 2, v0
s_lshl_b32 s59, s3, 8
v_add_u32 v{vPWA}, s59, v2
v_mov_b32 v{vONE_}, 1
v_and_b32 v3, 1, v0
v_lshl_add_u32 v{vCA}, v3, 9, v2
s_lshl_b32 s59, s30, 8
v_add_u32 v{vCA}, s59, v{vCA}
v_lshlrev_b32 v{vL16}, 4, v0
v_mov_b32 v7, 0""")
    srd(w, 36, pDBG, 256)
    ffn_line0(w, 60)
    a("s_lshl_b32 s59, s60, 7"); srd(w, rAUX, pB1, 3584, 59)
    a(f"""v_lshrrev_b32 v3, 4, v0
v_and_b32 v4, 15, v0
v_lshlrev_b32 v4, 2, v4
v_lshl_add_u32 v4, v3, 7, v4
s_lshl_b32 s59, s30, 6
v_add_u32 v4, s59, v4
buffer_load_dword v5, v4, s[{rAUX}:{rAUX+3}], 0 offen
v_lshlrev_b32 v4, 1, v4
s_waitcnt vmcnt(0)
v_lshlrev_b32 v16, 16, v5
v_and_b32 v17, 0xffff0000, v5
ds_write_b64 v4, v[16:17] offset:{BIAS}""")
    w.stamp("pfok")
    lp = w.lab("non")
    a(f"{lp}:\nbuffer_load_dwordx2 v[14:15], v7, s[36:39], 0 offen sc1\ns_waitcnt vmcnt(0)\nv_cmp_ne_u32 vcc, 1, v15")
    w.retry(lp)
    a(f"ds_write_b32 v{vPWA}, v14 offset:{NONC-1536}\nds_add_u32 v{vPWA}, v{vONE_}\nv_and_b32 v{vTAG}, 0xff, v14\ns_mov_b32 s58, 0xffffff00")
    w.stamp("nonce")
    a(f"""s_lshl_b32 s59, s30, 11
s_add_u32 s59, s59, {STG}
v_add_u32 v2, s59, v{vL16}
v_and_b32 v3, 31, v0
v_cmp_gt_u32 vcc, 28, v3
v_mov_b32 v5, 0x3f803f80
v_cndmask_b32 v4, 0, -1, vcc
s_lshl_b32 s59, s{sJ}, 1
s_add_u32 s59, s59, s30
s_lshl_b32 s59, s59, 5
s_add_u32 s59, s59, s{sRB}
s_lshl_b32 s59, s59, 12
s_add_u32 s59, s59, {KVP}""")
    w.wait_flag(vF, vCA, comp.ev["pkv"])
    w.stamp("pkv")
    for r in range(2):
        for f in (2, 0, 3, 1): a(f"ds_read_b128 {vr(64 + 16*r + 4*f, 4)}, v2 offset:{r*HALF + (f >> 1)*4096 + (f & 1)*1024}")
    for r in range(2):
        for kk in range(2):
            V = 64 + 16*r + 8 + 4*kk
            for i in range(4): a(f"v_bfi_b32 v{V+i}, v4, v{V+i}, v5")
            a(f"v_mfma_f32_32x32x16_bf16 v[16:31], {vr(64 + 16*r + 4*kk, 4)}, {vr(V, 4)}, {'v[16:31]' if r or kk else 0}")
    tag = lambda v: f"v_and_or_b32 v{v}, v{v}, s58, v{vTAG}"
    for i in range(4):
        for k in range(4): a(tag(16 + 4*i + k))
        a(f"buffer_store_dwordx4 {vr(16+4*i, 4)}, v{vL16}, s[{rWS_}:{rWS_+3}], s59 offen offset:{i*1024} sc1")
    w.stamp("l0st")
    def tagcheck(R, n):
        a(f"v_xor_b32 v3, v{R}, v{vTAG}\nv_xor_b32 v6, v{R+1}, v{vTAG}")
        for i in range(2, n, 2): a(f"v_xor_b32 v14, v{R+i}, v{vTAG}\nv_xor_b32 v15, v{R+i+1}, v{vTAG}\nv_or3_b32 v3, v3, v14, v15")
        a("v_or_b32 v3, v3, v6\nv_and_b32 v3, 0xff, v3\nv_cmp_ne_u32 vcc, 0, v3")
    a(f"""v_lshrrev_b32 v32, 3, v0
v_lshlrev_b32 v32, 12, v32
v_and_b32 v33, 7, v0
v_lshl_add_u32 v32, v33, 4, v32
s_lshl_b32 s60, s2, 1
s_add_u32 s60, s60, s30
s_lshr_b32 s59, s60, 5
s_lshl_b32 s59, s59, 17
s_and_b32 s61, s60, 31
s_lshl_b32 s61, s61, 7
s_add_u32 s59, s59, s61
s_add_u32 s48, s59, {KVP}
s_add_u32 s49, s48, 32768
s_add_u32 s50, s49, 32768
s_add_u32 s51, s50, 32768
s_lshl_b32 s60, s60, 7
s_add_u32 s60, s60, {KVF}
s_waitcnt vmcnt(0)""")
    w.stamp("l0ack")
    lp = w.lab("l1_"); a(f"{lp}:")
    for i in range(4): a(f"buffer_load_dwordx4 {vr(64+4*i, 4)}, v32, s[{rWS_}:{rWS_+3}], s{48+i} offen sc1")
    tagcheck(64, 16); w.retry(lp)
    w.stamp("l1ok")
    for k in range(4): a(f"v_add_f32 v{64+k}, v{64+k}, v{68+k}\nv_add_f32 v{72+k}, v{72+k}, v{76+k}")
    for k in range(4): a(f"v_add_f32 v{64+k}, v{64+k}, v{72+k}")
    for k in range(4): a(f"v_add_f32_dpp v{64+k}, v{64+k}, v{64+k} row_ror:8 row_mask:0xf bank_mask:0xf")
    for op in ("v_permlane16_swap_b32", "v_permlane32_swap_b32"):
        for k in range(4): a(f"v_mov_b32 v{68+k}, v{64+k}")
        for k in range(4): a(f"{op} v{64+k}, v{68+k}")
        for k in range(4): a(f"v_add_f32 v{64+k}, v{64+k}, v{68+k}")
    for k in range(4): a(tag(64 + k))
    a(f"s_mov_b64 exec, 0xff\nbuffer_store_dwordx4 v[64:67], v{vL16}, s[{rWS_}:{rWS_+3}], s60 offen sc1\ns_mov_b64 exec, -1")
    if E:
        a(f"""s_and_b32 s59, s{sJ}, 1
s_lshl_b32 s59, s59, 1
s_add_u32 s59, s59, s30
s_lshl_b32 s59, s59, 14
s_add_u32 s48, s59, {KVF}
s_add_u32 s49, s48, 4096
s_add_u32 s50, s49, 4096
s_add_u32 s51, s50, 4096
v_lshrrev_b32 v4, 5, v0
v_add_u32 v4, -1, v4
s_waitcnt vmcnt(0)""")
        w.stamp("l1ack")
        lp = w.lab("l2_"); a(f"{lp}:")
        for hh in range(4):
            for i in range(4): a(f"buffer_load_dwordx4 {vr(64+16*hh+4*i, 4)}, v{vL16}, s[{rWS_}:{rWS_+3}], s{48+hh} offen offset:{i*1024} sc1")
        tagcheck(64, 64); w.retry(lp)
        w.stamp("l2ok")
        for hh in range(4):
            R = 64 + 16*hh
            for i in range(8): a(f"v_cvt_pk_bf16_f32 v{R+i}, v{R+2*i}, v{R+2*i+1}")
            for k in (6, 7): a(f"v_and_b32 v{R+k}, v{R+k}, v4")
            for kk in range(2): a(f"ds_write_b128 v2, {vr(R+4*kk, 4)} offset:{(hh >> 1)*HALF + (hh & 1)*4096 + kk*1024}")
        a(f"ds_add_u32 v{vPWA}, v{vONE_}")
    w.stamp("end")
    w.end()
    return w

def build(cfg, verbose=False):
    G = cfg.G; ns = 32 // G; ncg = 8 // ns; lg = lambda n: n.bit_length() - 1
    e = Wave("e", cfg); a = e.a
    a("s_cmp_ge_u32 s2, 256\ns_cbranch_scc1 kernel_exit")
    a("s_load_dwordx16 s[8:23], s[0:1], 0\ns_load_dwordx4 s[24:27], s[0:1], 64\ns_load_dwordx2 s[28:29], s[0:1], 80")
    if cfg.prof: a("s_memrealtime s[64:65]\ns_memtime s[100:101]")
    a(f"""v_lshrrev_b32 v1, 6, v0
v_lshlrev_b32 v2, 2, v0
v_readfirstlane_b32 s3, v1
v_mov_b32 v3, 0
ds_write_b32 v2, v3
v_and_b32 v0, 63, v0
s_and_b32 s30, s2, 7
s_lshr_b32 s31, s2, 3
s_and_b32 s{sJ}, s30, {ncg-1}
s_lshl_b32 s{sJ}, s{sJ}, {lg(ns)}
s_and_b32 s{sT}, s31, {ns-1}
s_add_u32 s{sJ}, s{sJ}, s{sT}
s_lshr_b32 s{sG}, s31, {lg(ns)}
s_lshr_b32 s{sRB}, s30, {lg(ncg)}
s_lshl_b32 s{sRB}, s{sRB}, {lg(G)}
s_add_u32 s{sRB}, s{sRB}, s{sG}
s_mov_b32 s{sSPIN}, {SPINMAX}
s_add_u32 s62, s{sJ}, 1
s_and_b32 s62, s62, 6
v_lshrrev_b32 v4, 3, v0
v_and_b32 v5, 7, v0
v_mul_u32_u24 v6, 896, v4
v_lshl_add_u32 v6, v5, 4, v6
s_lshl_b32 s59, s{sRB}, 2
s_add_u32 s59, s59, s3
s_mul_i32 s59, s59, {16*896}
s_add_u32 s60, s59, {8*896}
s_cmp_ge_u32 s3, 4
s_waitcnt lgkmcnt(0)
s_cbranch_scc1 helpers""")
    srd(e, rX, pX, 1835008)
    for grp in range(2):
        for i in range(7): a(f"buffer_load_dwordx4 {vr(ACC[0] + 28*grp + 4*i, 4)}, v6, s[{rX}:{rX+3}], s{59+grp} offen offset:{i*128}")
    a(f"""s_barrier
s_lshr_b32 s{sR}, s3, 1
s_and_b32 s{sC}, s3, 1
s_mul_i32 s59, s{sR}, {HALF}
s_lshl_b32 s60, s{sC}, 8
s_add_u32 s59, s59, s60
s_add_u32 s59, s59, {STG}
v_mul_u32_u24 v{vXW}, 528, v5
v_lshl_add_u32 v{vXW}, v4, 4, v{vXW}
v_add_u32 v{vXW}, s59, v{vXW}
s_cmp_eq_u32 s62, 0""")
    if cfg.prof: a("s_mov_b32 s62, s100")
    a("s_cbranch_scc1 comp_E")
    comp = {}; out = []; info = {}
    pre = e.ins
    texts = {}
    for role in 'ME':
        c = Compute(role, cfg); c.ins = [x for x in pre if x.kind == 'vm_l']; npre = len(c.ins)
        c.build(); comp[role] = c
        st = []; m, o = c.finish(st); texts['c' + role] = (m[npre:], o); info['c' + role] = c.stamps
        if verbose: print(role, "compute instrs", len(m), "nops", len(st), sum(p for p, _ in st), "signals", c.pr, file=sys.stderr)
        for k, wv in (('l', build_loader(role, cfg, c)), ('p', build_proto(role, cfg, c, None))):
            texts[k + role] = wv.finish(); info[k + role] = wv.stamps
    em, eo = e.finish()
    out += em
    lab = {'cM': 'comp_M', 'cE': 'comp_E', 'lM': 'load_M', 'lE': 'load_E', 'pM': 'proto_M', 'pE': 'proto_E'}
    def sect(k): return [lab[k] + ":"] + texts[k][0] + texts[k][1]
    h = ["helpers:"]
    if cfg.codepf:
        h += f"""s_cmp_lt_u32 s3, 6
s_cbranch_scc1 nocodepf
s_getpc_b64 s[32:33]
codepf_pc:
s_cmp_eq_u32 s62, 0
s_cselect_b32 s59, role_E_start-codepf_pc, role_M_start-codepf_pc
s_ashr_i32 s60, s59, 31
s_add_u32 s32, s32, s59
s_addc_u32 s33, s33, s60
s_and_b32 s33, s33, 0xffff
s_cmp_eq_u32 s62, 0
s_cselect_b32 s34, role_E_end-role_E_start, role_M_end-role_M_start
s_mov_b32 s35, 0x20000
s_lshl_b32 s59, s{sG}, 1
s_add_u32 s59, s59, s3
s_sub_u32 s59, s59, 6
s_lshl_b32 s59, s59, 7
v_mul_u32_u24 v2, {2*G*128}, v0
buffer_load_dword v39, v2, s[32:35], s59 offen
nocodepf:""".replace("s_cselect_b32 s59, role_E_start-codepf_pc, role_M_start-codepf_pc", "s_mov_b32 s59, role_M_start-codepf_pc\ns_cselect_b32 s59, role_E_start-codepf_pc, s59").replace(
            "s_cselect_b32 s34, role_E_end-role_E_start, role_M_end-role_M_start", "s_mov_b32 s34, role_M_end-role_M_start\ns_cselect_b32 s34, role_E_end-role_E_start, s34").split("\n")
    h += ["s_cmp_eq_u32 s62, 0"] + (["s_mov_b32 s62, s100"] if cfg.prof else []) + ["s_cbranch_scc1 help_E", "s_cmp_ge_u32 s3, 6", "s_cbranch_scc1 proto_M", "s_branch load_M",
          "help_E:", "s_cmp_ge_u32 s3, 6", "s_cbranch_scc1 proto_E", "s_branch load_E"]
    out += ["s_branch comp_M"] + h + ["kernel_exit:", "s_endpgm", ".p2align 7", "role_M_start:"] + sect('pM') + sect('lM') + sect('cM') + ["role_M_end:", ".p2align 7", "role_E_start:"] \
        + sect('pE') + sect('lE') + sect('cE') + ["role_E_end:"]
    ref = open("cdna_kernels/" + NAME[:-7] + ".s.ref").read().split("\n") if False else []
    head = f"""; fused LayerNorm + linear attention + squared-ReLU FFN, one launch of 256 workgroups x 8 waves (generated by my own script)
; @launch grid=(256,1,1) block=(512,1,1) lds=163840
.amdgcn_target "amdgcn-amd-amdhsa--gfx950"
.text
.globl {NAME}
.p2align 8
.type {NAME},@function
{NAME}:
"""
    tail = f"""
.section .rodata,"a"
.p2align 6
.amdhsa_kernel {NAME}
  .amdhsa_next_free_vgpr 256
  .amdhsa_next_free_sgpr 102
  .amdhsa_accum_offset 256
  .amdhsa_group_segment_fixed_size 0
  .amdhsa_kernarg_size 88
  .amdhsa_user_sgpr_count 2
  .amdhsa_user_sgpr_kernarg_segment_ptr 1
  .amdhsa_system_sgpr_workgroup_id_x 1
.end_amdhsa_kernel
"""
    return head + "\n".join(out) + tail, info

if __name__ == "__main__":
    import json
    kw = {}
    for x in sys.argv[2:]:
        k, v = x.split("="); kw[k] = int(v)
    t, info = build(Cfg(**kw), True)
    open(sys.argv[1], "w").write(t)
    json.dump(dict(info=info, G=Cfg(**kw).G), open(sys.argv[1] + ".json", "w"))
```

```python
import re
RE_RANGE = re.compile(r'^(-|abs\(|\|)?([vsa])\[(\d+):(\d+)\]')
RE_ONE = re.compile(r'^(-|abs\(|\||-abs\()?([vsa])(\d+)\b')
TRANS = ('v_exp_f32', 'v_log_f32', 'v_rcp_f32', 'v_rsq_f32', 'v_sqrt_f32', 'v_sin_f32', 'v_cos_f32')

def regs_of(tok):
    tok = tok.strip()
    m = RE_RANGE.match(tok)
    if m: return [(m.group(2), i) for i in range(int(m.group(3)), int(m.group(4))+1)]
    m = RE_ONE.match(tok)
    if m: return [(m.group(2), int(m.group(3)))]
    if tok in ('vcc', 'vcc_lo', 'vcc_hi'): return [('x', 'vcc')]
    if tok in ('exec', 'exec_lo', 'exec_hi'): return [('x', 'exec')]
    if tok == 'm0': return [('x', 'm0')]
    return []

class I:
    __slots__ = ('text', 'op', 'kind', 'rd', 'wr', 'srcc', 'need', 'wide', 'passes', 'note')
    def __init__(self, text, need=None):
        self.text = text = text.strip(); self.need = need; self.srcc = set(); self.wide = False; self.passes = 8
        self.rd = set(); self.wr = set(); self.note = None
        if need is not None: self.op = 'need'; self.kind = 'need'; return
        if text.endswith(':'): self.op = text; self.kind = 'label'; return
        if text.startswith(';') or text.startswith('.'): self.op = text; self.kind = 'comment'; return
        parts = text.split(None, 1); op = self.op = parts[0]
        rest = parts[1] if len(parts) > 1 else ''
        toks = [t.strip() for t in re.split(r',(?![^\[]*\])', rest)] if rest else []
        mods = ''
        if toks:
            lt = toks[-1].split(None, 1); toks[-1] = lt[0]; mods = lt[1] if len(lt) > 1 else ''
        R = [regs_of(t) for t in toks]
        allr = lambda xs: set(r for x in xs for r in x)
        k = 'other'
        if op.startswith('v_mfma'):
            k = 'mfma'; self.wr = set(R[0]); self.rd = allr(R[1:]); self.srcc = set(R[3]); self.passes = 8 if '32x32' in op else 4
        elif op.startswith('v_permlane'):
            k = 'valu'; self.wr = allr(R); self.rd = allr(R); self.note = 'perm'
        elif op.startswith('v_'):
            k = 'valu'; self.wr = set(R[0]); self.rd = allr(R[1:])
            if op.startswith(('v_fmac', 'v_dot2c')) or '_dpp' in op: self.rd |= set(R[0])
            if op.startswith('v_dot'): self.note = 'dot'
            if '_dpp' in op: self.note = 'dpp'
            if op.startswith(TRANS): self.note = 'trans'
            if op.startswith(('v_readfirstlane', 'v_readlane')): self.note = 'rdlane'
            if op.startswith(('v_add_co', 'v_addc_co')): self.wr |= set(R[1]); self.rd = allr(R[2:])
        elif op.startswith('ds_'):
            if op.startswith(('ds_read', 'ds_bpermute')): k = 'ds_r'; self.wr = set(R[0]); self.rd = allr(R[1:])
            else: k = 'ds_w'; self.rd = allr(R)
        elif op.startswith('buffer_load'):
            if re.search(r'\blds\b', mods): k = 'dma'; self.rd = allr(R) | {('x', 'm0')}
            else: k = 'vm_l'; self.wr = set(R[0]); self.rd = allr(R[1:])
        elif op.startswith(('buffer_store', 'buffer_atomic')):
            k = 'vm_s'; self.rd = allr(R); self.wide = op.endswith(('x3', 'x4'))
            if self.wide: self.srcc = set(R[0])
        elif op == 's_waitcnt': k = 'wait'
        elif op == 's_nop': k = 'nop'
        elif op.startswith(('s_branch', 's_cbranch', 's_call', 's_setpc', 's_endpgm', 's_barrier', 's_setprio', 's_sleep')): k = 'ctl'
        elif op.startswith(('s_load', 's_memtime', 's_memrealtime')): k = 'smem'; self.wr = set(R[0]); self.rd = allr(R[1:])
        elif op.startswith(('s_cmp', 's_bitcmp')): k = 'salu'; self.rd = allr(R)
        elif op.startswith('s_'): k = 'salu'; self.wr = set(R[0]) if R else set(); self.rd = allr(R[1:])
        self.kind = k
    def states(self):
        if self.kind in ('label', 'comment', 'need'): return 0
        if self.kind == 'nop': return int(self.text.split()[1]) + 1
        return 1

def vr(b, n=1): return f"v{b}" if n == 1 else f"v[{b}:{b+n-1}]"
def sr(b, n=1): return f"s{b}" if n == 1 else f"s[{b}:{b+n-1}]"
def vset(b, n): return {('v', i) for i in range(b, b+n)}

def insert_waits(ins):
    out = []; q = {'lgkm': [], 'vm': []}; mx = {'lgkm': 15, 'vm': 63}
    for x in ins:
        if x.kind == 'wait':
            for c, nm in (('vm', 'vmcnt'), ('lgkm', 'lgkmcnt')):
                m = re.search(nm + r'\((\d+)\)', x.text)
                if m:
                    n = int(m.group(1))
                    if len(q[c]) > n: q[c] = q[c][len(q[c])-n:] if n else []
            out.append(x); continue
        touched = x.need if x.kind == 'need' else (x.rd | x.wr)
        w = []
        for c, nm in (('vm', 'vmcnt'), ('lgkm', 'lgkmcnt')):
            last = -1
            for p, regs in enumerate(q[c]):
                if regs & touched: last = p
            if last >= 0:
                n = min(len(q[c]) - last - 1, mx[c])
                w.append(f"{nm}({n})"); q[c] = q[c][len(q[c])-n:] if n else []
        if w: out.append(I("s_waitcnt " + " ".join(w)))
        if x.kind == 'need': continue
        out.append(x)
        if x.kind == 'ds_r': q['lgkm'].append(x.wr)
        elif x.kind == 'ds_w': q['lgkm'].append(set())
        elif x.kind == 'vm_l': q['vm'].append(x.wr)
        elif x.kind in ('vm_s', 'dma'): q['vm'].append(set())
    return out

def hazard_need(p, c):
    isv = lambda s: {r for r in s if r[0] in 'va'}
    iss = lambda s: {r for r in s if r[0] == 's' or r == ('x', 'vcc')}
    n = 0
    mem = c.kind in ('ds_r', 'ds_w', 'vm_l', 'vm_s', 'dma')
    if p.kind == 'valu':
        w = isv(p.wr)
        if c.kind == 'mfma' and w & c.rd: n = max(n, 2)
        if c.kind == 'valu':
            if c.note in ('dpp', 'perm') and w & c.rd: n = max(n, 2)
            if c.note == 'rdlane' and w & c.rd: n = max(n, 1)
            if p.note == 'trans' and w & c.rd: n = max(n, 1)
            if iss(p.wr) & c.rd: n = max(n, 4 if c.note == 'rdlane' else 2)
        if p.note == 'trans' and mem and w & c.rd: n = max(n, 1)
        if p.note == 'dot' and w & (c.rd | c.wr):
            same_acc = c.op == p.op and c.wr == p.wr
            if not same_acc: n = max(n, 3)
        if c.kind in ('vm_l', 'vm_s', 'dma') and iss(p.wr) & c.rd: n = max(n, 5)
        if c.kind in ('salu', 'smem') and iss(p.wr) & c.rd: n = max(n, 2)
    if p.kind == 'mfma':
        big = p.passes == 8
        if 'x8bf16' in c.op and p.wr & (c.rd | c.wr): n = max(n, 12)
        if 'x8bf16' in p.op and p.wr & (c.rd | c.wr): n = max(n, 20)
        if c.kind == 'mfma':
            if p.wr & (c.rd - c.srcc) or (p.wr & c.rd and any(r in p.wr for r in (c.rd - c.srcc))): n = max(n, 12 if big else 8)
            if p.wr & c.srcc and not (c.srcc == p.wr and c.passes == p.passes): n = max(n, 10 if big else 6)
            if p.wr & c.wr and not (c.srcc == p.wr): n = max(n, 10 if big else 6)
        elif (c.kind == 'valu' or mem) and p.wr & (c.rd | c.wr): n = max(n, 12 if big else 8)
        if c.kind == 'valu' and p.srcc & c.wr: n = max(n, 7 if big else 3)
    if p.kind == 'vm_s' and p.wide and p.srcc & c.wr: n = max(n, 2)
    if p.kind == 'salu' and ('x', 'm0') in p.wr and c.kind == 'dma': n = max(n, 1)
    return n

def insert_nops(ins, stats=None):
    out = []
    for x in ins:
        if x.kind not in ('label', 'comment', 'wait', 'nop', 'ctl'):
            d = 0; pad = 0
            for p in reversed(out):
                if d >= 21: break
                need = hazard_need(p, x)
                if need > d: pad = max(pad, need - d)
                d += p.states()
            if pad:
                if pad > 16: out.append(I("s_nop 15")); out.append(I(f"s_nop {pad-17}"))
                else: out.append(I(f"s_nop {pad-1}"))
                if stats is not None: stats.append((pad, x.text))
        out.append(x)
    return out

class W:
    def __init__(self, name):
        self.name = name; self.ins = []; self.ool = []; self.nlab = 0
    def a(self, text):
        for t in text.split("\n"):
            if t.strip(): self.ins.append(I(t))
    def need(self, regs): self.ins.append(I("", need=set(regs)))
    def lab(self, s):
        self.nlab += 1; return f"{self.name}_{s}{self.nlab}"
    def finish(self, stats=None):
        main = insert_nops(insert_waits(self.ins), stats)
        return [x.text for x in main], list(self.ool)
```

```python
import sys, struct
sys.path.insert(0, 'work')
from dsl import *
NAME = "parallel_sum__linear_attn_block__dense_activation_squared_relu__prompt_kernel"
f2h = lambda f: hex(struct.unpack("<I", struct.pack("<f", f))[0])
OOB = 0x80000000
STG, HALF, RING, NSLOT = 4096, 30720, 65536, 24
HOFF, OOFF = 0, 16384
KVP, KVF, KVC, XP, PROF, WSZ = 1 << 20, 5 << 20, (5 << 20) + 65536, 6 << 20, 32 << 20, 64 << 20
MSG = 2176
sJ, sRB, sG, sT = 4, 5, 6, 7
pX, pQKV, pWO, pW1, pB1, pW2, pB2, pOUT, pDBG, pWS = 8, 10, 12, 16, 18, 20, 22, 24, 26, 28
sSPIN = 63
SPINMAX = 1 << 12

class Cfg:
    G = 16; JN = 0; BASE_N = 6; D = 4; NB = 5; CH = 4; LA = 7; FILL = 2; prof = 0
    pf = 1; amp = -1; ampk = 10; L1D = 5; GT = 73; INIT = 24; W2 = 1; QFILL = 4
    def __init__(self, **kw):
        for k, v in kw.items():
            assert hasattr(Cfg, k), k
            setattr(self, k, v)

def srd(w, d, p, nbytes, off=None):
    if off is None:
        w.a(f"s_mov_b32 s{d}, s{p}\ns_and_b32 s{d+1}, s{p+1}, 0xffff\ns_mov_b32 s{d+2}, {nbytes}")
    else:
        w.a(f"s_add_u32 s{d}, s{p}, s{off}\ns_addc_u32 s{d+1}, s{p+1}, 0\ns_and_b32 s{d+1}, s{d+1}, 0xffff\ns_sub_u32 s{d+2}, {nbytes}, s{off}")
    w.a(f"s_mov_b32 s{d+3}, 0x20000")

class Wave(W):
    def __init__(self, name, cfg):
        super().__init__(name); self.cfg = cfg; self.stamps = []
    def stamp(self, label):
        if self.cfg.prof and len(self.stamps) < 17 and label not in ("g0go", "g1go", "x0"):
            k = 66 + 2*len(self.stamps); self.stamps.append(label); self.a(f"s_mem{'real' if self.cfg.prof == 2 else ''}time s[{k}:{k+1}]")
    def retry(self, label):
        x = self.lab("giveup")
        self.a(f"s_cbranch_vccz {x}\ns_sub_u32 s{sSPIN}, s{sSPIN}, 1\ns_cmp_gt_i32 s{sSPIN}, 0\ns_cbranch_scc1 {label}\n{x}:")
    def wsum(self, v):
        L = [f"v_add_u32_dpp v{v}, v{v}, v{v} row_ror:{k} row_mask:0xf bank_mask:0xf" for k in (8, 4, 2, 1)]
        L += [f"v_add_u32_dpp v{v}, v{v}, v{v} row_bcast:15 row_mask:0xa bank_mask:0xf", f"v_add_u32_dpp v{v}, v{v}, v{v} row_bcast:31 row_mask:0xc bank_mask:0xf"]
        return L
    def end(self):
        if self.cfg.prof:
            self.a("s_memrealtime s[100:101]\ns_waitcnt vmcnt(0) lgkmcnt(0)")
            srd(self, 32, pWS, WSZ)
            self.a(f"s_lshl_b32 s{sT}, s2, 3\ns_add_u32 s{sT}, s{sT}, s3\ns_lshl_b32 s{sT}, s{sT}, 7\ns_add_u32 s{sT}, s{sT}, {PROF}")
            self.a("v_mov_b32 v1, 0\ns_mov_b64 exec, 1")
            vals = [64, 100, 62, sSPIN] + [66 + 2*i for i in range(len(self.stamps))]
            for i, s in enumerate(vals):
                self.a(f"v_mov_b32 v2, s{s}\nbuffer_store_dword v2, v1, s[32:35], s{sT} offen offset:{4*i}")
        if self.cfg.amp >= 0 and self.name[0] == 'c':
            x = self.lab("amp")
            self.a(f"""s_waitcnt vmcnt(0)
s_cmp_lg_u32 s2, {self.cfg.amp}
s_cbranch_scc1 {x}e
s_memrealtime s[66:67]
s_waitcnt lgkmcnt(0)
s_sub_u32 s68, s66, s64
s_min_u32 s68, s68, 20000
s_mul_i32 s68, s68, {self.cfg.ampk}
{x}:
s_memrealtime s[70:71]
s_waitcnt lgkmcnt(0)
s_sub_u32 s69, s70, s66
s_cmp_lt_u32 s69, s68
s_cbranch_scc1 {x}
{x}e:""")
        self.a("s_endpgm")

def chunk_order(w, cfg, dst, mul, own=None):
    w.a(f"s_add_u32 s{sT}, s{sJ}, 1\ns_cmp_gt_u32 s{sJ}, {cfg.JN}\ns_cselect_b32 s{sT}, s{sJ}, s{sT}")
    w.a(f"s_cmp_eq_u32 s{sJ}, {cfg.JN}\ns_cselect_b32 s{sT}, {cfg.BASE_N}, s{sT}")
    for t in range(7):
        w.a(f"s_cmp_ge_u32 s{sT}, 7\ns_cselect_b32 s{sT}, 0, s{sT}\ns_mul_i32 s{dst+t}, s{sT}, {mul}")
        if t < 6: w.a(f"s_add_u32 s{sT}, s{sT}, 1")
    if own is not None: w.a(f"s_mov_b32 s{own}, s{sT}")

def ffn_line0(w, d):
    w.a(f"s_lshl_b32 s{d}, s{sJ}, 2\ns_sub_u32 s{d}, s{d}, 2\ns_max_i32 s{d}, s{d}, 0")

def make_groups(role):
    g = []
    if role == 'M':
        for kb in range(14): g += [('k', kb, 0), ('k', kb, 1), ('v', kb, 0), ('v', kb, 1)]
        for t in range(4): g += [('w1', kb, t) for kb in range(14)]
        g += [('w2', kb, 0) for kb in range(6)] + [('w2', kb, 1) for kb in range(6)]
        g += [('w2', kb, 0) for kb in (6, 7)] + [('w2', kb, 1) for kb in (6, 7)]
        for t in range(2, 7): g += [('w2', kb, t) for kb in range(8)]
    else:
        for kb in range(14): g += [('k', kb, 0), ('v', kb, 0)]
        for t in range(2): g += [('w1', kb, t) for kb in range(14)]
        for kb in range(14): g += [('q', kb, l) for l in range(4)]
        for kb in range(4): g += [('w2', kb, t) for t in range(7)]
        for t in range(7): g += [('wo', kb, t) for kb in range(7)]
    return g

vLANE, vT0, vT1, vT2 = 0, 1, 2, 3
vBA, vBB = 4, 6
vXW, vXR, vFR, vFW = 8, 9, 10, 11
vKVA, vHA, vOA, vPA = 12, 14, 16, 18
vOWA, vOWB = 18, 19
vMSG, vFOFF, vCK, vNON, vHIM, vEM, vTAG, vONES = 20, 21, 22, 23, 24, 25, 26, 27
vQA = 28; vB = 36; T8 = 56
XF = 64; ACC = [176 + 16*i for i in range(5)]
sR, sC, sMSG, sOWN, sL2E, sEPS, sMASK = 30, 31, 48, 55, 56, 57, 58
rX, rWS, rOUT, rAUX = 32, 36, 40, 44

class Job:
    def __init__(s, acc, act, g, sub, base, wfirst, first=False, span=1, pre=None, fill=None):
        s.acc, s.act, s.g, s.sub, s.base, s.wfirst, s.first, s.span, s.pre, s.fill = acc, act, g, sub, base, wfirst, first, span, pre or [], fill
class Code:
    def __init__(s, fn, fence=True): s.fn, s.fence = fn, fence
class Fill:
    def __init__(s, items, delay=2): s.items, s.delay = items, delay
class Flush: pass
SKIP = "SKIP"

def est_time(ins):
    t = 0; mf = 0; st = 0
    for x in ins:
        if x.kind in ('label', 'comment'): continue
        if x.kind == 'mfma': t = max(t, mf); mf = t + 34; t += 10
        elif x.kind == 'ds_w': t += 70 if '128' in x.op else 35
        elif x.kind == 'vm_s': t += 12; st += 31*4 if x.wide else 12
        elif x.kind == 'vm_l': t += 12; st += 18*4
        elif x.kind == 'ds_r': t += 7
        elif x.note == 'trans': t += 8
        else: t += 4.6
    return t, st

class Compute(Wave):
    def __init__(self, role, cfg):
        super().__init__("c" + role, cfg); self.role = role; self.groups = make_groups(role)
        self.gi = {g: i for i, g in enumerate(self.groups)}
        self.bars = []; self.ev = {}; self.done = -1; self.acq = 0
    def barrier(self, need=None, name=None, long=False):
        if need is not None: self.acq = need
        n = 0
        while n < len(self.groups) and self.lastuse[n] <= self.done: n += 1
        self.bars.append(dict(pos=len(self.ins), need=self.acq, nrel=n, long=long))
        self.a("s_barrier")
        if name: self.ev[name] = len(self.bars)
    def emit_fill(self, it):
        if callable(it): it()
        elif it != SKIP: self.a(it)
    def run(self, items):
        cfg = self.cfg; jobs = [x for x in items if isinstance(x, Job)]; N = len(self.groups)
        for n, j in enumerate(jobs): j.n = n
        self.lastuse = {}
        for j in jobs:
            for g in range(j.g, j.g + j.span): self.lastuse[g] = j.n
        lim = {}; cur = len(jobs); nxt = len(jobs)
        for x in reversed(items):
            if isinstance(x, Job): lim[x.n] = cur; nxt = x.n
            elif isinstance(x, Code) and x.fence: cur = nxt
        st = dict(rd=0); fq = []
        self.nextneed = lambda: min(N, max(self.acq, jobs[st['rd']].g + jobs[st['rd']].span - 1 + cfg.CH)) if st['rd'] < len(jobs) else N
        def reads(n):
            j = jobs[n]
            if j.g + j.span > self.acq: self.barrier(min(N, max(j.g + j.span, self.acq + cfg.CH)))
            for p in j.pre: self.emit_fill(p)
            slot = j.g % NSLOT; base = j.base + (slot >= 16); imm = (slot % 16)*4096 + j.sub*2048
            b = vB + 4*(n % cfg.NB)
            self.a(f"ds_read_b64_tr_b16 {vr(b, 2)}, v{base} offset:{imm}\nds_read_b64_tr_b16 {vr(b+2, 2)}, v{base} offset:{imm+256}")
            st['rd'] = n + 1
        def operands(j): return vset(vB + 4*(j.n % cfg.NB), 4) | vset(j.act, 4)
        for x in items:
            if isinstance(x, Job):
                if st['rd'] <= x.n:
                    while st['rd'] < min(x.n + cfg.D, lim[x.n]): reads(st['rd'])
                b = vr(vB + 4*(x.n % cfg.NB), 4); act = vr(x.act, 4); acc = vr(x.acc, 16)
                A, B = (b, act) if x.wfirst else (act, b)
                self.a(f"v_mfma_f32_32x32x16_bf16 {acc}, {A}, {B}, {'0' if x.first else acc}")
                self.done = x.n
                if st['rd'] < min(x.n + 1 + cfg.D, lim[x.n]): reads(st['rd'])
                if cfg.W2:
                    if x.n % 2 == 0:
                        s = set()
                        for k in (x.n+1, x.n+2):
                            if k < st['rd']: s |= operands(jobs[k])
                        self.need(s)
                elif x.n + 1 < st['rd']: self.need(operands(jobs[x.n + 1]))
                bud = x.fill or cfg.FILL
                while fq and bud > 0 and fq[0][0] <= x.n:
                    it = fq.pop(0)[1]; self.emit_fill(it)
                    if it == SKIP: break
                    bud -= 2 if (isinstance(it, str) and it.startswith(TRANS)) else 1
            elif isinstance(x, Fill): fq += [(self.done + x.delay, it) for it in x.items]
            elif isinstance(x, Flush):
                while fq: self.emit_fill(fq.pop(0)[1])
            else: x.fn()
        assert not fq
    def plan_loader(self):
        cfg = self.cfg; N = len(self.groups); iss = []; cur = 0; credit = 0.0
        for k, b in enumerate(self.bars):
            free = NSLOT + (self.bars[k-1]['nrel'] if k else 0)
            t, st = est_time(self.ins[(self.bars[k-1]['pos'] if k else 0):b['pos']])
            b['t'] = t
            credit += (t - st)/cfg.GT
            want = cur + int(credit) if not b['long'] else N
            if k == 0: want = cfg.INIT
            new = min(max(want, b['need'] + cfg.LA, cur), free, N)
            assert new >= b['need'], (self.role, k, new, b)
            credit = min(max(credit - (new - cur), 0.0), 0.99)
            cur = new; iss.append(cur)
        self.iss = iss

    def tile_addr(self, dst, col):
        self.a(f"""v_lshrrev_b32 v{vT0}, 6, v{col}
v_lshl_add_u32 v{dst}, v{vT0}, 12, v{vT1}
v_bfe_u32 v{vT0}, v{col}, 5, 1
v_lshl_add_u32 v{dst}, v{vT0}, 9, v{dst}
v_and_b32 v{vT0}, 31, v{col}
v_lshl_add_u32 v{dst}, v{vT0}, 1, v{dst}
v_add_u32 v{dst+1}, 0x10000, v{dst}""")
    def head_addr(self, dst, soff, width):
        c = vB
        self.a(f"""v_add_u32 v{c}, s{soff}, v{vT2}
v_subrev_u32 v{c+1}, 32, v{c}
v_cmp_le_u32 vcc, {width}, v{c}
v_cndmask_b32 v{c}, v{c}, v{c+1}, vcc""")
        self.tile_addr(dst, c)
    def setup(self):
        a = self.a; cfg = self.cfg; E = self.role == 'E'; c = vB
        ffn_line0(self, 60)
        a(f"s_lshl_b32 s59, s60, 7\ns_lshl_b32 s60, s{sC}, 6\ns_add_u32 s59, s59, s60"); srd(self, rAUX, pB1, 3584, 59)
        a(f"""v_and_b32 v{c}, 19, v{vLANE}
v_bfe_u32 v{c+1}, v{vLANE}, 2, 1
v_lshl_add_u32 v{c}, v{c+1}, 3, v{c}
v_bfe_u32 v{c+1}, v{vLANE}, 3, 1
v_lshl_add_u32 v{c}, v{c+1}, 2, v{c}
v_lshrrev_b32 v{c+1}, 5, v{vLANE}
v_lshlrev_b32 v{c+1}, 31, v{c+1}
v_lshl_add_u32 v{c}, v{c}, 1, v{c+1}""")
        for t in range(2 if E else 4): a(f"buffer_load_ushort v{T8+t}, v{c}, s[{rAUX}:{rAUX+3}], 0 offen offset:{t*128}")
        a(f"s_mov_b32 s{sL2E}, 0x3fb8aa3b\ns_mov_b32 s{sEPS}, 0x358637bd")
        srd(self, rWS, pWS, WSZ); srd(self, rOUT, pOUT, 1835008); srd(self, rAUX, pDBG, 256)
        a(f"""v_lshrrev_b32 v{vT0}, 5, v{vLANE}
v_lshlrev_b32 v{vT1}, 10, v{vT0}
v_bfe_u32 v{vT0}, v{vLANE}, 2, 2
v_lshl_add_u32 v{vT1}, v{vT0}, 6, v{vT1}
v_add_u32 v{vT1}, {RING}, v{vT1}
v_bfe_u32 v{vT0}, v{vLANE}, 4, 1
v_and_b32 v{vT2}, 3, v{vLANE}
v_lshl_add_u32 v{vT2}, v{vT0}, 2, v{vT2}
v_lshlrev_b32 v{vT2}, 2, v{vT2}""")
        a(f"s_mul_i32 s59, s{sJ}, 56\ns_and_b32 s59, s59, 63\ns_mul_i32 s60, s{sC}, 28\ns_add_u32 s59, s59, s60")
        self.head_addr(vKVA, 59, 64 if E else 128)
        if E:
            a(f"s_and_b32 s59, s{sJ}, 1\ns_lshl_b32 s59, s59, 5\ns_mul_i32 s60, s{sC}, 112\ns_add_u32 s59, s59, s60")
            for hh in range(4):
                self.head_addr(vQA + 2*hh, 59, 256)
                if hh < 3: a("s_add_u32 s59, s59, 28")
        a(f"s_lshl_b32 s59, s{sC}, 5")
        a(f"""v_and_b32 v{c}, 16, v{vLANE}
v_and_b32 v{c+1}, 1, v{vLANE}
v_lshl_add_u32 v{c}, v{c+1}, 3, v{c}
v_bfe_u32 v{c+1}, v{vLANE}, 1, 1
v_lshl_add_u32 v{c}, v{c+1}, 2, v{c}
v_add_u32 v{c}, s59, v{c}""")
        self.tile_addr(vHA, c)
        a(f"""v_and_b32 v{c}, 1, v{vLANE}
v_lshlrev_b32 v{c}, 4, v{c}
v_bfe_u32 v{c+1}, v{vLANE}, 4, 1
v_lshl_add_u32 v{c}, v{c+1}, 3, v{c}
v_bfe_u32 v{c+1}, v{vLANE}, 1, 1
v_lshl_add_u32 v{c}, v{c+1}, 2, v{c}
v_add_u32 v{c}, s59, v{c}""")
        self.tile_addr(vOA, c)
        if not E:
            a(f"s_lshl_b32 s59, s{sC}, 12\ns_sub_u32 s60, 4096, s59")
            for k in range(2): a(f"v_add_u32 v{vPA+k}, s60, v{vOA+k}\nv_add_u32 v{vOA+k}, s59, v{vOA+k}")
        a(f"""v_lshlrev_b32 v{vMSG}, 4, v{vLANE}
s_mul_i32 s59, s{sR}, {HALF}
s_add_u32 s59, s59, {STG}
v_add_u32 v{vFR}, s59, v{vMSG}
s_lshl_b32 s60, s{sC}, 11
v_add_u32 v{vFW}, s60, v{vFR}
v_lshrrev_b32 v{vT0}, 5, v{vLANE}
v_and_b32 v{vT1}, 31, v{vLANE}
v_lshl_add_u32 v{vT2}, v{vT1}, 4, s59
v_mul_u32_u24 v{vXR}, 528, v{vT0}
v_add_u32 v{vXR}, v{vXR}, v{vT2}
v_add_u32 v{vHIM}, -1, v{vT0}
v_subrev_u32 v{vEM}, 28, v{vT1}
v_ashrrev_i32 v{vEM}, 31, v{vEM}
v_mov_b32 v{vONES}, 0x3f803f80
v_subrev_u32 v{vFOFF}, 63, v{vLANE}
v_and_b32 v{vFOFF}, {OOB}, v{vFOFF}
v_or_b32 v{vFOFF}, 2048, v{vFOFF}""")
        if E:
            a(f"""s_mul_i32 s60, s{sC}, 7168
v_add_u32 v{vOWA}, s60, v{vT2}
v_mul_u32_u24 v{vOWB}, 504, v{vT0}
v_add_u32 v{vOWB}, v{vOWB}, v{vOWA}
v_lshl_add_u32 v{vOWA}, v{vT0}, 3, v{vOWA}""")
        else:
            a(f"s_sub_u32 s60, 2048, s60\nv_add_u32 v{vFR}, s60, v{vFR}")
        chunk_order(self, cfg, sMSG, 32*MSG, sOWN)
        a(f"s_mul_i32 s59, s{sRB}, {7*32*MSG}\ns_mul_i32 s60, s3, {MSG}\ns_add_u32 s59, s59, s60\ns_add_u32 s61, s59, {XP}")
        a(f"s_mul_i32 s60, s{sJ}, {4*MSG}\ns_add_u32 s59, s61, s60\ns_add_u32 s61, s61, s{sMSG+6}")
        for t in range(7): a(f"s_add_u32 s{sMSG+t}, s{sMSG+t}, s59")
        a(f"""s_lshl_b32 s59, s{sJ}, 1
s_add_u32 s59, s59, s{sC}
s_lshl_b32 s59, s59, 5
s_add_u32 s59, s59, s{sRB}
s_lshl_b32 s59, s59, 1
s_add_u32 s59, s59, s{sR}
s_lshl_b32 s59, s59, 12
s_add_u32 s59, s59, {KVP}""")
    def layernorm(self):
        a = self.a; T = ACC[0] + 56
        a(f"s_mov_b32 s{sMASK}, 0xffff0000")
        for grp in range(2):
            X = ACC[0] + 28*grp; s1, s2 = T, T+1
            a(f"v_mov_b32 v{s1}, 0\nv_mov_b32 v{s2}, 0")
            for i in range(28): a(f"v_dot2c_f32_bf16 v{s1}, v{X+i}, v{vONES}\nv_dot2c_f32_bf16 v{s2}, v{X+i}, v{X+i}")
            if grp == 1:
                self.stamp("x1")
                a(f"v_mov_b32 v{vT0}, 0\nbuffer_load_dwordx2 {vr(vCK, 2)}, v{vT0}, s[{rAUX}:{rAUX+3}], 0 offen sc1")
            else: self.stamp("x0")
            for m in ("quad_perm:[1,0,3,2]", "quad_perm:[2,3,0,1]", "row_half_mirror"):
                for s in (s1, s2): a(f"v_add_f32_dpp v{s}, v{s}, v{s} {m} row_mask:0xf bank_mask:0xf")
            a(f"""v_mul_f32 v{s1}, {f2h(1/448)}, v{s1}
v_mul_f32 v{s2}, {f2h(1/448)}, v{s2}
v_fma_f32 v{s2}, -v{s1}, v{s1}, v{s2}
v_max_f32 v{s2}, 0, v{s2}
v_add_f32 v{s2}, {f2h(1e-5)}, v{s2}
v_rsq_f32 v{T+2}, v{s2}
v_mul_f32 v{T+3}, -v{s1}, v{T+2}""")
            for i0 in range(0, 28, 4):
                t = T + 4
                for k in range(4): a(f"v_lshlrev_b32 v{t+2*k}, 16, v{X+i0+k}\nv_and_b32 v{t+2*k+1}, s{sMASK}, v{X+i0+k}")
                for k in range(4): a(f"v_pk_fma_f32 {vr(t+2*k,2)}, {vr(t+2*k,2)}, {vr(T+2,2)}, {vr(T+2,2)} op_sel:[0,0,1] op_sel_hi:[1,0,1]")
                for k in range(4): a(f"v_cvt_pk_bf16_f32 v{X+i0+k}, v{t+2*k}, v{t+2*k+1}")
                a(f"ds_write_b128 v{vXW}, {vr(X+i0, 4)} offset:{(i0//4)*4224 + grp*128}")
        E = self.role == 'E'
        a(f"v_lshl_or_b32 v{vBA}, v{T8+1}, 16, v{T8}")
        a(f"v_mov_b32 v{vBA+1}, 0" if E else f"v_lshl_or_b32 v{vBA+1}, v{T8+3}, 16, v{T8+2}")
        a(f"s_mov_b32 s{sMASK}, 0xffffff00")
    def bias_init(self, acc, t):
        one = "1.0" if t & 1 else "0x3f80"
        return [f"v_mov_b32 v{vBB + (t >> 1)}, {one}", f"v_mov_b32 v{vBB + 1 - (t >> 1)}, 0", SKIP,
                f"v_mfma_f32_32x32x8bf16_1k {vr(acc, 16)}, {vr(vBA, 2)}, {vr(vBB, 2)}, 0"]
    def phi(self, acc, dst, tmp):
        L = []
        for i0 in range(0, 16, 4):
            r = [acc + i0 + k for k in range(4)]
            L += [f"v_mul_f32 v{tmp+k}, s{sL2E}, v{r[k]}" for k in range(4)]
            for k in range(4): L += [f"v_exp_f32 v{tmp+k}, v{tmp+k} clamp", f"v_max_f32 v{r[k]}, s{sEPS}, v{r[k]}"]
            L += [f"v_add_f32 v{r[k]}, v{r[k]}, v{tmp+k}" for k in range(4)]
            L += [f"v_cvt_pk_bf16_f32 v{dst + i0//2 + k}, v{r[2*k]}, v{r[2*k+1]}" for k in range(2)]
        return L
    def pack(self, acc, dst=None):
        dst = acc if dst is None else dst
        return [f"v_cvt_pk_bf16_f32 v{dst+i}, v{acc+2*i}, v{acc+2*i+1}" for i in range(8)]
    def h_epi(self, acc, dst):
        L = []
        for h in range(2):
            L += [f"v_mul_f32 v{acc+i}, v{acc+i}, abs(v{acc+i})" for i in range(8*h, 8*h+8)]
            L += self.pack(acc, dst)[4*h:4*h+4]
            L += [f"v_pk_max_i16 v{dst+i}, v{dst+i}, 0" for i in range(4*h, 4*h+4)]
        return L
    def h_write(self, src, t):
        for h in range(2): self.a(f"ds_write_b128 v{vFW}, {vr(src+4*h, 4)} offset:{HOFF + (4*t+h)*1024}")
    def send(self, acc, t):
        L = self.pack(acc)
        L.insert(4, f"buffer_store_dwordx4 {vr(acc, 4)}, v{vMSG}, s[{rWS}:{rWS+3}], s{sMSG+t} offen sc1")
        L += [f"buffer_store_dwordx4 {vr(acc+4, 4)}, v{vMSG}, s[{rWS}:{rWS+3}], s{sMSG+t} offen offset:1024 sc1"]
        L += [f"v_add3_u32 v{vCK}, v{acc}, v{acc+1}, v{acc+2}", f"v_add3_u32 v{vT0}, v{acc+3}, v{acc+4}, v{acc+5}",
              f"v_add3_u32 v{vCK}, v{vCK}, v{acc+6}, v{acc+7}", f"v_add_u32 v{vCK}, v{vCK}, v{vT0}"]
        for s in self.wsum(vCK): L += [SKIP, s]
        L += [f"v_add_u32 v{vCK}, v{vCK}, v{vNON}", f"buffer_store_dwordx2 {vr(vCK, 2)}, v{vFOFF}, s[{rWS}:{rWS+3}], s{sMSG+t} offen sc1"]
        return L
    def nonce_check(self):
        slow, back = self.lab("slow"), self.lab("back")
        self.a(f"v_cmp_ne_u32 vcc, 1, v{vCK}\ns_cbranch_vccnz {slow}\n{back}:\nv_and_b32 v{vTAG}, 0xff, v{vNON}")
        self.ool += f"""{slow}:
v_mov_b32 v{vTAG}, 0
s_sub_u32 s{sSPIN}, s{sSPIN}, 1
buffer_load_dwordx2 {vr(vCK, 2)}, v{vTAG}, s[{rAUX}:{rAUX+3}], 0 offen sc1
s_cmp_le_i32 s{sSPIN}, 0
s_waitcnt vmcnt(0)
s_cbranch_scc1 {back}
v_cmp_ne_u32 vcc, 1, v{vCK}
s_cbranch_vccnz {slow}
s_branch {back}""".split("\n")
    def kv_epi(self):
        K, V, Dd = ACC[0], ACC[1], ACC[3]
        L = self.phi(K, K, T8) + self.pack(V) + [f"v_bfi_b32 v{V+i}, v{vEM}, v{V+i}, v{vONES}" for i in range(8)]
        L += [self.nonce_check]
        L += [f"v_mfma_f32_32x32x16_bf16 {vr(Dd,16)}, {vr(K+4*kk,4)}, {vr(V+4*kk,4)}, {vr(Dd,16) if kk else 0}" for kk in range(2)]
        L2 = []
        for i in range(4):
            L2 += [f"v_and_or_b32 v{Dd+4*i+k}, v{Dd+4*i+k}, s{sMASK}, v{vTAG}" for k in range(4)]
            L2 += [f"buffer_store_dwordx4 {vr(Dd+4*i, 4)}, v{vMSG}, s[{rWS}:{rWS+3}], s59 offen offset:{i*1024} sc1"]
        def mark(): self.ev["l0"] = len(self.bars); self.stamp("l0st")
        return L, L2 + [mark]
    def kv_phase(self, items):
        L = 1 if self.role == 'E' else 2
        for s in range(28):
            kb = s >> 1
            pre = [f"ds_read_b128 {vr(XF+4*s, 4)}, v{vXR} offset:{s*1056}"]
            items.append(Job(ACC[0], XF+4*s, self.gi[('k', kb, 0)], s & 1, vKVA, False, s == 0, L, pre))
            items.append(Job(ACC[1], XF+4*s, self.gi[('v', kb, 0)], s & 1, vKVA, False, s == 0, L))
            if s == 20: items.append(Fill(self.bias_init(ACC[2], 0) + self.bias_init(ACC[4], 1), 0))
        items.append(Flush()); items.append(Code(lambda: self.stamp("kvmm"), False))
    def checksum(self, R, n, fl, cnt):
        a = self.a
        a(f"v_sub_u32 v{vCK}, 0, v{fl}")
        for i in range(0, n, 2): a(f"v_add3_u32 v{vCK}, v{vCK}, v{R+i}, v{R+i+1}")
        for s in self.wsum(vCK): a(s)
        a(f"v_mul_lo_u32 v{vT0}, v{vNON}, {cnt}\nv_add_u32 v{vCK}, v{vCK}, v{vT0}\nv_readlane_b32 s{sT}, v{vCK}, 63")
        a(f"s_cmp_lg_u32 s{sT}, 0\ns_cselect_b64 vcc, -1, 0")
    def gather(self, acc, batches, R):
        a = self.a; lo, hi, vo, vs = vBA, vBA+1, vXW, vXR
        srd(self, rAUX, pB2, 896)
        a(f"""v_mov_b32 v{lo}, 0x3f80
v_mov_b32 v{hi}, 1.0
v_and_b32 v{vo}, 31, v{vLANE}
v_mul_u32_u24 v{vo}, 896, v{vo}
v_lshrrev_b32 v{vT0}, 5, v{vLANE}
v_lshlrev_b32 v{vT0}, 5, v{vT0}
v_add_u32 v{vo}, v{vo}, v{vT0}
s_lshl_b32 s59, s{sOWN}, 7
s_lshl_b32 s60, s{sC}, 6
s_add_u32 s59, s59, s60
s_lshl_b32 s60, s{sRB}, 1
s_add_u32 s60, s60, s{sR}
s_mul_i32 s60, s60, {32*896}
s_add_u32 s60, s60, s59""")
        Y = R + 52
        for h in range(2):
            a(f"buffer_load_dwordx4 {vr(Y+4*h, 4)}, v{vo}, s[{rX}:{rX+3}], s60 offen offset:{16*h}")
            a(f"buffer_load_dwordx4 {vr(Y+8+4*h, 4)}, v{vT0}, s[{rAUX}:{rAUX+3}], s59 offen offset:{16*h}")
        def add(x):
            for i in range(8): a(f"v_dot2c_f32_bf16 v{acc+2*i}, v{x+i}, v{lo}\nv_dot2c_f32_bf16 v{acc+2*i+1}, v{x+i}, v{hi}")
        for bi, (srcs, poll) in enumerate(batches):
            n = len(srcs)
            a(f"v_mov_b32 v{vs}, {OOB}")
            for i, s in enumerate(srcs):
                s(sMSG + i); a(f"s_mul_i32 s{sMSG+i}, s{sMSG+i}, {4*MSG}")
                a(f"s_add_u32 s{sT}, s{sMSG+i}, 2048\nv_writelane_b32 v{vs}, s{sT}, {i}\ns_add_u32 s{sMSG+i}, s{sMSG+i}, s61")
            self.stamp(f"g{bi}go")
            if poll:
                if bi == 0: add(Y); add(Y+8)
                lp = self.lab("gp"); a(f"s_mov_b64 exec, {(1 << n)-1}\n{lp}:")
                a(f"buffer_load_dword v{R+49}, v{vs}, s[{rWS}:{rWS+3}], s61 offen offset:4 sc1\ns_waitcnt vmcnt(0)\nv_cmp_ne_u32 vcc, v{R+49}, v{vNON}")
                self.retry(lp); a("s_mov_b64 exec, -1")
                self.stamp(f"g{bi}fl")
            lp = self.lab("gl"); a(f"{lp}:")
            a(f"buffer_load_dword v{R+48}, v{vs}, s[{rWS}:{rWS+3}], s61 offen sc1")
            for i in range(n):
                for h in range(2): a(f"buffer_load_dwordx4 {vr(R+8*i+4*h, 4)}, v{vMSG}, s[{rWS}:{rWS+3}], s{sMSG+i} offen offset:{1024*h} sc1")
            self.checksum(R, 8*n, R+48, n)
            self.retry(lp)
            self.stamp(f"g{bi}ok")
            if bi == 0 and not poll: add(Y); add(Y+8)
            for i in range(n): add(R + 8*i)
        for x in self.pack(acc): a(x)
        for h in range(2): a(f"buffer_store_dwordx4 {vr(acc+4*h, 4)}, v{vo}, s[{rOUT}:{rOUT+3}], s60 offen offset:{16*h}")
    def finale(self, acc, batches, R, can_non):
        self.stamp("mmend")
        a = self.a
        if can_non:
            own = self.lab("own")
            a(f"s_cmp_lg_u32 s{sJ}, {self.cfg.JN}\ns_cbranch_scc1 {own}")
            for x in self.send(acc, 6): self.emit_fill(x)
            fin = self.lab("fin"); a(f"s_branch {fin}\n{own}:")
            self.gather(acc, batches, R); a(f"{fin}:")
        else: self.gather(acc, batches, R)
        if self.cfg.prof: a("s_waitcnt vmcnt(0)"); self.stamp("end")
        self.end()

    def build(self):
        a = self.a; cfg = self.cfg; gi = self.gi; it = []
        self.setup(); self.stamp("setup")
        self.layernorm()
        def xbar():
            a("s_waitcnt lgkmcnt(0)"); self.stamp("ln"); self.barrier(cfg.CH, long=True); self.stamp("b0")
        it.append(Code(xbar))
        self.kv_phase(it)
        e1, e2 = self.kv_epi()
        def xchg(long=False):
            a("s_waitcnt lgkmcnt(0)"); self.barrier(self.nextneed(), long=long)
        if self.role == 'M':
            def epi():
                for x in e1: self.emit_fill(x)
            it.append(Code(epi, False)); it.append(Fill(e2, 3))
            buf = [ACC[2], ACC[4], ACC[2], ACC[4]]; HK = [ACC[0], ACC[0]+8, ACC[1], ACC[1]+8]
            for t in range(4):
                it += [Job(buf[t], XF+4*s, gi[('w1', s >> 1, t)], s & 1, vHA, True, fill=(4 if t == 0 and s < 10 else None)) for s in range(28)]
                it.append(Flush())
                it.append(Fill(self.h_epi(buf[t], HK[t]) + (self.bias_init(buf[t], t+2) if t < 2 else [])))
            it.append(Code(lambda: self.stamp("ffn1"), False))
            ob = lambda t: (ACC[2], ACC[3], ACC[4])[t % 3]
            def J(t, h, kk, own, first=False, pre=None, fill=None):
                return Job(ob(t), (HK[h] if own else XF + 8*h) + 4*kk, gi[('w2', 2*h, t)], kk, vOA if own else vPA, True, first, 2, pre, fill)
            for t in range(2): it += [J(t, h, kk, True, h + kk == 0, fill=3) for h in range(3) for kk in range(2)]
            it.append(Flush())
            def hw():
                self.stamp("hw")
                for t in range(4): self.h_write(HK[t], t)
            it.append(Code(hw, False))
            for t in range(2): it += [J(t, 3, kk, True) for kk in range(2)]
            it.append(Code(xchg)); it.append(Code(lambda: self.stamp("hx"), False))
            rd = lambda h, kk: [f"ds_read_b128 {vr(XF+8*h+4*kk, 4)}, v{vFR} offset:{HOFF + (4*h+kk)*1024}"]
            it += [J(0, h, kk, False, pre=rd(h, kk)) for h in range(4) for kk in range(2)] + [Fill(self.send(ob(0), 0))]
            it += [J(1, h, kk, False, fill=3) for h in range(4) for kk in range(2)] + [Fill(self.send(ob(1), 1))]
            for t in range(2, 7):
                it += [J(t, h, kk, own, h + kk == 0 and own, fill=3 if t == 2 else None) for h in range(4) for own in (True, False) for kk in range(2)] + [Flush()]
                if t < 6: it.append(Fill(self.send(ob(t), t)))
            self.run(it)
            mid = lambda i: (lambda d: a(f"s_add_u32 s{d}, s{sJ}, {i+1}\ns_cmp_gt_u32 s{d}, 6\ns_cselect_b32 s{sT}, 6, 0\ns_sub_u32 s{d}, s{d}, s{sT}"))
            const = lambda v: (lambda d: a(f"s_mov_b32 s{d}, {v}"))
            self.finale(ob(6), [([mid(i) for i in range(5)], True), ([const(0), const(7)], True)], XF, 1 <= cfg.JN <= 6)
        else:
            buf = [ACC[2], ACC[4]]
            it.append(Fill(e1 + [SKIP]*3 + e2))
            it += [Job(buf[0], XF+4*s, gi[('w1', s >> 1, 0)], s & 1, vHA, True, fill=3) for s in range(28)]
            it.append(Fill(self.h_epi(buf[0], T8)))
            it += [Job(buf[1], XF+4*s, gi[('w1', s >> 1, 1)], s & 1, vHA, True, fill=3) for s in range(28)] + [Flush()]
            it.append(Fill(self.h_epi(buf[1], buf[1])))
            it.append(Code(lambda: self.stamp("ffn1"), False))
            for s in range(28):
                it += [Job(ACC[hh], XF+4*s, gi[('q', s >> 1, 0)], s & 1, vQA + 2*hh, True, s == 0, 4, fill=1) for hh in range(4)]
                if s == 11: it += [Flush(), Code(lambda: (self.h_write(T8, 0), self.h_write(buf[1], 1)), False)]
            it.append(Code(lambda: self.stamp("q"), False))
            f = []
            for hh in range(4):
                d = ACC[0] + 8*hh
                f += self.phi(ACC[hh], d, T8) + [f"v_and_b32 v{d+k}, v{d+k}, v{vHIM}" for k in (6, 7)]
            it.append(Fill(f))
            for s in range(8):
                hb = vQA + 4*(s & 1)
                for t in range(7):
                    pre = [f"ds_read_b128 {vr(hb, 4)}, v{vFR} offset:{HOFF + s*1024}"] if t == 0 else []
                    it.append(Job(XF + 16*t, hb, gi[('w2', s >> 1, t)], s & 1, vOA, True, s == 0, 1, pre, cfg.QFILL))
            def ocalc():
                self.barrier()
                self.stamp("ffn2a")
            it.append(Code(ocalc)); it.append(Flush())
            def ocalc2():
                KB = ACC[2]
                a(f"""s_and_b32 s59, s{sJ}, 1
s_lshl_b32 s59, s59, 1
s_add_u32 s59, s59, s{sC}
s_lshl_b32 s60, s59, 8
s_add_u32 s60, s60, {KVC}
s_lshl_b32 s59, s59, 13
s_add_u32 s59, s59, {KVF}
s_add_u32 s{sMASK}, s59, 4096
v_lshlrev_b32 v{vT1}, 2, v{vLANE}""")
                self.stamp("phi")
                lp = self.lab("l2_"); a(f"{lp}:\nbuffer_load_dword v{vT2}, v{vT1}, s[{rWS}:{rWS+3}], s60 offen sc1")
                for i in range(8): a(f"buffer_load_dwordx4 {vr(KB+4*i, 4)}, v{vMSG}, s[{rWS}:{rWS+3}], s{59 if i < 4 else sMASK} offen offset:{(i & 3)*1024} sc1")
                self.checksum(KB, 32, vT2, 64); self.retry(lp)
                self.stamp("kvok")
                nb = [ACC[4], vB, ACC[4], vB]
                def mm(hh):
                    for kk in range(2):
                        a(f"v_mfma_f32_32x32x16_bf16 {vr(nb[hh],16)}, {vr(KB+8*hh+4*kk,4)}, {vr(ACC[0]+8*hh+4*kk,4)}, {vr(nb[hh],16) if kk else 0}")
                def ep(hh):
                    n = nb[hh]
                    a(f"v_mov_b32 v{vT0}, v{n+12}\nv_mov_b32 v{vCK}, v{n+12}\nv_permlane32_swap_b32 v{vT0}, v{vCK}")
                    a(f"v_add_f32 v{vCK}, s{sEPS}, v{vCK}\nv_rcp_f32 v{vCK}, v{vCK}")
                    for i in range(4):
                        for k in range(4): a(f"v_mul_f32 v{n+4*i+k}, v{n+4*i+k}, v{vCK}")
                        for k in range(2): a(self.pack(n)[2*i+k])
                        g0 = 7*hh + 2*i
                        off = OOFF + (g0 >> 2)*1024 + ((g0 >> 1) & 1)*512 + (g0 & 1)*8
                        if i == 3: a("s_mov_b32 exec_hi, 0")
                        a(f"ds_write_b64 v{vOWB if g0 & 1 else vOWA}, {vr(n+2*i, 2)} offset:{off}")
                        if i == 3: a("s_mov_b32 exec_hi, -1")
                mm(0); mm(1); ep(0); mm(2); ep(1); mm(3); ep(2); ep(3)
                xchg(True)
                self.stamp("o")
            it.append(Code(ocalc2))
            for t in range(7):
                for s in range(14):
                    pre = [f"ds_read_b128 {vr(ACC[0]+4*s, 4)}, v{vFR} offset:{OOFF + s*1024}"] if t == 0 else []
                    it.append(Job(XF + 16*t, ACC[0]+4*s, gi[('wo', s >> 1, t)], s & 1, vOA, True, False, 1, pre, 3))
                it.append(Flush())
                if t < 6: it.append(Fill(self.send(XF + 16*t, t)))
            self.run(it)
            const = lambda v: (lambda d: a(f"s_mov_b32 s{d}, {v}"))
            other = lambda d: a(f"s_sub_u32 s{d}, 7, s{sJ}")
            self.finale(XF + 96, [([const(i) for i in range(1, 7)], False), ([other], False)], XF, cfg.JN in (0, 7))
        self.plan_loader()

def weight_srds(w, E, qkv=True):
    if qkv:
        w.a(f"s_mul_i32 s49, s{sJ}, 56\ns_lshr_b32 s49, s49, 6\ns_lshl_b32 s49, s49, 7")
    if E:
        w.a(f"s_and_b32 s48, s{sJ}, 1\ns_mul_i32 s59, s48, {224*896}\ns_mul_i32 s48, s48, 384")
        srd(w, 44, pWO, 401408, 59)
    ffn_line0(w, 60)
    w.a("s_lshl_b32 s59, s60, 7"); srd(w, 36, pW1, 1605632, 59)
    w.a(f"s_mul_i32 s59, s60, {64*896}"); srd(w, 40, pW2, 1605632, 59)

def build_loader(role, cfg, comp):
    w = Wave("l" + role, cfg); a = w.a; E = role == 'E'
    vo = {2688: 2, 3584: 3, 896: 4}
    a(f"""s_mul_i32 s49, s{sJ}, 56
s_lshr_b32 s49, s49, 6
s_lshl_b32 s49, s49, 7
s_sub_u32 s30, s3, 4
s_lshl_b32 s31, s30, 11
s_add_u32 s31, s31, {RING}
s_lshl_b32 s59, s30, 4
v_bfe_u32 v12, v0, 2, 3
v_add_u32 v12, s59, v12
v_lshrrev_b32 v13, 5, v0
v_lshlrev_b32 v13, 6, v13
v_and_b32 v14, 3, v0
v_lshl_add_u32 v13, v14, 4, v13""")
    for st, r in vo.items(): a(f"v_mul_u32_u24 v{r}, {st}, v12\nv_add_u32 v{r}, v{r}, v13")
    N = len(comp.groups); g = 0
    w.stamp("start")
    for k, b in enumerate(comp.bars):
        while g < comp.iss[k]:
            m, kb, l = comp.groups[g]
            rs, st, base, lit = {'k': (32, 2688, 49, 896 + l*128), 'v': (32, 2688, 49, 1792 + l*128),
                                 'q': (32, 2688, 48, l*128), 'w1': (36, 3584, None, l*128),
                                 'w2': (40, 896, 50 + l, 0), 'wo': (44, 896, 50 + l, 0)}[m]
            for p in range(2):
                o = lit + (kb*32 + p*8)*st
                a(f"s_add_u32 m0, s31, {(g % NSLOT)*4096 + p*1024}")
                a(f"s_mov_b32 s59, {o}" if base is None else f"s_add_u32 s59, s{base}, {o}")
                a(f"buffer_load_dwordx4 v{vo[st]}, s[{rs}:{rs+3}], s59 offen lds")
            g += 1
            if g == 8: weight_srds(w, E, False); chunk_order(w, cfg, 50, 128)
            if g in (cfg.INIT, 56, 112, N): w.stamp(f"iss{g}")
        a(f"s_waitcnt vmcnt({2*(g - b['need'])})\ns_barrier")
        if b['need'] == N: break
    w.stamp("end")
    w.end()
    return w

def build_proto(role, cfg, comp):
    w = Wave("p" + role, cfg); a = w.a; E = role == 'E'; G = cfg.G
    rWS_ = 52
    a(f"s_sub_u32 s30, s3, 6")
    srd(w, rWS_, pWS, WSZ)
    if E:
        nn = w.lab("nn")
        a(f"s_lshl_b32 s59, s2, 1\ns_add_u32 s59, s59, s30\ns_cmp_lg_u32 s59, 0\ns_cbranch_scc1 {nn}")
        srd(w, 36, pDBG, 256)
        a(f"""v_mov_b32 v7, 0
s_mov_b64 exec, 1
buffer_load_dword v15, v7, s[{rWS_}:{rWS_+3}], 0 offen sc1
v_mov_b32 v14, 1
s_waitcnt vmcnt(0)
v_add_u32 v15, 1, v15
buffer_store_dwordx2 v[14:15], v7, s[36:39], 0 offen sc1
buffer_store_dword v15, v7, s[{rWS_}:{rWS_+3}], 0 offen sc1
s_mov_b64 exec, -1
{nn}:""")
    def pf(rs, sbase, stride, nrows, lines, lstep):
        lg = max(nrows-1, 0).bit_length(); per = 64 >> lg
        a(f"""v_and_b32 v2, {(1 << lg)-1}, v0
v_lshrrev_b32 v3, {lg}, v0
v_mul_u32_u24 v4, {stride}, v2
v_mul_u32_u24 v5, {lstep}, v3
v_add_u32 v4, v4, v5
v_mov_b32 v6, {OOB}
v_cmp_gt_u32 vcc, {nrows}, v2
v_cndmask_b32 v4, v6, v4, vcc""")
        if lines < per: a(f"v_cmp_gt_u32 vcc, {lines}, v3\nv_cndmask_b32 v4, v6, v4, vcc")
        a(f"s_mul_i32 s59, s{sG}, {nrows*stride}")
        if sbase is not None: a(f"s_add_u32 s59, s59, {sbase}")
        for l0 in range(0, lines, per):
            a(f"buffer_load_dword v{40 + pf.n}, v4, s[{rs}:{rs+3}], s59 offen"); pf.n += 1
            if l0 + per < lines: a(f"s_add_u32 s59, s59, {per*lstep}")
    pf.n = 0
    def pfc(rs, nlines):
        a(f"v_lshlrev_b32 v4, 7, v0\ns_mul_i32 s59, s{sG}, {nlines*128}")
        for l0 in range(0, nlines, 64):
            if nlines - l0 < 64: a(f"v_mov_b32 v6, {OOB}\nv_cmp_gt_u32 vcc, {nlines-l0}, v0\nv_cndmask_b32 v4, v6, v4, vcc")
            a(f"buffer_load_dword v{40 + pf.n}, v4, s[{rs}:{rs+3}], s59 offen"); pf.n += 1
            if l0 + 64 < nlines: a("s_add_u32 s59, s59, 8192")
    p1, pj = w.lab("p1_"), w.lab("pj_")
    w.stamp("start")
    if cfg.pf:
        weight_srds(w, E, False); nr = 448 // G
        a(f"s_cmp_eq_u32 s30, 1\ns_cbranch_scc1 {p1}")
        if E: pf(36, None, 3584, nr, 2, 128); pfc(44, 224*7//G)
        else: pf(36, None, 3584, nr, 4, 128)
        a(f"s_branch {pj}\n{p1}:")
        if E: pf(32, "s48", 2688, nr, 4, 128); pfc(40, 128*7//G)
        else: pfc(40, 256*7//G)
        a(f"{pj}:")
    w.stamp("pfiss")
    if not E:
        fin = w.lab("fin")
        NBAR = len(comp.bars)
        a(f"s_sub_u32 s59, s{sJ}, 2\ns_cmp_gt_u32 s59, 3\ns_cbranch_scc1 {fin}")
        srd(w, 36, pDBG, 256)
        a(f"""s_lshl_b32 s59, s59, 5
s_add_u32 s59, s59, s{sRB}
s_lshl_b32 s59, s59, 1
s_add_u32 s61, s59, s30
s_lshr_b32 s59, s61, 4
s_lshl_b32 s59, s59, 18
s_bfe_u32 s60, s61, 0x10003
s_lshl_b32 s60, s60, 11
s_add_u32 s59, s59, s60
s_and_b32 s60, s61, 7
s_lshl_b32 s60, s60, 7
s_add_u32 s59, s59, s60
s_add_u32 s40, s59, {KVP}""")
        for i in range(1, 8): a(f"s_add_u32 s{40+i}, s{39+i}, 32768")
        a(f"""s_lshl_b32 s60, s61, 7
s_add_u32 s60, s60, {KVF}
s_lshl_b32 s58, s61, 2
s_add_u32 s58, s58, {KVC}
s_and_b32 s57, s61, 12
s_cmp_eq_u32 s57, 12
s_cselect_b32 s57, 0, -1
v_lshrrev_b32 v32, 3, v0
v_lshlrev_b32 v32, 12, v32
v_and_b32 v33, 7, v0
v_lshl_add_u32 v32, v33, 4, v32
v_lshlrev_b32 v13, 4, v0
v_mov_b32 v7, 0
s_mov_b32 s31, 0""")
        def tick_to(n):
            l = w.lab("tk"); a(f"{l}:\ns_barrier\ns_add_u32 s31, s31, 1\ns_cmp_lt_u32 s31, {n}\ns_cbranch_scc1 {l}")
        def tick():
            l = w.lab("tk"); a(f"s_cmp_ge_u32 s31, {NBAR}\ns_cbranch_scc1 {l}\ns_barrier\ns_add_u32 s31, s31, 1\n{l}:")
        b0 = comp.ev["l0"] + cfg.L1D
        assert b0 < NBAR
        tick_to(comp.ev["l0"] + 1)
        a(f"buffer_load_dwordx2 v[14:15], v7, s[36:39], 0 offen sc1")
        if b0 > comp.ev["l0"] + 1: tick_to(b0)
        a("v_and_b32 v12, 0xff, v15")
        w.stamp("l1go")
        lp = w.lab("l1_"); a(f"{lp}:")
        for i in range(8):
            for h in range(2): a(f"buffer_load_dwordx4 {vr(64+8*i+4*h, 4)}, v32, s[{rWS_}:{rWS_+3}], s{40+i} offen offset:{h*1024} sc1")
        tick(); tick()
        a("v_xor_b32 v3, v64, v12\nv_xor_b32 v6, v65, v12")
        for i in range(2, 64, 2):
            a(f"v_xor_b32 v10, v{64+i}, v12\nv_xor_b32 v11, v{65+i}, v12\nv_or3_b32 v3, v3, v10, v11")
            if i % 8 == 6 and i > 8:
                for k in range(8): a(f"v_add_f32 v{64+k}, v{64+k}, v{58+i+k}")
        a("v_or_b32 v3, v3, v6\nv_and_b32 v3, 0xff, v3\nv_cmp_ne_u32 vcc, 0, v3")
        tick()
        w.retry(lp)
        w.stamp("l1ok")
        for k in range(8): a(f"v_add_f32_dpp v{64+k}, v{64+k}, v{64+k} row_ror:8 row_mask:0xf bank_mask:0xf")
        for op in ("v_permlane16_swap_b32", "v_permlane32_swap_b32"):
            for k in range(8): a(f"v_mov_b32 v{72+k}, v{64+k}")
            for k in range(8): a(f"{op} v{64+k}, v{72+k}")
            for k in range(8): a(f"v_add_f32 v{64+k}, v{64+k}, v{72+k}")
        for k in range(4): a(f"v_cvt_pk_bf16_f32 v{64+k}, v{64+2*k}, v{65+2*k}")
        a("v_and_b32 v66, s57, v66\nv_and_b32 v67, s57, v67")
        a(f"s_mov_b64 exec, 0xff\nbuffer_store_dwordx4 v[64:67], v13, s[{rWS_}:{rWS_+3}], s60 offen sc1")
        a("v_add3_u32 v3, v64, v65, v66\nv_add_u32 v3, v3, v67")
        for m in ("quad_perm:[1,0,3,2]", "quad_perm:[2,3,0,1]", "row_half_mirror"): a(f"v_add_u32_dpp v3, v3, v3 {m} row_mask:0xf bank_mask:0xf")
        a(f"v_add_u32 v3, v3, v15\ns_mov_b64 exec, 1\nbuffer_store_dword v3, v7, s[{rWS_}:{rWS_+3}], s58 offen sc1\ns_mov_b64 exec, -1")
        w.stamp("l1st")
        for _ in range(4): tick()
        done = w.lab("done")
        a(f"s_branch {done}\n{fin}:\ns_barrier\n{done}:")
    else: a("s_barrier")
    w.end()
    return w

def build(cfg, verbose=False):
    G = cfg.G; ns = 32 // G; ncg = 8 // ns; lg = lambda n: n.bit_length() - 1
    e = Wave("e", cfg); a = e.a
    a("s_cmp_ge_u32 s2, 256\ns_cbranch_scc1 kernel_exit")
    a("s_load_dwordx16 s[8:23], s[0:1], 0\ns_load_dwordx4 s[24:27], s[0:1], 64\ns_load_dwordx2 s[28:29], s[0:1], 80")
    if cfg.prof or cfg.amp >= 0: a(f"s_memrealtime s[64:65]\ns_mem{'real' if cfg.prof == 2 else ''}time s[100:101]")
    a(f"""v_lshrrev_b32 v1, 6, v0
v_and_b32 v0, 63, v0
v_readfirstlane_b32 s3, v1
s_and_b32 s30, s2, 7
s_lshr_b32 s31, s2, 3
s_and_b32 s{sJ}, s30, {ncg-1}
s_lshl_b32 s{sJ}, s{sJ}, {lg(ns)}
s_and_b32 s{sT}, s31, {ns-1}
s_add_u32 s{sJ}, s{sJ}, s{sT}
s_lshr_b32 s{sG}, s31, {lg(ns)}
s_add_u32 s62, s{sJ}, 1
s_and_b32 s62, s62, 6
s_cmp_lg_u32 s3, 7
s_cbranch_scc1 nocodepf
s_getpc_b64 s[32:33]
codepf_pc:
s_cmp_eq_u32 s62, 0
s_mov_b32 s59, role_M_start-codepf_pc
s_cselect_b32 s59, role_E_start-codepf_pc, s59
s_mov_b32 s34, role_M_end-role_M_start
s_cselect_b32 s34, role_E_end-role_E_start, s34
s_add_u32 s32, s32, s59
s_addc_u32 s33, s33, 0
s_and_b32 s33, s33, 0xffff
s_mov_b32 s35, 0x20000
s_lshl_b32 s59, s{sG}, 7
v_mul_u32_u24 v2, {G*128}, v0
buffer_load_dword v39, v2, s[32:35], s59 offen
nocodepf:
s_lshr_b32 s{sRB}, s30, {lg(ncg)}
s_lshl_b32 s{sRB}, s{sRB}, {lg(G)}
s_add_u32 s{sRB}, s{sRB}, s{sG}
s_mov_b32 s{sSPIN}, {SPINMAX}
s_cmp_ge_u32 s3, 4
s_cbranch_scc1 helpers
v_lshrrev_b32 v4, 3, v0
v_and_b32 v5, 7, v0
v_mul_u32_u24 v6, 896, v4
v_lshl_add_u32 v6, v5, 4, v6
s_lshl_b32 s59, s{sRB}, 2
s_add_u32 s59, s59, s3
s_mul_i32 s59, s59, {16*896}
s_add_u32 s60, s59, {8*896}
s_mov_b32 s34, 1835008
s_mov_b32 s35, 0x20000
s_waitcnt lgkmcnt(0)
s_mov_b32 s32, s{pX}
s_and_b32 s33, s{pX+1}, 0xffff""")
    for grp in range(2):
        for i in range(7): a(f"buffer_load_dwordx4 {vr(ACC[0] + 28*grp + 4*i, 4)}, v6, s[{rX}:{rX+3}], s{59+grp} offen offset:{i*128}")
    a(f"""s_lshr_b32 s{sR}, s3, 1
s_and_b32 s{sC}, s3, 1
s_mul_i32 s59, s{sR}, {HALF}
s_lshl_b32 s60, s{sC}, 8
s_add_u32 s59, s59, s60
s_add_u32 s59, s59, {STG}
v_mul_u32_u24 v{vXW}, 528, v5
v_lshl_add_u32 v{vXW}, v4, 4, v{vXW}
v_add_u32 v{vXW}, s59, v{vXW}
s_cmp_eq_u32 s62, 0""")
    if cfg.prof: a("s_mov_b32 s62, s100")
    a("s_cbranch_scc1 comp_E\ns_branch comp_M")
    xl = [x for x in e.ins if x.kind == 'vm_l' and 'x4' in x.op]
    nr = 448 // G; lgr = max(nr-1, 0).bit_length()
    a(f"""helpers:
s_mul_i32 s59, s{sJ}, 56
s_lshr_b32 s59, s59, 6
s_min_u32 s59, s59, 5
s_lshl_b32 s59, s59, 7
s_mul_i32 s60, s{sG}, {nr*2688}
s_add_u32 s59, s59, s60
s_sub_u32 s60, s3, 3
s_mul_i32 s60, s60, 896
s_add_u32 s59, s59, s60
v_and_b32 v2, {(1 << lgr)-1}, v0
v_min_u32 v2, {nr-1}, v2
v_mul_u32_u24 v2, 2688, v2
v_bfe_u32 v3, v0, {lgr}, 1
v_lshl_add_u32 v2, v3, 7, v2
s_waitcnt lgkmcnt(0)""")
    srd(e, 32, pQKV, 1204224)
    a("s_cmp_ge_u32 s3, 6\ns_cbranch_scc1 protos")
    if cfg.pf:
        a("buffer_load_dword v38, v2, s[32:35], s59 offen")
        if lgr == 6: a("buffer_load_dword v37, v2, s[32:35], s59 offen offset:128")
    pm = "s_mov_b32 s62, s100\n" if cfg.prof else ""
    a(f"s_cmp_eq_u32 s62, 0\n{pm}s_cbranch_scc1 load_E\ns_branch load_M\nprotos:\ns_cmp_eq_u32 s62, 0\n{pm}s_cbranch_scc1 proto_E\ns_branch proto_M")
    info = {}; texts = {}
    for role in 'ME':
        c = Compute(role, cfg); c.ins = list(xl); npre = len(c.ins)
        c.build()
        st = []; m, o = c.finish(st); texts['c' + role] = (m[npre:], o); info['c' + role] = c.stamps
        if verbose:
            print(role, "compute instrs", len(m), "nops", len(st), sum(p for p, _ in st), "barriers", len(c.bars), "est", int(sum(b['t'] for b in c.bars)), file=sys.stderr)
            if verbose > 1: print(" ".join(f"{int(b['t'])}:{b['need']}/{i}" for b, i in zip(c.bars, c.iss)), file=sys.stderr)
        for k, wv in (('l', build_loader(role, cfg, c)), ('p', build_proto(role, cfg, c))):
            texts[k + role] = wv.finish(); info[k + role] = wv.stamps
    out = e.finish()[0]
    lab = {'cM': 'comp_M', 'cE': 'comp_E', 'lM': 'load_M', 'lE': 'load_E', 'pM': 'proto_M', 'pE': 'proto_E'}
    def sect(k): return [".p2align 6", lab[k] + ":"] + texts[k][0] + texts[k][1]
    out += ["kernel_exit:", "s_endpgm", ".p2align 7", "role_M_start:"] + sect('pM') + sect('lM') + sect('cM') + ["role_M_end:", ".p2align 7", "role_E_start:"] \
        + sect('pE') + sect('lE') + sect('cE') + ["role_E_end:"]
    head = f"""; fused LayerNorm + linear attention + squared-ReLU FFN, one launch of 256 workgroups x 8 waves (generated by my own script)
; @launch grid=(256,1,1) block=(512,1,1) lds=163840
.amdgcn_target "amdgcn-amd-amdhsa--gfx950"
.text
.globl {NAME}
.p2align 8
.type {NAME},@function
{NAME}:
"""
    tail = f"""
.section .rodata,"a"
.p2align 6
.amdhsa_kernel {NAME}
  .amdhsa_next_free_vgpr 256
  .amdhsa_next_free_sgpr 102
  .amdhsa_accum_offset 256
  .amdhsa_group_segment_fixed_size 0
  .amdhsa_kernarg_size 88
  .amdhsa_user_sgpr_count 2
  .amdhsa_user_sgpr_kernarg_segment_ptr 1
  .amdhsa_system_sgpr_workgroup_id_x 1
.end_amdhsa_kernel
"""
    return head + "\n".join(out) + tail, info

if __name__ == "__main__":
    import json
    kw = {}
    for x in sys.argv[2:]:
        k, v = x.split("="); kw[k] = int(v)
    t, info = build(Cfg(**kw), 2)
    open(sys.argv[1], "w").write(t)
    json.dump(dict(info=info, G=Cfg(**kw).G, spin=SPINMAX), open(sys.argv[1] + ".json", "w"))
```

```python
import sys, struct, re
sys.path.insert(0, 'work')
from dsl import *
NAME = "parallel_sum__linear_attn_block__dense_activation_squared_relu__prompt_kernel"
f2h = lambda f: hex(struct.unpack("<I", struct.pack("<f", f))[0])
OOB = 0x80000000
STG, HALF, RING, NSLOT = 4096, 30720, 65536, 24
HOFF, OOFF = 0, 16384
KVP, KVF, NT0, XP, PROF, WSZ = 1 << 20, 5 << 20, (5 << 20) + 65536, 6 << 20, 32 << 20, 64 << 20
MSG = 2048
NT1 = NT0 + 16384
XFL = 22 << 20
KVB = 8192
sNON = 14
sJ, sRB, sG, sT = 4, 5, 6, 7
pX, pQKV, pWO, pW1, pB1, pW2, pB2, pOUT, pDBG, pWS = 8, 10, 12, 16, 18, 20, 22, 24, 26, 28
sSPIN = 63
SPINMAX = 1 << 12

class Cfg:
    G = 16; JN = 3; BASE_N = 3; SP = 5; TAILE = 12; G1 = 1; MP = -1; MPE = -1; LAGM = 3; LAGE = 7; DTE = 2700; STM = 850; STE = 650; WOG = 1; FREE = 1; RCAP = 7; TAILM = 0; XS = 1; PE2 = 2; INITE = 11; L2T = 5; XROT = 0; dbgst = 0; noL1 = 0; spin = 30000; D = 4; NB = 5; CH = 4; LA = 7; FILL = 2; prof = 0
    pf = 1; amp = -1; ampk = 10; L1D = 5; L1N = 0; A2 = 3; L2N = 1; TOUCH = 1; GT = 73; INIT = 11; W2 = 1; QFILL = 4
    def __init__(self, **kw):
        for k, v in kw.items():
            assert hasattr(Cfg, k), k
            setattr(self, k, v)

def srd(w, d, p, nbytes, off=None):
    if off is None:
        w.a(f"s_mov_b32 s{d}, s{p}\ns_and_b32 s{d+1}, s{p+1}, 0xffff\ns_mov_b32 s{d+2}, {nbytes}")
    else:
        w.a(f"s_add_u32 s{d}, s{p}, s{off}\ns_addc_u32 s{d+1}, s{p+1}, 0\ns_and_b32 s{d+1}, s{d+1}, 0xffff\ns_sub_u32 s{d+2}, {nbytes}, s{off}")
    w.a(f"s_mov_b32 s{d+3}, 0x20000")

class Wave(W):
    def __init__(self, name, cfg):
        super().__init__(name); self.cfg = cfg; self.stamps = []
    def stamp(self, label):
        if self.cfg.prof and len(self.stamps) < 17 and label not in ("hw", "setup"):
            k = 66 + 2*len(self.stamps); self.stamps.append(label); self.a(f"s_mem{'real' if self.cfg.prof == 2 else ''}time s[{k}:{k+1}]")
    def retry(self, label):
        x = self.lab("giveup")
        self.a(f"s_cbranch_vccz {x}\ns_sub_u32 s{sSPIN}, s{sSPIN}, 1\ns_cmp_gt_i32 s{sSPIN}, 0\ns_cbranch_scc1 {label}\n{x}:")
    def wsum(self, v):
        L = [f"v_add_u32_dpp v{v}, v{v}, v{v} row_ror:{k} row_mask:0xf bank_mask:0xf" for k in (8, 4, 2, 1)]
        L += [f"v_add_u32_dpp v{v}, v{v}, v{v} row_bcast:15 row_mask:0xa bank_mask:0xf", f"v_add_u32_dpp v{v}, v{v}, v{v} row_bcast:31 row_mask:0xc bank_mask:0xf"]
        return L
    def end(self):
        if self.cfg.prof:
            self.a("s_memrealtime s[100:101]\ns_waitcnt vmcnt(0) lgkmcnt(0)")
            srd(self, 32, pWS, WSZ)
            self.a(f"s_lshl_b32 s{sT}, s2, 3\ns_add_u32 s{sT}, s{sT}, s3\ns_lshl_b32 s{sT}, s{sT}, 7\ns_add_u32 s{sT}, s{sT}, {PROF}")
            self.a("v_mov_b32 v1, 0\ns_mov_b64 exec, 1")
            vals = [64, 100, 62, sSPIN] + [66 + 2*i for i in range(len(self.stamps))]
            for i, s in enumerate(vals):
                self.a(f"v_mov_b32 v2, s{s}\nbuffer_store_dword v2, v1, s[32:35], s{sT} offen offset:{4*i}")
        if self.cfg.amp >= 0 and self.name[0] == 'g':
            x = self.lab("amp")
            self.a(f"""s_waitcnt vmcnt(0)
s_cmp_lg_u32 s2, {self.cfg.amp}
s_cbranch_scc1 {x}e
s_memrealtime s[66:67]
s_waitcnt lgkmcnt(0)
s_sub_u32 s68, s66, s64
s_min_u32 s68, s68, 20000
s_mul_i32 s68, s68, {self.cfg.ampk}
{x}:
s_memrealtime s[70:71]
s_waitcnt lgkmcnt(0)
s_sub_u32 s69, s70, s66
s_cmp_lt_u32 s69, s68
s_cbranch_scc1 {x}
{x}e:""")
        self.a("s_endpgm")

def chunk_order(w, cfg, dst, mul, E):
    w.a(f"s_add_u32 s{sT}, s{sJ}, 1\ns_cmp_gt_u32 s{sJ}, {cfg.JN}\ns_cselect_b32 s{sT}, s{sJ}, s{sT}")
    w.a(f"s_cmp_eq_u32 s{sJ}, {cfg.JN}\ns_cselect_b32 s{sT}, {cfg.BASE_N}, s{sT}")
    if E:
        assert 1 <= cfg.JN <= 6
        w.a(f"s_cmp_eq_u32 s{sJ}, 0")
        for t in range(7): w.a(f"s_mov_b32 s{dst+t}, {t*mul}\ns_cselect_b32 s{dst+t}, {(6-t)*mul}, s{dst+t}")
        return
    for t in range(7):
        w.a(f"s_cmp_ge_u32 s{sT}, 7\ns_cselect_b32 s{sT}, 0, s{sT}\ns_mul_i32 s{dst+t}, s{sT}, {mul}")
        if t < 6: w.a(f"s_add_u32 s{sT}, s{sT}, 1")

def chunk_seq(cfg, j):
    if j == 0: return [6-t for t in range(7)]
    if j == 7: return list(range(7))
    b = cfg.BASE_N if j == cfg.JN else (j if j > cfg.JN else j+1)
    return [(b+t) % 7 for t in range(7)]
def slot_table(cfg):
    pos = [[7]*7 for _ in range(8)]
    for c in range(7):
        arr = []
        for j in range(8):
            t = chunk_seq(cfg, j).index(c)
            if t == 6 and j != cfg.JN: continue
            arr.append(((cfg.DTE + cfg.STE*(t+1)) if j in (0, 7) else cfg.STM*max(t, 0.5) + j, j, t))
        assert len(arr) == 7
        for k, (_, j, t) in enumerate(sorted(arr)): pos[j][t] = k
    return pos

def ffn_line0(w, d):
    w.a(f"s_lshl_b32 s{d}, s{sJ}, 2\ns_sub_u32 s{d}, s{d}, 2\ns_max_i32 s{d}, s{d}, 0")

def make_groups(role):
    g = []
    if role == 'M':
        for kb in range(14): g += [('k', kb, 0), ('k', kb, 1), ('v', kb, 0), ('v', kb, 1)]
        for t in range(4): g += [('w1', kb, t) for kb in range(14)]
        g += [('w2', kb, 0) for kb in range(6)] + [('w2', kb, 1) for kb in range(6)]
        g += [('w2', kb, 0) for kb in (6, 7)] + [('w2', kb, 1) for kb in (6, 7)]
        for t in range(2, 7): g += [('w2', kb, t) for kb in range(8)]
    else:
        for kb in range(14): g += [('k', kb, 0), ('v', kb, 0)]
        for t in range(2): g += [('w1', kb, t) for kb in range(14)]
        for kb in range(14): g += [('q', kb, l) for l in range(4)]
        for kb in range(4): g += [('w2', kb, t) for t in range(7)]
        for t in range(7): g += [('wo', kb, t) for kb in range(7)]
    return g

vLANE, vT0, vT1, vT2 = 0, 1, 2, 3
vBA, vBB = 4, 6
vXW, vXR, vFR, vFW = 8, 9, 10, 11
vKVA, vHA, vOA, vPA = 12, 14, 16, 18
vOWA, vOWB = 18, 19
vMSG, vFOFF, vCK, vNON, vHIM, vEM, vTAG, vONES = 20, 21, 22, 23, 24, 25, 26, 27
vQA = 28; vB = 36; T8 = 56
XF = 64; ACC = [176 + 16*i for i in range(5)]
sR, sC, sMSG, sOWN, sL2E, sEPS, sMASK = 30, 31, 48, 55, 56, 57, 58
rX, rWS, rAUX = 32, 36, 40

class Job:
    def __init__(s, acc, act, g, sub, base, wfirst, first=False, span=1, pre=None, fill=None):
        s.acc, s.act, s.g, s.sub, s.base, s.wfirst, s.first, s.span, s.pre, s.fill = acc, act, g, sub, base, wfirst, first, span, pre or [], fill
class Code:
    def __init__(s, fn, fence=True): s.fn, s.fence = fn, fence
class Fill:
    def __init__(s, items, delay=2): s.items, s.delay = items, delay
class Flush: pass
SKIP = "SKIP"

def est_time(ins):
    t = 0; mf = 0; st = 0
    for x in ins:
        if x.kind in ('label', 'comment'): continue
        if x.kind == 'mfma': t = max(t, mf); mf = t + 34; t += 10
        elif x.kind == 'ds_w': t += 70 if '128' in x.op else 35
        elif x.kind == 'vm_s': t += 12; st += 31*4 if x.wide else 12
        elif x.kind == 'vm_l': t += 12; st += 18*4
        elif x.kind == 'ds_r': t += 7
        elif x.note == 'trans': t += 8
        else: t += 4.6
    return t, st

class Compute(Wave):
    def __init__(self, role, cfg):
        super().__init__("c" + role, cfg); self.role = role; self.groups = make_groups(role)
        self.gi = {g: i for i, g in enumerate(self.groups)}
        self.bars = []; self.ev = {}; self.done = -1; self.acq = 0
        extra = {}
        if role == 'E' and cfg.XS:
            g0 = self.gi[('wo', 0, 0)] + NSLOT
            for i in range(8): extra[g0 + i] = (STG + (i & 1)*HALF + (i >> 1)*4096, "kvb" if i < 4 else "o")
        self.addr = []; self.avail = []; main = []
        for g in range(len(self.groups)):
            if g in extra: self.addr.append(extra[g][0]); self.avail.append(extra[g][1])
            else:
                self.addr.append(RING + (len(main) % NSLOT)*4096); self.avail.append(main[-NSLOT] if len(main) >= NSLOT else -1); main.append(g)
    def barrier(self, need=None, name=None, long=False):
        if need is not None: self.acq = need
        n = 0
        while n < len(self.groups) and self.lastuse[n] <= self.done: n += 1
        self.bars.append(dict(pos=len(self.ins), need=self.acq, nrel=n, long=long))
        self.a("s_barrier")
        if name: self.ev[name] = len(self.bars)
    def emit_fill(self, it):
        if callable(it): it()
        elif it != SKIP: self.a(it)
    def run(self, items):
        cfg = self.cfg; jobs = [x for x in items if isinstance(x, Job)]; N = len(self.groups)
        for n, j in enumerate(jobs): j.n = n
        self.lastuse = {}
        for j in jobs:
            for g in range(j.g, j.g + j.span): self.lastuse[g] = j.n
        lim = {}; cur = len(jobs); nxt = len(jobs)
        for x in reversed(items):
            if isinstance(x, Job): lim[x.n] = cur; nxt = x.n
            elif isinstance(x, Code) and x.fence: cur = nxt
        st = dict(rd=0); fq = []
        self.nextneed = lambda: min(N, max(self.acq, jobs[st['rd']].g + jobs[st['rd']].span - 1 + cfg.CH)) if st['rd'] < len(jobs) else N
        def reads(n):
            j = jobs[n]
            if j.g + j.span > self.acq:
                nd = max(j.g + j.span, self.acq + cfg.CH)
                self.barrier(N if nd > N - (cfg.TAILE if self.role == 'E' else cfg.TAILM) else nd)
            for p in j.pre: self.emit_fill(p)
            ad = self.addr[j.g]; base = (vKVA, j.base, j.base + 1)[ad >> 16]; imm = (ad & 0xffff) + j.sub*2048
            b = vB + 4*(n % cfg.NB)
            self.a(f"ds_read_b64_tr_b16 {vr(b, 2)}, v{base} offset:{imm}\nds_read_b64_tr_b16 {vr(b+2, 2)}, v{base} offset:{imm+256}")
            st['rd'] = n + 1
        def operands(j): return vset(vB + 4*(j.n % cfg.NB), 4) | vset(j.act, 4)
        for x in items:
            if isinstance(x, Job):
                if st['rd'] <= x.n:
                    while st['rd'] < min(x.n + cfg.D, lim[x.n]): reads(st['rd'])
                b = vr(vB + 4*(x.n % cfg.NB), 4); act = vr(x.act, 4); acc = vr(x.acc, 16)
                A, B = (b, act) if x.wfirst else (act, b)
                self.a(f"v_mfma_f32_32x32x16_bf16 {acc}, {A}, {B}, {'0' if x.first else acc}")
                self.done = x.n
                if st['rd'] < min(x.n + 1 + cfg.D, lim[x.n]): reads(st['rd'])
                if cfg.W2:
                    if x.n % 2 == 0:
                        s = set()
                        for k in (x.n+1, x.n+2):
                            if k < st['rd']: s |= operands(jobs[k])
                        self.need(s)
                elif x.n + 1 < st['rd']: self.need(operands(jobs[x.n + 1]))
                bud = x.fill or cfg.FILL
                while fq and bud > 0 and fq[0][0] <= x.n:
                    it = fq.pop(0)[1]; self.emit_fill(it)
                    if it == SKIP: break
                    bud -= 2 if (isinstance(it, str) and it.startswith(TRANS)) else 1
            elif isinstance(x, Fill): fq += [(self.done + x.delay, it) for it in x.items]
            elif isinstance(x, Flush):
                while fq: self.emit_fill(fq.pop(0)[1])
            else: x.fn()
        assert not fq
    def plan_loader(self):
        cfg = self.cfg; N = len(self.groups); iss = []; cur = 0; credit = 0.0
        for k, b in enumerate(self.bars):
            free = cur
            while free < N and (self.ev[self.avail[free]] <= k if isinstance(self.avail[free], str) else self.avail[free] < (self.bars[k-1]['nrel'] if k else 0)): free += 1
            t, st = est_time(self.ins[(self.bars[k-1]['pos'] if k else 0):b['pos']])
            b['t'] = t
            if self.role == 'E' and cfg.WOG and k >= self.ev['o']: st = 0
            credit += (t - st)/cfg.GT
            want = cur + int(credit) if not b['long'] else N
            if k == 0: want = cfg.INITE if self.role == 'E' else cfg.INIT
            new = min(max(want, b['need'] + cfg.LA, cur), free, N)
            assert new >= b['need'], (self.role, k, new, b)
            credit = min(max(credit - (new - cur), 0.0), 0.99)
            cur = new; iss.append(cur)
        self.iss = iss; self.kN = iss.index(N)

    def tile_addr(self, dst, col):
        self.a(f"""v_lshrrev_b32 v{vT0}, 6, v{col}
v_lshl_add_u32 v{dst}, v{vT0}, 12, v{vT1}
v_bfe_u32 v{vT0}, v{col}, 5, 1
v_lshl_add_u32 v{dst}, v{vT0}, 9, v{dst}
v_and_b32 v{vT0}, 31, v{col}
v_lshl_add_u32 v{dst}, v{vT0}, 1, v{dst}
v_add_u32 v{dst+1}, 0x10000, v{dst}""")
    def head_addr(self, dst, soff, width):
        c = vB
        self.a(f"""v_add_u32 v{c}, s{soff}, v{vT2}
v_subrev_u32 v{c+1}, 32, v{c}
v_cmp_le_u32 vcc, {width}, v{c}
v_cndmask_b32 v{c}, v{c}, v{c+1}, vcc""")
        self.tile_addr(dst, c)
    def setup(self):
        a = self.a; cfg = self.cfg; E = self.role == 'E'; c = vB
        a(f"s_mov_b32 s{sL2E}, 0x3fb8aa3b\ns_mov_b32 s{sEPS}, 0x358637bd")
        srd(self, rWS, pWS, WSZ)
        a(f"""v_lshrrev_b32 v{vT0}, 5, v{vLANE}
v_lshlrev_b32 v{vT1}, 10, v{vT0}
v_bfe_u32 v{vT0}, v{vLANE}, 2, 2
v_lshl_add_u32 v{vT1}, v{vT0}, 6, v{vT1}
v_add_u32 v{vT1}, {RING}, v{vT1}
v_bfe_u32 v{vT0}, v{vLANE}, 4, 1
v_and_b32 v{vT2}, 3, v{vLANE}
v_lshl_add_u32 v{vT2}, v{vT0}, 2, v{vT2}
v_lshlrev_b32 v{vT2}, 2, v{vT2}""")
        a(f"s_mul_i32 s59, s{sJ}, 56\ns_and_b32 s59, s59, 63\ns_mul_i32 s60, s{sC}, 28\ns_add_u32 s59, s59, s60")
        self.head_addr(vKVA, 59, 64 if E else 128)
        if E:
            a(f"s_and_b32 s59, s{sJ}, 1\ns_lshl_b32 s59, s59, 5\ns_mul_i32 s60, s{sC}, 112\ns_add_u32 s59, s59, s60")
            for hh in range(4):
                self.head_addr(vQA + 2*hh, 59, 256)
                if hh < 3: a("s_add_u32 s59, s59, 28")
        a(f"s_lshl_b32 s59, s{sC}, 5")
        a(f"""v_and_b32 v{c}, 16, v{vLANE}
v_and_b32 v{c+1}, 1, v{vLANE}
v_lshl_add_u32 v{c}, v{c+1}, 3, v{c}
v_bfe_u32 v{c+1}, v{vLANE}, 1, 1
v_lshl_add_u32 v{c}, v{c+1}, 2, v{c}
v_add_u32 v{c}, s59, v{c}""")
        self.tile_addr(vHA, c)
        a(f"""v_and_b32 v{c}, 1, v{vLANE}
v_lshlrev_b32 v{c}, 4, v{c}
v_bfe_u32 v{c+1}, v{vLANE}, 4, 1
v_lshl_add_u32 v{c}, v{c+1}, 3, v{c}
v_bfe_u32 v{c+1}, v{vLANE}, 1, 1
v_lshl_add_u32 v{c}, v{c+1}, 2, v{c}
v_add_u32 v{c}, s59, v{c}""")
        self.tile_addr(vOA, c)
        if not E:
            a(f"s_lshl_b32 s59, s{sC}, 12\ns_sub_u32 s60, 4096, s59")
            for k in range(2): a(f"v_add_u32 v{vPA+k}, s60, v{vOA+k}\nv_add_u32 v{vOA+k}, s59, v{vOA+k}")
        a(f"""v_lshlrev_b32 v{vMSG}, 4, v{vLANE}
s_mul_i32 s59, s{sR}, {HALF}
s_add_u32 s59, s59, {STG}
v_add_u32 v{vFR}, s59, v{vMSG}
s_lshl_b32 s60, s{sC}, 11
v_add_u32 v{vFW}, s60, v{vFR}
v_lshrrev_b32 v{vT0}, 5, v{vLANE}
v_and_b32 v{vT1}, 31, v{vLANE}
v_lshl_add_u32 v{vT2}, v{vT1}, 4, s59
v_mul_u32_u24 v{vXR}, 528, v{vT0}
v_add_u32 v{vXR}, v{vXR}, v{vT2}
v_add_u32 v{vHIM}, -1, v{vT0}
v_subrev_u32 v{vEM}, 28, v{vT1}
v_ashrrev_i32 v{vEM}, 31, v{vEM}
v_mov_b32 v{vONES}, 0x3f803f80
v_subrev_u32 v{vFOFF}, 63, v{vLANE}
v_and_b32 v{vFOFF}, {OOB}, v{vFOFF}""")
        if E:
            a(f"""s_mul_i32 s60, s{sC}, 7168
v_add_u32 v{vOWA}, s60, v{vT2}
v_mul_u32_u24 v{vOWB}, 504, v{vT0}
v_add_u32 v{vOWB}, v{vOWB}, v{vOWA}
v_lshl_add_u32 v{vOWA}, v{vT0}, 3, v{vOWA}""")
        else:
            a(f"s_sub_u32 s60, 2048, s60\nv_add_u32 v{vFR}, s60, v{vFR}")
        chunk_order(self, cfg, sMSG, 32*MSG, E)
        a(f"s_mul_i32 s59, s{sRB}, {7*32*MSG}\ns_mul_i32 s60, s3, {MSG}\ns_add_u32 s59, s59, s60\ns_add_u32 s61, s59, {XP}")
        tab = [sum(p << (4*t) for t, p in enumerate(r)) for r in slot_table(cfg)]
        js = (0, 7) if E else range(1, 7)
        a(f"s_mov_b32 s60, {tab[js[0]]}")
        for jj in js[1:]: a(f"s_cmp_eq_u32 s{sJ}, {jj}\ns_cselect_b32 s60, {tab[jj]}, s60")
        for t in range(7): a(f"s_bfe_u32 s59, s60, {hex(0x30000 + 4*t)}\ns_lshl_b32 s59, s59, 13\ns_add_u32 s59, s59, s61\ns_add_u32 s{sMSG+t}, s{sMSG+t}, s59")
        a(f"s_lshl_b32 s59, s3, 14\ns_add_u32 s59, s59, {XFL - (XP >> 10)}\nv_or_b32 v{vFOFF}, s59, v{vFOFF}")
        ffn_line0(self, 60)
        a(f"s_lshl_b32 s59, s60, 7\ns_lshl_b32 s60, s{sC}, 6\ns_add_u32 s59, s59, s60"); srd(self, rAUX, pB1, 3584, 59)
        a(f"""v_and_b32 v{c}, 19, v{vLANE}
v_bfe_u32 v{c+1}, v{vLANE}, 2, 1
v_lshl_add_u32 v{c}, v{c+1}, 3, v{c}
v_bfe_u32 v{c+1}, v{vLANE}, 3, 1
v_lshl_add_u32 v{c}, v{c+1}, 2, v{c}
v_lshrrev_b32 v{c+1}, 5, v{vLANE}
v_lshlrev_b32 v{c+1}, 31, v{c+1}
v_lshl_add_u32 v{c}, v{c}, 1, v{c+1}""")
        for i in range(7): a(f"buffer_load_dwordx4 {vr(ACC[0] + 28 + 4*i, 4)}, v{vBB}, s[{rX}:{rX+3}], s15 offen offset:{i*128}")
        a("s_barrier")
        a(f"""s_lshl_b32 s59, s{sJ}, 1
s_add_u32 s59, s59, s{sC}
s_lshl_b32 s59, s59, 5
s_add_u32 s59, s59, s{sRB}
s_lshl_b32 s59, s59, 1
s_add_u32 s59, s59, s{sR}
s_lshr_b32 s60, s59, 4
s_mul_i32 s60, s60, 112
s_add_u32 s60, s60, s59
s_add_u32 s60, s60, {NT0}
s_lshl_b32 s59, s59, 11
s_add_u32 s59, s59, {KVP}""")
    def layernorm(self):
        a = self.a; T = ACC[0] + 56
        a(f"s_mov_b32 s{sMASK}, 0xffff0000")
        for grp in range(2):
            X = ACC[0] + 28*grp; s1, s2 = T, T+1
            a(f"v_mov_b32 v{s1}, 0\nv_mov_b32 v{s2}, 0")
            for i in range(28): a(f"v_dot2c_f32_bf16 v{s1}, v{X+i}, v{vONES}\nv_dot2c_f32_bf16 v{s2}, v{X+i}, v{X+i}")
            if grp == 1:
                self.stamp("x1")
                a(f"v_add_u32 v{vXW}, s44, v{vXW}")
                for t in range(2 if self.role == 'E' else 4): a(f"buffer_load_ushort v{T8+t}, v{vB}, s[{rAUX}:{rAUX+3}], 0 offen offset:{t*128}")
            else:
                self.stamp("x0")
                a(f"s_waitcnt lgkmcnt(0)\ns_add_u32 s{sNON}, s{sNON}, 1\nv_mov_b32 v{vNON}, s{sNON}\nv_and_b32 v{vTAG}, 0xffff, v{vNON}")
            for m in ("quad_perm:[1,0,3,2]", "quad_perm:[2,3,0,1]", "row_half_mirror"):
                for s in (s1, s2): a(f"v_add_f32_dpp v{s}, v{s}, v{s} {m} row_mask:0xf bank_mask:0xf")
            a(f"""v_mul_f32 v{s1}, {f2h(1/448)}, v{s1}
v_mul_f32 v{s2}, {f2h(1/448)}, v{s2}
v_fma_f32 v{s2}, -v{s1}, v{s1}, v{s2}
v_max_f32 v{s2}, 0, v{s2}
v_add_f32 v{s2}, {f2h(1e-5)}, v{s2}
v_rsq_f32 v{T+2}, v{s2}
v_mul_f32 v{T+3}, -v{s1}, v{T+2}""")
            for i0 in range(0, 28, 4):
                t = T + 4
                for k in range(4): a(f"v_lshlrev_b32 v{t+2*k}, 16, v{X+i0+k}\nv_and_b32 v{t+2*k+1}, s{sMASK}, v{X+i0+k}")
                for k in range(4): a(f"v_pk_fma_f32 {vr(t+2*k,2)}, {vr(t+2*k,2)}, {vr(T+2,2)}, {vr(T+2,2)} op_sel:[0,0,1] op_sel_hi:[1,0,1]")
                for k in range(4): a(f"v_cvt_pk_bf16_f32 v{X+i0+k}, v{t+2*k}, v{t+2*k+1}")
                a(f"ds_write_b128 v{vXW}, {vr(X+i0, 4)} offset:{(i0//4)*4224}")
                if grp == 1 and i0//4 == self.cfg.A2: a("s_barrier")
    def bias_init(self, acc, t):
        one = "1.0" if t & 1 else "0x3f80"
        return [f"v_mov_b32 v{vBB + (t >> 1)}, {one}", f"v_mov_b32 v{vBB + 1 - (t >> 1)}, 0", SKIP,
                f"v_mfma_f32_32x32x8bf16_1k {vr(acc, 16)}, {vr(vBA, 2)}, {vr(vBB, 2)}, 0"]
    def phi(self, acc, dst, tmp):
        L = []
        for i0 in range(0, 16, 4):
            r = [acc + i0 + k for k in range(4)]
            L += [f"v_mul_f32 v{tmp+k}, s{sL2E}, v{r[k]}" for k in range(4)]
            for k in range(4): L += [f"v_exp_f32 v{tmp+k}, v{tmp+k} clamp", f"v_max_f32 v{r[k]}, s{sEPS}, v{r[k]}"]
            L += [f"v_add_f32 v{r[k]}, v{r[k]}, v{tmp+k}" for k in range(4)]
            L += [f"v_cvt_pk_bf16_f32 v{dst + i0//2 + k}, v{r[2*k]}, v{r[2*k+1]}" for k in range(2)]
        return L
    def pack(self, acc, dst=None):
        dst = acc if dst is None else dst
        return [f"v_cvt_pk_bf16_f32 v{dst+i}, v{acc+2*i}, v{acc+2*i+1}" for i in range(8)]
    def h_epi(self, acc, dst):
        L = []
        for h in range(2):
            L += [f"v_mul_f32 v{acc+i}, v{acc+i}, abs(v{acc+i})" for i in range(8*h, 8*h+8)]
            L += self.pack(acc, dst)[4*h:4*h+4]
            L += [f"v_pk_max_i16 v{dst+i}, v{dst+i}, 0" for i in range(4*h, 4*h+4)]
        return L
    def h_write(self, src, t):
        for h in range(2): self.a(f"ds_write_b128 v{vFW}, {vr(src+4*h, 4)} offset:{HOFF + (4*t+h)*1024}")
    def send(self, acc, t):
        P = self.pack(acc); L = []
        st = lambda h: f"buffer_store_dwordx4 {vr(acc+4*h, 4)}, v{vMSG}, s[{rWS}:{rWS+3}], s{sMSG+t} offen offset:{1024*h} sc1"
        L += P[:4] + [st(0)] + P[4:]
        L += [f"v_add3_u32 v{vCK}, v{acc}, v{acc+1}, v{acc+2}", f"v_add3_u32 v{vT0}, v{acc+3}, v{acc+4}, v{acc+5}",
              f"v_add3_u32 v{vCK}, v{vCK}, v{acc+6}, v{acc+7}", f"v_add_u32 v{vCK}, v{vCK}, v{vT0}"]
        ws = self.wsum(vCK); sp = self.cfg.SP if t < 5 else 0
        for k, x in enumerate(ws):
            if k == sp: L.append(st(1))
            L += [SKIP, x]
        if sp >= 6: L.append(st(1))
        L += [f"v_add_u32 v{vCK}, v{vCK}, v{vNON}", f"s_lshr_b32 s{sMSG+t}, s{sMSG+t}, 13", f"s_lshl_b32 s{sMSG+t}, s{sMSG+t}, 3",
              f"buffer_store_dwordx2 {vr(vCK, 2)}, v{vFOFF}, s[{rWS}:{rWS+3}], s{sMSG+t} offen sc1"]
        d = self.cfg.dbgst
        if d & 1: L = [x for x in L if not x.startswith("buffer_store_dwordx4")]
        if d & 2: L = [x for x in L if not x.startswith("buffer_store_dwordx2")]
        if d & 4: L = [x.replace(" sc1", "") for x in L]
        if d & 8: L = [x for x in L if x.startswith("buffer") or x == SKIP]
        return L
    def kv_epi(self):
        K, V, Dd = ACC[0], ACC[1], ACC[3]
        L = self.phi(K, K, T8) + self.pack(V) + [f"v_bfi_b32 v{V+i}, v{vEM}, v{V+i}, v{vONES}" for i in range(8)]
        L += [SKIP]
        L += [f"v_mfma_f32_32x32x16_bf16 {vr(Dd,16)}, {vr(K+4*kk,4)}, {vr(V+4*kk,4)}, {vr(Dd,16) if kk else 0}" for kk in range(2)]
        P = self.pack(Dd)
        L2 = P + [f"v_and_b32 v{vT0}, {OOB}, v{vFOFF}", f"v_lshl_or_b32 v{Dd+8}, v{Dd+3}, 16, v{vTAG}", f"v_permlane32_swap_b32 v{Dd+6}, v{Dd+7}",
                  f"v_and_or_b32 v{Dd+7}, v{Dd+3}, s{sMASK}, v{vTAG}", f"v_mov_b32 v{Dd+3}, v{Dd+8}"]
        L2 += [f"buffer_store_dwordx4 {vr(Dd+4*i, 4)}, v{vMSG}, s[{rWS}:{rWS+3}], s59 offen offset:{i*1024} sc1" for i in (1, 0)]
        if self.cfg.L1N: L2 += [f"buffer_store_byte v{vTAG}, v{vT0}, s[{rWS}:{rWS+3}], s60 offen sc1"]
        def mark(): self.ev["l0"] = len(self.bars); self.stamp("l0st")
        return L, L2 + [mark]
    def kv_phase(self, items):
        L = 1 if self.role == 'E' else 2
        for s in range(28):
            kb = s >> 1
            pre = [f"ds_read_b128 {vr(XF+4*s, 4)}, v{vXR} offset:{s*1056}"]
            items.append(Job(ACC[0], XF+4*s, self.gi[('k', kb, 0)], s & 1, vKVA, False, s == 0, L, pre))
            items.append(Job(ACC[1], XF+4*s, self.gi[('v', kb, 0)], s & 1, vKVA, False, s == 0, L))
            if s == 20: items.append(Fill([f"v_lshl_or_b32 v{vBA}, v{T8+1}, 16, v{T8}", f"v_mov_b32 v{vBA+1}, 0" if L == 1 else f"v_lshl_or_b32 v{vBA+1}, v{T8+3}, 16, v{T8+2}", SKIP]
                                          + self.bias_init(ACC[2], 0) + self.bias_init(ACC[4], 1), 0))
        items.append(Flush()); items.append(Code(lambda: self.stamp("kvmm"), False))
    def checksum(self, R, n, fl, cnt):
        a = self.a
        a(f"v_sub_u32 v{vCK}, 0, v{fl}")
        for i in range(0, n, 2): a(f"v_add3_u32 v{vCK}, v{vCK}, v{R+i}, v{R+i+1}")
        for s in self.wsum(vCK): a(s)
        a(f"v_mul_lo_u32 v{vT0}, v{vNON}, {cnt}\nv_add_u32 v{vCK}, v{vCK}, v{vT0}\nv_readlane_b32 s{sT}, v{vCK}, 63")
        a(f"s_cmp_lg_u32 s{sT}, 0\ns_cselect_b64 vcc, -1, 0")
    def finale(self, acc, can_non):
        self.stamp("mmend")
        a = self.a
        a(f"s_lshl_b32 s59, s{sC}, 11\ns_add_u32 s59, s59, {OOFF}\nv_add_u32 v{vT1}, s59, v{vFW}")
        if can_non:
            own, fin = self.lab("own"), self.lab("fin")
            a(f"s_cmp_lg_u32 s{sJ}, {self.cfg.JN}\ns_nop 7\ns_cbranch_scc1 {own}")
            for x in self.send(acc, 6): self.emit_fill(x)
            a(f"s_branch {fin}\n{own}:")
        for i in range(4): a(f"ds_write_b128 v{vT1}, {vr(acc+4*i, 4)} offset:{i*1024}")
        a("s_waitcnt lgkmcnt(0)\ns_barrier")
        if can_non: a(f"{fin}:")
        if self.cfg.prof: a("s_waitcnt vmcnt(0)"); self.stamp("end")
        self.end()

    def build(self):
        a = self.a; cfg = self.cfg; gi = self.gi; it = []
        self.setup(); self.stamp("setup")
        self.layernorm()
        def xbar():
            a("s_waitcnt lgkmcnt(0)"); self.stamp("ln"); self.barrier(cfg.CH, long=True); self.stamp("b0")
        it.append(Code(xbar))
        self.kv_phase(it)
        e1, e2 = self.kv_epi()
        def xchg(long=False):
            a("s_waitcnt lgkmcnt(0)"); self.barrier(self.nextneed(), long=long, name="o")
        if self.role == 'M':
            def epi():
                for x in e1: self.emit_fill(x)
            it.append(Code(epi, False)); it.append(Fill(e2, 3))
            buf = [ACC[2], ACC[4], ACC[2], ACC[4]]; HK = [ACC[0], ACC[0]+8, ACC[1], ACC[1]+8]
            for t in range(4):
                it += [Job(buf[t], XF+4*s, gi[('w1', s >> 1, t)], s & 1, vHA, True, fill=(4 if t == 0 and s < 10 else None)) for s in range(28)]
                it.append(Flush())
                it.append(Fill(self.h_epi(buf[t], HK[t]) + (self.bias_init(buf[t], t+2) if t < 2 else [])))
            it.append(Code(lambda: self.stamp("ffn1"), False))
            ob = lambda t: (ACC[2], ACC[3], ACC[4])[t % 3]
            def J(t, h, kk, own, first=False, pre=None, fill=None):
                return Job(ob(t), (HK[h] if own else XF + 8*h) + 4*kk, gi[('w2', 2*h, t)], kk, vOA if own else vPA, True, first, 2, pre, fill)
            for t in range(2): it += [J(t, h, kk, True, h + kk == 0, fill=3) for h in range(3) for kk in range(2)]
            it.append(Flush())
            def hw():
                self.stamp("hw")
                for t in range(4): self.h_write(HK[t], t)
            it.append(Code(hw, False))
            for t in range(2): it += [J(t, 3, kk, True) for kk in range(2)]
            it.append(Code(xchg)); it.append(Code(lambda: self.stamp("hx"), False))
            rd = lambda h, kk: [f"ds_read_b128 {vr(XF+8*h+4*kk, 4)}, v{vFR} offset:{HOFF + (4*h+kk)*1024}"]
            it += [J(0, h, kk, False, pre=rd(h, kk)) for h in range(4) for kk in range(2)] + [Fill(self.send(ob(0), 0))]
            it += [J(1, h, kk, False, fill=3) for h in range(4) for kk in range(2)] + [Fill(self.send(ob(1), 1))]
            for t in range(2, 7):
                it += [J(t, h, kk, own, h + kk == 0 and own, fill=3 if t == 2 else None) for h in range(4) for own in (True, False) for kk in range(2)] + [Flush()]
                if t < 6: it.append(Fill(self.send(ob(t), t)))
            self.run(it)
            self.finale(ob(6), True)
        else:
            buf = [ACC[2], ACC[4]]
            it.append(Fill(e1 + [SKIP]*3 + e2))
            it += [Job(buf[0], XF+4*s, gi[('w1', s >> 1, 0)], s & 1, vHA, True, fill=3) for s in range(28)]
            it.append(Fill(self.h_epi(buf[0], T8)))
            it += [Job(buf[1], XF+4*s, gi[('w1', s >> 1, 1)], s & 1, vHA, True, fill=3) for s in range(28)] + [Flush()]
            it.append(Fill(self.h_epi(buf[1], buf[1])))
            it.append(Code(lambda: self.stamp("ffn1"), False))
            for s in range(28):
                it += [Job(ACC[hh], XF+4*s, gi[('q', s >> 1, 0)], s & 1, vQA + 2*hh, True, s == 0, 4, fill=1) for hh in range(4)]
                if s == 11: it += [Flush(), Code(lambda: (self.ev.update(hw=len(self.bars)), self.h_write(T8, 0), self.h_write(buf[1], 1)), False)]
            it.append(Code(lambda: self.stamp("q"), False))
            f = []
            for hh in range(4):
                d = ACC[0] + 8*hh
                f += self.phi(ACC[hh], d, T8)
            it.append(Fill(f))
            for s in range(8):
                hb = vQA + 4*(s & 1)
                for t in range(7):
                    pre = [f"ds_read_b128 {vr(hb, 4)}, v{vFR} offset:{HOFF + s*1024}"] if t == 0 else []
                    it.append(Job(XF + 16*t, hb, gi[('w2', s >> 1, t)], s & 1, vOA, True, s == 0, 1, pre, cfg.QFILL))
            def ocalc():
                self.barrier(name="kvb")
                self.stamp("ffn2a")
            it.append(Code(ocalc)); it.append(Flush())
            def ocalc2():
                KB = ACC[2]
                a(f"""s_and_b32 s59, s{sJ}, 1
s_lshl_b32 s59, s59, 1
s_add_u32 s59, s59, s{sC}
s_lshl_b32 s59, s59, 13
s_add_u32 s59, s59, {KVF}
s_add_u32 s60, s59, 4096
v_subrev_u32 v{vKVA}, 0x10000, v{vOA}
s_mul_i32 s61, s{sC}, {HALF}
s_add_u32 s61, s61, {STG + KVB}
v_add_u32 v{vXW}, s61, v{vMSG}
s_mov_b32 s61, 0x07060302""")
                self.stamp("phi")
                self.barrier(name="kvr", long=True)
                self.stamp("kvr")
                for i in range(8): a(f"ds_read_b128 {vr(KB+4*i, 4)}, v{vXW} offset:{i*1024}")
                lp, ck = self.lab("l2_"), self.lab("l2c")
                a(f"{ck}:\nv_mov_b32 v{vT0}, 0")
                for hh in range(4):
                    a(f"v_xor_b32 v{vT1}, v{KB+8*hh+3}, v{vTAG}\nv_xor_b32 v{vT2}, v{KB+8*hh+7}, v{vTAG}\nv_or3_b32 v{vT0}, v{vT0}, v{vT1}, v{vT2}")
                    a(f"v_perm_b32 v{KB+8*hh+3}, v{KB+8*hh+7}, v{KB+8*hh+3}, s61\nv_mov_b32 v{KB+8*hh+7}, 0")
                a(f"v_and_b32 v{vT0}, 0xffff, v{vT0}\nv_cmp_ne_u32 vcc, 0, v{vT0}")
                for hh in range(4): a(f"v_permlane32_swap_b32 v{KB+8*hh+6}, v{KB+8*hh+7}")
                self.retry(lp)
                self.ool += [f"{lp}:"]
                self.ool += [f"buffer_load_dwordx4 {vr(KB+4*i, 4)}, v{vMSG}, s[{rWS}:{rWS+3}], s{59 + (i >> 2)} offen offset:{(i & 3)*1024} sc1" for i in range(8)]
                self.ool += ["s_waitcnt vmcnt(0)", f"s_branch {ck}"]
                self.stamp("kvok")
                nb = [ACC[4], vB, ACC[4], vB]
                def mm(hh):
                    for kk in range(2):
                        a(f"v_mfma_f32_32x32x16_bf16 {vr(nb[hh],16)}, {vr(KB+8*hh+4*kk,4)}, {vr(ACC[0]+8*hh+4*kk,4)}, {vr(nb[hh],16) if kk else 0}")
                def ep(hh):
                    n = nb[hh]
                    a(f"v_mov_b32 v{vT0}, v{n+12}\nv_mov_b32 v{vCK}, v{n+12}\nv_permlane32_swap_b32 v{vT0}, v{vCK}")
                    a(f"v_add_f32 v{vCK}, s{sEPS}, v{vCK}\nv_rcp_f32 v{vCK}, v{vCK}")
                    for i in range(4):
                        for k in range(4): a(f"v_mul_f32 v{n+4*i+k}, v{n+4*i+k}, v{vCK}")
                        for k in range(2): a(self.pack(n)[2*i+k])
                        g0 = 7*hh + 2*i
                        off = OOFF + (g0 >> 2)*1024 + ((g0 >> 1) & 1)*512 + (g0 & 1)*8
                        if i == 3: a("s_mov_b32 exec_hi, 0")
                        a(f"ds_write_b64 v{vOWB if g0 & 1 else vOWA}, {vr(n+2*i, 2)} offset:{off}")
                        if i == 3: a("s_mov_b32 exec_hi, -1")
                mm(0); mm(1); ep(0); mm(2); ep(1); mm(3); ep(2); ep(3)
                xchg(True)
                self.stamp("o")
            it.append(Code(ocalc2))
            for t in range(7):
                for s in range(14):
                    pre = [f"ds_read_b128 {vr(ACC[0]+4*s, 4)}, v{vFR} offset:{OOFF + s*1024}"] if t == 0 else []
                    it.append(Job(XF + 16*t, ACC[0]+4*s, gi[('wo', s >> 1, t)], s & 1, vOA, True, False, 1, pre, 3))
                it.append(Flush())
                if t < 6: it.append(Fill(self.send(XF + 16*t, t)))
            self.run(it)
            self.finale(XF + 96, False)
        self.plan_loader()

def weight_srds(w, E):
    w.a(f"s_mul_i32 s49, s{sJ}, 56\ns_lshr_b32 s49, s49, 6\ns_lshl_b32 s49, s49, 7")
    if E:
        w.a(f"s_and_b32 s48, s{sJ}, 1\ns_mul_i32 s59, s48, {224*896}\ns_mul_i32 s48, s48, 384")
        srd(w, 44, pWO, 401408, 59)
    ffn_line0(w, 60)
    w.a("s_lshl_b32 s59, s60, 7"); srd(w, 36, pW1, 1605632, 59)
    w.a(f"s_mul_i32 s59, s60, {64*896}"); srd(w, 40, pW2, 1605632, 59)

class Pf:
    def __init__(s, w): s.w = w; s.n = 0; s.k = 0
    def regs(s):
        s.k += 1; return 16 + s.k, 56 + s.k
    def ld(s, rs, v, so, off=0):
        if s.w.cfg.pf: s.w.a(f"buffer_load_dword v{42 + s.n}, v{v}, s[{rs}:{rs+3}], s{so} offen offset:{off}"); s.n += 1
    def cols(s, rs, sbase, stride, lines):
        a = s.w.a; nr = 448 // s.w.cfg.G; lg = max(nr-1, 0).bit_length(); per = 64 >> lg; lines //= 2; v, so = s.regs()
        a(f"""v_and_b32 v{v}, {(1 << lg)-1}, v0
v_min_u32 v{v}, {nr-1}, v{v}
v_mul_u32_u24 v{v}, {stride}, v{v}
v_lshrrev_b32 v9, {lg}, v0
v_min_u32 v9, {min(lines, per)-1}, v9
v_lshl_add_u32 v{v}, v9, 7, v{v}
s_mul_i32 s{so}, s{sG}, {nr*stride}
s_mul_i32 s60, s30, {lines*128}
s_add_u32 s{so}, s{so}, s60""")
        if sbase is not None: a(f"s_add_u32 s{so}, s{so}, s{sbase}")
        def go():
            for l0 in range(0, lines, per): s.ld(rs, v, so, l0*128)
        return go
    def rows(s, rs, nrows):
        a = s.w.a; n = -(-nrows*7 // (2*s.w.cfg.G)); v, so = s.regs()
        a(f"v_min_u32 v{v}, {min(n, 64)-1}, v0\nv_lshlrev_b32 v{v}, 7, v{v}\ns_lshl_b32 s{so}, s{sG}, 1\ns_add_u32 s{so}, s{so}, s30\ns_mul_i32 s{so}, s{so}, {n*128}")
        def go():
            s.ld(rs, v, so)
            if n > 64: a(f"s_add_u32 s{so}, s{so}, {(n-64)*128}"); s.ld(rs, v, so)
        return go

gA, gR, gY = 16, 64, 128
vGO, vGB, vGM, vGC, vGT, vGN, vLO, vHI = 36, 37, 39, 32, 33, 34, 35, 15
def gather_stage1(w, cfg):
    a = w.a
    srd(w, 32, pX, 1835008); srd(w, 36, pWS, WSZ)
    a(f"""s_mov_b64 s[0:1], s[{pB2}:{pB2+1}]
s_sub_u32 s57, s3, 4
s_cmp_gt_u32 s{sJ}, {cfg.JN}
s_subb_u32 s58, s{sJ}, 0
s_mul_i32 s61, s{sRB}, 7
s_add_u32 s61, s61, s58
s_lshl_b32 s60, s57, 8
s_add_u32 s60, s60, s61
s_lshl_b32 s60, s60, 6
s_add_u32 s60, s60, {XFL}
s_add_u32 s48, s{pWS}, s60
s_addc_u32 s49, s{pWS+1}, 0
s_waitcnt lgkmcnt(0)
s_mov_b32 s26, s{sNON}
s_load_dwordx16 s[8:23], s[48:49], 0 glc
s_lshl_b32 s61, s61, 5
s_add_u32 s61, s61, s57
s_lshl_b32 s61, s61, 11
s_add_u32 s61, s61, {XP}
s_lshl_b32 s58, s58, 7
s_and_b32 s60, s57, 1
s_lshl_b32 s60, s60, 6
s_add_u32 s58, s58, s60
s_lshr_b32 s27, s57, 1
s_lshl_b32 s60, s{sRB}, 1
s_add_u32 s60, s60, s27
s_mul_i32 s60, s60, {32*896}
s_add_u32 s60, s60, s58
v_and_b32 v{vGO}, 31, v0
v_mul_u32_u24 v{vGO}, 896, v{vGO}
v_lshrrev_b32 v{vGB}, 5, v0
v_lshlrev_b32 v{vGB}, 5, v{vGB}
v_add_u32 v{vGO}, v{vGO}, v{vGB}
v_lshlrev_b32 v{vGM}, 4, v0
s_mul_i32 s27, s27, {HALF - 8192}
s_lshl_b32 s57, s57, 12
s_add_u32 s57, s57, s27
s_add_u32 s57, s57, {STG + OOFF}
v_add_u32 v{vGT}, s57, v{vGM}
v_mov_b32 v{vGN}, s26
s_mov_b32 s27, 0xffff0000""")

def ready_mask(a):
    a("s_mov_b32 s57, 0")
    for i in range(7, -1, -1): a(f"s_cmp_eq_u32 s{9+2*i}, s26\ns_addc_u32 s57, s57, s57")
    a("s_and_b32 s57, s57, s56")
def cksum_total(a):
    a("s_bcnt1_i32_b32 s51, s30\ns_mul_i32 s51, s51, s26")
    for i in range(8): a(f"s_bitcmp1_b32 s30, {i}\ns_cselect_b32 s59, s{8+2*i}, 0\ns_sub_u32 s51, s51, s59")

def gather_stage2(w, cfg):
    a = w.a
    srd(w, 40, 0, 896); srd(w, 44, pOUT, 1835008)
    for h in range(2):
        a(f"buffer_load_dwordx4 {vr(gY+4*h, 4)}, v{vGO}, s[32:35], s60 offen offset:{16*h}")
        a(f"buffer_load_dwordx4 {vr(gY+8+4*h, 4)}, v{vGB}, s[40:43], s58 offen offset:{16*h}")
    a(f"s_load_dwordx16 s[8:23], s[48:49], 0 glc")
    for k in range(7): a(f"s_add_u32 s{50+k}, s61, {k*8192}")
    a(f"v_mov_b32 v{vLO}, 0x3f80\nv_mov_b32 v{vHI}, 1.0\nv_mov_b32 v{vGC}, 0")
    return 4

def build_gather(cfg, role):
    w = Wave("g" + role, cfg); E = role == 'E'; gS, gT = 144, 160
    a = lambda t: w.a(re.sub(r"\bg_", f"g{role}_", t))
    w.stamps = ["-"]*8
    POLL = "s_load_dwordx16 s[8:23], s[48:49], 0 glc"
    def addp(x):
        L = []
        for i in range(8):
            L += [f"v_lshlrev_b32 v{vLO}, 16, v{x+i}", f"v_and_b32 v{vHI}, s27, v{x+i}", f"v_add_f32 v{gA+2*i}, v{gA+2*i}, v{vLO}", f"v_add_f32 v{gA+2*i+1}, v{gA+2*i+1}, v{vHI}"]
        return L
    def addd(x):
        return [f"v_dot2c_f32_bf16 v{gA+k}, v{x+k//2}, v{vHI if k & 1 else vLO}" for k in range(16)]
    lag = cfg.LAGE if E else cfg.LAGM
    ld = lambda k: [f"buffer_load_dwordx4 {vr(gR+8*k+4*h, 4)}, v{vGM}, s[36:39], s{50+k} offen offset:{1024*h} sc1" for h in range(2)]
    def base():
        for i in range(4): a(f"ds_read_b128 {vr(gA+4*i, 4)}, v{vGT} offset:{i*1024}")
        a("s_waitcnt lgkmcnt(0)")
        for x in addd(gY) + addd(gY+8): a(x)
    def process(k):
        if k == 0: a("s_barrier"); w.stamp("gF"); a("g_redo:"); base()
        if k == 6: a("s_waitcnt vmcnt(0)"); w.stamp("gin")
        for q in range(0, 8, 2): a(f"v_add3_u32 v{vGC}, v{vGC}, v{gR+8*k+q}, v{gR+8*k+q+1}")
        L = addd(gR + 8*k)
        if k == 6:
            for x in w.wsum(vGC) + [f"v_readlane_b32 s59, v{vGC}, 63"]:
                a(L.pop(0)); a(L.pop(0)); a(x)
        for x in L: a(x)
    w.ins += [I(f"buffer_load_dwordx4 {vr(gY+4*h, 4)}, v{vGO}, s[32:35], s60 offen") for h in (0, 2, 1, 3)]; w.npre = len(w.ins)
    w.stamp("gstart")
    done = 0
    for k in range(7):
        a(f"s_cmp_lg_u32 s{9+2*k}, s26\ns_cbranch_scc1 g_wait{k}\ng_go{k}:")
        w.ool += re.sub(r"\bg_", f"g{role}_", f"""g_wait{k}:
s_waitcnt lgkmcnt(4)
{POLL}
s_sub_u32 s{sSPIN}, s{sSPIN}, 1
s_cmp_le_i32 s{sSPIN}, 0
s_cbranch_scc1 g_go{k}
s_cmp_lg_u32 s{9+2*k}, s26
s_cbranch_scc1 g_wait{k}
s_branch g_go{k}""").split("\n")
        for x in ld(k): a(x)
        if k == 6:
            w.stamp("gall")
            a("s_mul_i32 s30, s26, 7")
            for i in range(7): a(f"s_sub_u32 s30, s30, s{8+2*i}")
        if k - lag >= 0: process(k - lag); done += 1
    while done < 7: process(done); done += 1
    a("s_add_u32 s59, s59, s30\ns_cmp_lg_u32 s59, 0\ns_cbranch_scc1 g_fail\ng_done:")
    for i in range(8): a(f"v_cvt_pk_bf16_f32 v{gA+i}, v{gA+2*i}, v{gA+2*i+1}")
    for h in range(2): a(f"buffer_store_dwordx4 {vr(gA+4*h, 4)}, v{vGO}, s[44:47], s60 offen offset:{16*h}")
    w.stamp("gst")
    a(f"""s_lshl_b32 s59, s{sRB}, 3
s_add_u32 s59, s59, s{sJ}
s_lshl_b32 s59, s59, 3
s_add_u32 s59, s59, s3
s_cmp_lg_u32 s59, {(1 if cfg.JN != 1 else 2)*8 + 4}
s_cbranch_scc1 g_exit
s_mov_b64 exec, 1
buffer_store_dword v{vGN}, v{vGM}, s[36:39], 0 offen sc1
s_mov_b64 exec, -1
g_exit:""")
    if cfg.prof: a("s_waitcnt vmcnt(0)"); w.stamp("gend")
    w.end()
    a(f"g_fail:\ns_sub_u32 s{sSPIN}, s{sSPIN}, {1000 if cfg.prof else 64}\ns_cmp_le_i32 s{sSPIN}, 0\ns_cbranch_scc1 g_done")
    a(f"s_waitcnt lgkmcnt(0)\n{POLL}\nv_mov_b32 v{vGC}, 0")
    for k in range(7):
        for x in ld(k): a(x)
    a("s_waitcnt vmcnt(0) lgkmcnt(0)\ns_mul_i32 s30, s26, 7")
    for i in range(7): a(f"s_sub_u32 s30, s30, s{8+2*i}")
    a("s_branch g_redo")
    return w

def touch_flags(w, cfg):
    if cfg.TOUCH: w.a(f"""s_cmp_gt_u32 s{sJ}, {cfg.JN}
s_subb_u32 s60, s{sJ}, 0
s_mul_i32 s61, s{sRB}, 7
s_add_u32 s60, s60, s61
s_lshl_b32 s61, s3, 8
s_add_u32 s60, s60, s61
s_lshl_b32 s60, s60, 6
s_add_u32 s60, s60, {XFL - 65536}
s_load_dword s26, s[{pWS}:{pWS+1}], s60 glc""")

def to_gather(w, cfg, E):
    if not E: w.a(f"s_cmp_eq_u32 s{sJ}, {cfg.JN}\ns_cbranch_scc1 gM_exit")
    w.a("s_branch gather_E" if E else "s_branch gather_M")

def build_loader(role, cfg, comp):
    w = Wave("l" + role, cfg); a = w.a; E = role == 'E'
    vo = {2688: 2, 3584: 3, 896: 4}
    weight_srds(w, E); chunk_order(w, cfg, 50, 128, E)
    a(f"""s_sub_u32 s30, s3, 4
s_lshl_b32 s31, s30, 11
s_lshl_b32 s59, s30, 4
v_bfe_u32 v12, v0, 2, 3
v_add_u32 v12, s59, v12
v_lshrrev_b32 v13, 5, v0
v_lshlrev_b32 v13, 6, v13
v_and_b32 v14, 3, v0
v_lshl_add_u32 v13, v14, 4, v13""")
    for st, r in vo.items(): a(f"v_mul_u32_u24 v{r}, {st}, v12\nv_add_u32 v{r}, v{r}, v13")
    nr = 448 // cfg.G; lgr = max(nr-1, 0).bit_length()
    a(f"""v_and_b32 v8, {(1 << lgr)-1}, v0
v_min_u32 v8, {nr-1}, v8
v_mul_u32_u24 v8, 2688, v8
v_bfe_u32 v9, v0, {lgr}, {0 if E else 1}
v_lshl_add_u32 v8, v9, 7, v8
s_mul_i32 s59, s{sG}, {nr*2688}
s_mul_i32 s60, s30, 896
s_add_u32 s59, s59, s60
s_add_u32 s59, s59, s49""")
    def go():
        a("buffer_load_dword v40, v8, s[32:35], s59 offen offset:896")
        if lgr == 6 and not E: a("buffer_load_dword v41, v8, s[32:35], s59 offen offset:1024")
    pf = Pf(w); gos = [pf.cols(36, None, 3584, 2 if E else 4)] + ([pf.cols(32, 48, 2688, 4)] if E else [])
    a(f"s_waitcnt lgkmcnt(0)\ns_add_u32 s{sNON}, s{sNON}, 1")
    touch_flags(w, cfg)
    w.stamp("rdy"); a("s_barrier"); w.stamp("start")
    if cfg.pf: go()
    for x in gos: x()
    if cfg.A2 >= 0: a("s_barrier")
    N = len(comp.groups); g = 0; extra = 0
    for k, b in enumerate(comp.bars):
        while g < comp.iss[k]:
            m, kb, l = comp.groups[g]
            rs, st, base, lit = {'k': (32, 2688, 49, 896 + l*128), 'v': (32, 2688, 49, 1792 + l*128),
                                 'q': (32, 2688, 48, l*128), 'w1': (36, 3584, None, l*128),
                                 'w2': (40, 896, 50 + l, 0), 'wo': (44, 896, 50 + l, 0)}[m]
            for p in range(2):
                o = lit + (kb*32 + p*8)*st
                a(f"s_add_u32 m0, s31, {comp.addr[g] + p*1024}")
                a(f"s_mov_b32 s59, {o}" if base is None else f"s_add_u32 s59, s{base}, {o}")
                a(f"buffer_load_dwordx4 v{vo[st]}, s[{rs}:{rs+3}], s59 offen lds")
            g += 1
            if g in (comp.iss[0], 56, 112, N): w.stamp(f"iss{g}")
        if k == comp.kN + 1 - cfg.G1: gather_stage1(w, cfg)
        a(f"s_waitcnt vmcnt({2*(g - b['need']) + extra})\ns_barrier")
        if k == comp.kN: extra = gather_stage2(w, cfg); w.stamp("g0iss")
    assert comp.bars[-1]['need'] == N
    to_gather(w, cfg, E)
    return w

def build_proto(role, cfg, comp):
    w = Wave("p" + role, cfg); a = w.a; E = role == 'E'
    rWS_ = 52; NBAR = len(comp.bars)
    def tick_to(n):
        l = w.lab("tk"); a(f"{l}:\ns_cmp_ge_u32 s31, {n}\ns_cbranch_scc1 {l}x\ns_barrier\ns_add_u32 s31, s31, 1\ns_branch {l}\n{l}x:")
    def srd_w2():
        ffn_line0(w, 60); a(f"s_mul_i32 s60, s60, {64*896}"); srd(w, 40, pW2, 1605632, 60)
    def poll(start, lim, on):
        a(f"s_add_u32 s48, s{pWS}, s60\ns_addc_u32 s49, s{pWS+1}, 0\ns_and_b32 s50, s{sNON}, 0xff\ns_mul_i32 s50, s50, 0x01010101\ns_mov_b32 s51, s50")
        if cfg.TOUCH and on:
            for i in range(4): a(f"s_load_dword s{sT}, s[48:49], {128*i} glc")
        tick_to(start)
        w.stamp("poll")
        if not on: return
        lp = w.lab("po"); a(f"s_waitcnt lgkmcnt(0)\n{lp}:")
        for i in range(4): a(f"s_load_dwordx4 s[{32+4*i}:{35+4*i}], s[48:49], {128*i} glc")
        l = w.lab("tw")
        a(f"{l}:\ns_cmp_ge_u32 s31, {lim}\ns_cbranch_scc1 {l}x\ns_barrier\ns_add_u32 s31, s31, 1\ns_getreg_b32 s{sT}, hwreg(HW_REG_IB_STS, 8, 4)\ns_cmp_lg_u32 s{sT}, 0\ns_cbranch_scc1 {l}\n{l}x:")
        a("s_waitcnt lgkmcnt(0)\ns_xor_b64 vcc, s[32:33], s[50:51]")
        for i in range(1, 8): a(f"s_xor_b64 s[32:33], s[{32+2*i}:{33+2*i}], s[50:51]\ns_or_b64 vcc, vcc, s[32:33]")
        w.retry(lp)
    def tick(lim):
        l = w.lab("tk"); a(f"s_cmp_ge_u32 s31, {lim}\ns_cbranch_scc1 {l}\ns_barrier\ns_add_u32 s31, s31, 1\n{l}:")
    a("s_sub_u32 s30, s3, 6\ns_mov_b32 s31, 0")
    weight_srds(w, E); srd(w, rWS_, pWS, WSZ)
    pf = Pf(w); gos = [pf.rows(40, 128), pf.rows(44, 224)] if E else [pf.rows(40, 256)]
    a(f"s_waitcnt lgkmcnt(0)\ns_add_u32 s{sNON}, s{sNON}, 1")
    touch_flags(w, cfg); a("s_barrier")
    if cfg.A2 >= 0: a("s_barrier")
    if E:
        tick_to(comp.ev['hw'] - cfg.PE2)
        for x in gos: x()
        a(f"""s_and_b32 s59, s{sJ}, 1
s_lshl_b32 s59, s59, 1
s_add_u32 s59, s59, s30
s_lshl_b32 s60, s59, 9
s_add_u32 s60, s60, {NT1}
s_lshl_b32 s59, s59, 13
s_add_u32 s59, s59, {KVF}
s_mul_i32 s61, s30, {HALF}
s_add_u32 s61, s61, {STG + KVB}
v_lshlrev_b32 v3, 4, v0""")
        lim = comp.ev["kvr"] - 1
        poll(comp.ev["kvr"] - cfg.L2T, lim, cfg.L2N)
        w.stamp("l2go")
        for h in range(2):
            a(f"s_add_u32 m0, s61, {h*4096}\ns_add_u32 s58, s59, {h*4096}")
            for i in range(4): a(f"buffer_load_dwordx4 v3, s[{rWS_}:{rWS_+3}], s58 offen offset:{i*1024} sc1 lds")
        tick_to(lim)
        a("s_waitcnt vmcnt(0)")
        w.stamp("l2in")
    else:
        fin, fin2 = w.lab("fin"), w.lab("fin")
        a(f"""s_sub_u32 s59, s{sJ}, 2
s_cmp_lt_u32 s59, 4
s_cselect_b32 s56, s30, 0
s_cmp_eq_u32 s{sJ}, 1
s_cselect_b32 s59, 0, s{sJ}
s_add_u32 s59, s59, s30
s_lshl_b32 s59, s59, 5
s_add_u32 s61, s59, s{sRB}
s_lshr_b32 s59, s61, 4
s_lshl_b32 s60, s59, 9
s_add_u32 s60, s60, {NT0}
s_mul_i32 s24, s59, 112
s_add_u32 s24, s24, s61
s_add_u32 s24, s24, {NT1}
s_lshl_b32 s59, s59, 17
s_and_b32 s58, s61, 15
s_lshl_b32 s58, s58, 7
s_add_u32 s59, s59, s58
s_add_u32 s59, s59, {KVP}
s_lshl_b32 s61, s61, 7
s_add_u32 s61, s61, {KVF}
v_lshrrev_b32 v20, 3, v0
v_lshlrev_b32 v20, 11, v20
v_and_b32 v33, 7, v0
v_lshl_add_u32 v20, v33, 4, v20
v_lshlrev_b32 v13, 4, v0
s_and_b32 s58, s{sNON}, 0xffff
v_mov_b32 v12, s58
s_mov_b32 s58, 0xffff0000""".replace("s24", "s15"))
        for i in range(1, 8): a(f"v_add_u32 v{20+i}, 16384, v{19+i}")
        poll(comp.ev["l0"] + cfg.L1D, NBAR, cfg.L1N)
        a(f"s_cmp_lg_u32 s56, {7 if cfg.noL1 else 0}\ns_cbranch_scc1 {fin}")
        w.stamp("l1go")
        lp = w.lab("l1_"); a(f"{lp}:")
        for i in range(8): a(f"buffer_load_dwordx4 {vr(64+4*i, 4)}, v{20+i}, s[{rWS_}:{rWS_+3}], s59 offen sc1")
        srd_w2(); tick(NBAR); gos[0]()
        A = 96
        for k in range(3): a(f"v_lshlrev_b32 v{A+k}, 16, v{64+k}")
        for k in range(4): a(f"v_and_b32 v{A+4+k}, s58, v{64+k}")
        a(f"v_mov_b32 v{A+3}, 0\nv_xor_b32 v3, v67, v12")
        for i in range(1, 8):
            R = 64 + 4*i
            a(f"v_xor_b32 v10, v{R+3}, v12\nv_or_b32 v3, v3, v10")
            for k in range(3): a(f"v_lshlrev_b32 v{104+k}, 16, v{R+k}")
            for k in range(4): a(f"v_and_b32 v{R+k}, s58, v{R+k}")
            for k in range(3): a(f"v_add_f32 v{A+k}, v{A+k}, v{104+k}")
            for k in range(4): a(f"v_add_f32 v{A+4+k}, v{A+4+k}, v{R+k}")
        a("v_and_b32 v3, 0xffff, v3\nv_cmp_ne_u32 vcc, 0, v3")
        for k in range(0, 8, 2): a(f"v_permlane16_swap_b32 v{A+k}, v{A+k+1}")
        w.retry(lp)
        w.stamp("l1ok")
        for k in range(0, 8, 2): a(f"v_add_f32 v{A+k}, v{A+k}, v{A+k+1}")
        for k in (0, 4): a(f"v_permlane32_swap_b32 v{A+k}, v{A+k+2}")
        for k in (0, 4): a(f"v_add_f32 v{A+k}, v{A+k}, v{A+k+2}")
        for k in (0, 4): a(f"v_add_f32_dpp v{A+k}, v{A+k}, v{A+k} row_ror:8 row_mask:0xf bank_mask:0xf")
        a(f"""v_cvt_pk_bf16_f32 v64, v{A}, v{A+4}
v_cvt_pk_bf16_f32 v65, v{A}, v{A+4}
v_permlane16_swap_b32 v64, v65
v_mov_b32 v66, v64
v_mov_b32 v67, v65
v_permlane32_swap_b32 v64, v66
v_permlane32_swap_b32 v65, v67
v_and_or_b32 v67, v67, s58, v12
s_mov_b64 exec, 0xff
buffer_store_dwordx4 v[64:67], v13, s[{rWS_}:{rWS_+3}], s61 offen sc1
s_mov_b64 exec, 1
buffer_store_byte v12, v13, s[{rWS_}:{rWS_+3}], s15 offen sc1
s_mov_b64 exec, -1""")
        w.stamp("l1st")
        a(f"s_branch {fin2}\n{fin}:")
        srd_w2(); tick(NBAR); gos[0]()
        a(f"{fin2}:")
    mp = cfg.MPE if E else cfg.MP
    if mp >= 0:
        a(f"s_cmp_eq_u32 s30, 0\ns_cselect_b32 s59, {comp.ev['o'] + mp}, {comp.kN + 1 - cfg.G1}")
        tick_to("s59")
    else: tick_to(comp.kN + 1 - cfg.G1)
    a("s_waitcnt vmcnt(0)")
    gather_stage1(w, cfg)
    if mp >= 0:
        l = w.lab("mp")
        a(f"""s_cmp_lg_u32 s30, 0
s_cbranch_scc1 {l}x
s_cmp_eq_u32 s{sJ}, {cfg.JN}
s_cselect_b32 s56, 0, 0x7f
s_sub_u32 s52, s61, 4096
v_lshlrev_b32 v2, 7, v0
{l}:
s_cmp_ge_u32 s31, {comp.kN}
s_cbranch_scc1 {l}x
s_barrier
s_add_u32 s31, s31, 1""")
        ready_mask(a)
        a(f"""s_cbranch_scc0 {l}n
s_ff1_i32_b32 s59, s57
s_bitset0_b32 s56, s59
s_lshl_b32 s59, s59, 13
s_add_u32 s59, s59, s52
buffer_load_dword v3, v2, s[36:39], s59 offen sc1
{l}n:
s_getreg_b32 s59, hwreg(HW_REG_IB_STS, 8, 4)
s_cmp_gt_u32 s59, 4
s_cbranch_scc1 {l}
s_cmp_ge_u32 s31, {comp.kN - 1}
s_cbranch_scc1 {l}
s_load_dwordx16 s[8:23], s[48:49], 0 glc
s_branch {l}
{l}x:""")
    tick_to(comp.kN + 1)
    gather_stage2(w, cfg); w.stamp("g0iss")
    tick_to(NBAR)
    to_gather(w, cfg, E)
    return w

def build(cfg, verbose=False):
    G = cfg.G; ns = 32 // G; ncg = 8 // ns; lg = lambda n: n.bit_length() - 1
    e = Wave("e", cfg); a = e.a; nr = 448 // G
    a("s_cmp_ge_u32 s2, 256\ns_cbranch_scc1 kernel_exit")
    a("s_load_dwordx16 s[8:23], s[0:1], 0\ns_load_dwordx4 s[24:27], s[0:1], 64\ns_load_dwordx2 s[28:29], s[0:1], 80")
    if cfg.prof or cfg.amp >= 0: a(f"s_memrealtime s[64:65]\ns_mem{'real' if cfg.prof == 2 else ''}time s[100:101]")
    pm = "s_mov_b32 s62, s100\n" if cfg.prof else ""
    a(f"""v_lshrrev_b32 v1, 6, v0
v_and_b32 v0, 63, v0
v_readfirstlane_b32 s3, v1
s_and_b32 s30, s2, 7
s_lshr_b32 s31, s2, 3
s_and_b32 s{sJ}, s30, {ncg-1}
s_lshl_b32 s{sJ}, s{sJ}, {lg(ns)}
s_and_b32 s{sT}, s31, {ns-1}
s_add_u32 s{sJ}, s{sJ}, s{sT}
s_lshr_b32 s{sG}, s31, {lg(ns)}
s_add_u32 s62, s{sJ}, 1
s_and_b32 s62, s62, 6
s_cmp_lg_u32 s3, 7
s_cbranch_scc1 nocodepf
s_getpc_b64 s[32:33]
codepf_pc:
s_cmp_eq_u32 s62, 0
s_mov_b32 s59, role_M_start-codepf_pc
s_cselect_b32 s59, role_E_start-codepf_pc, s59
s_mov_b32 s34, role_M_end-role_M_start
s_cselect_b32 s34, role_E_end-role_E_start, s34
s_add_u32 s32, s32, s59
s_addc_u32 s33, s33, 0
s_and_b32 s33, s33, 0xffff
s_mov_b32 s35, 0x20000
s_lshl_b32 s59, s{sG}, 7
v_mul_u32_u24 v2, {G*128}, v0
buffer_load_dword v39, v2, s[32:35], s59 offen
nocodepf:
s_lshr_b32 s{sRB}, s30, {lg(ncg)}
s_lshl_b32 s{sRB}, s{sRB}, {lg(G)}
s_add_u32 s{sRB}, s{sRB}, s{sG}
s_mov_b32 s{sSPIN}, {cfg.spin}
s_cmp_ge_u32 s3, 4
s_cbranch_scc1 helpers
v_lshrrev_b32 v4, 3, v0
v_and_b32 v5, 7, v0
v_mul_u32_u24 v6, 896, v4
v_lshl_add_u32 v6, v5, 4, v6
s_lshr_b32 s{sR}, s3, 1
s_and_b32 s{sC}, s3, 1
s_and_b32 s45, s{sJ}, {cfg.XROT}
s_lshl_b32 s59, s{sRB}, 2
s_add_u32 s59, s59, s3
s_lshl_b32 s59, s59, 1
s_add_u32 s59, s59, s45
s_xor_b32 s60, s59, 1
s_mul_i32 s59, s59, {8*896}
s_mul_i32 s60, s60, {8*896}
s_mov_b32 s34, 1835008
s_mov_b32 s35, 0x20000
s_waitcnt lgkmcnt(0)
s_mov_b32 s32, s{pX}
s_and_b32 s33, s{pX+1}, 0xffff""")
    for i in range(7): a(f"buffer_load_dwordx4 {vr(ACC[0] + 4*i, 4)}, v6, s[{rX}:{rX+3}], s59 offen offset:{i*128}")
    a(f"""s_load_dword s{sNON}, s[{pWS}:{pWS+1}], 0
s_mov_b32 s15, s60
s_lshl_b32 s44, s45, 8
s_sub_u32 s44, 128, s44
s_mul_i32 s59, s{sR}, {HALF}
s_lshl_b32 s60, s{sC}, 8
s_add_u32 s59, s59, s60
s_lshl_b32 s60, s45, 7
s_add_u32 s59, s59, s60
s_add_u32 s59, s59, {STG}
v_mul_u32_u24 v{vXW}, 528, v5
v_lshl_add_u32 v{vXW}, v4, 4, v{vXW}
v_add_u32 v{vXW}, s59, v{vXW}
s_cmp_eq_u32 s62, 0
{pm}s_cbranch_scc1 comp_E
s_branch comp_M""")
    xl = [x for x in e.ins if x.kind == 'vm_l' and ('v', 39) not in x.wr]
    a(f"helpers:\ns_waitcnt lgkmcnt(0)\ns_load_dword s{sNON}, s[{pWS}:{pWS+1}], 0")
    srd(e, 32, pQKV, 1204224)
    a("s_cmp_ge_u32 s3, 6\ns_cbranch_scc1 protos")
    a(f"s_cmp_eq_u32 s62, 0\n{pm}s_cbranch_scc1 load_E\ns_branch load_M\nprotos:")
    a(f"""s_cmp_eq_u32 s3, 6
s_cselect_b32 s36, s{pB1}, s{pB2}
s_cselect_b32 s37, s{pB1+1}, s{pB2+1}
s_cselect_b32 s38, 28, 7
s_lshl_b32 s38, s38, 7
s_and_b32 s37, s37, 0xffff
s_mov_b32 s39, 0x20000
v_lshlrev_b32 v2, 11, v0
s_lshl_b32 s59, s{sG}, 7
buffer_load_dword v38, v2, s[36:39], s59 offen""")
    a(f"s_cmp_eq_u32 s62, 0\n{pm}s_cbranch_scc1 proto_E\ns_branch proto_M")
    info = {}; texts = {}
    for role in 'ME':
        c = Compute(role, cfg); c.ins = list(xl); npre = len(c.ins)
        c.build()
        st = []; m, o = c.finish(st); texts['c' + role] = (m[npre:], o); info['c' + role] = c.stamps
        if verbose:
            print(role, "compute instrs", len(m), "nops", len(st), sum(p for p, _ in st), "barriers", len(c.bars), "est", int(sum(b['t'] for b in c.bars)), file=sys.stderr)
            if verbose > 1: print(" ".join(f"{int(b['t'])}:{b['need']}/{i}" for b, i in zip(c.bars, c.iss)), file=sys.stderr)
        gw = build_gather(cfg, role); m, o = gw.finish(); texts['g' + role] = (m[gw.npre:], o)
        for k, wv in (('l', build_loader(role, cfg, c)), ('p', build_proto(role, cfg, c))):
            texts[k + role] = wv.finish(); assert len(wv.stamps) <= 8
            info[k + role] = wv.stamps + ['-']*(8-len(wv.stamps)) + gw.stamps[8:] if cfg.prof else []
    out = e.finish()[0]
    lab = {'cM': 'comp_M', 'cE': 'comp_E', 'lM': 'load_M', 'lE': 'load_E', 'pM': 'proto_M', 'pE': 'proto_E', 'gM': 'gather_M', 'gE': 'gather_E'}
    def sect(k): return [".p2align 6", lab[k] + ":"] + texts[k][0] + texts[k][1]
    out += ["kernel_exit:", "s_endpgm", ".p2align 7", "role_M_start:"] + sect('pM') + sect('lM') + sect('cM') + sect('gM') + ["role_M_end:", ".p2align 7", "role_E_start:"] \
        + sect('pE') + sect('lE') + sect('cE') + sect('gE') + ["role_E_end:"]
    head = f"""; fused LayerNorm + linear attention + squared-ReLU FFN, one launch of 256 workgroups x 8 waves (generated by my own script)
; @launch grid=(256,1,1) block=(512,1,1) lds=163840
.amdgcn_target "amdgcn-amd-amdhsa--gfx950"
.text
.globl {NAME}
.p2align 8
.type {NAME},@function
{NAME}:
"""
    tail = f"""
.section .rodata,"a"
.p2align 6
.amdhsa_kernel {NAME}
  .amdhsa_next_free_vgpr 256
  .amdhsa_next_free_sgpr 102
  .amdhsa_accum_offset 256
  .amdhsa_group_segment_fixed_size 0
  .amdhsa_kernarg_size 88
  .amdhsa_user_sgpr_count 2
  .amdhsa_user_sgpr_kernarg_segment_ptr 1
  .amdhsa_system_sgpr_workgroup_id_x 1
.end_amdhsa_kernel
"""
    return head + "\n".join(out) + tail, info

if __name__ == "__main__":
    import json
    kw = {}
    for x in sys.argv[2:]:
        k, v = x.split("="); kw[k] = int(v)
    t, info = build(Cfg(**kw), 2)
    open(sys.argv[1], "w").write(t)
    json.dump(dict(info=info, G=Cfg(**kw).G, spin=Cfg(**kw).spin), open(sys.argv[1] + ".json", "w"))
```

```python
import sys, struct, re
sys.path.insert(0, 'work')
from dsl import *
NAME = "parallel_sum__linear_attn_block__dense_activation_squared_relu__prompt_kernel"
f2h = lambda f: hex(struct.unpack("<I", struct.pack("<f", f))[0])
OOB = 0x80000000
STG, HALF, RING, NSLOT = 4096, 30720, 65536, 24
HOFF, OOFF = 0, 16384
KVP, KVF, NT0, XP, PROF, WSZ = 1 << 20, 5 << 20, (5 << 20) + 65536, 6 << 20, 32 << 20, 64 << 20
MSG = 2048
NT2 = NT0
NT1 = NT0 + 16384
XFL = 22 << 20
KVB = 8192
sNON = 14
sJ, sRB, sG, sT = 4, 5, 6, 7
pX, pQKV, pWO, pW1, pB1, pW2, pB2, pOUT, pDBG, pWS = 8, 10, 12, 16, 18, 20, 22, 24, 26, 28
sSPIN = 63
SPINMAX = 1 << 12

class Cfg:
    G = 16; JN = 3; BASE_N = 3; SP = 5; TAILE = 4; G1 = 1; MP = 2; MPE = 0; DTE = 800; XM = 0; XH = 4; HOLD = 0; HOLD0 = 1; FAST = 5; DTN = 900; JMAP = 0x74652130; W1A = 4; PK = 0; PL = 4; PLD = 1; PHD = 1; QT = 0; WOA = 0; WOT = 6; OSC = ''; FP = 1; KF = 3; PKD = 0; HWS = 11; NREP = 8; STM = 850; STE = 650; WOG = 1; FREE = 0; RCAP = 7; TAILM = 0; XS = 1; PE2 = 1; INITE = 11; L2T = 2; PSL = 0; XROT = 0; dbgst = 0; noL1 = 0; spin = 30000; D = 4; NB = 5; CH = 4; LA = 7; FILL = 2; prof = 0
    pf = 1; amp = -1; ampk = 10; ampl = ''; L1D = 5; L1N = 0; A2 = 3; L2N = 1; TOUCH = 1; GT = 73; INIT = 11; W2 = 1; QFILL = 4
    def __init__(self, **kw):
        for k, v in kw.items():
            assert hasattr(Cfg, k), k
            setattr(self, k, v)

def srd(w, d, p, nbytes, off=None):
    if off is None:
        w.a(f"s_mov_b32 s{d}, s{p}\ns_and_b32 s{d+1}, s{p+1}, 0xffff\ns_mov_b32 s{d+2}, {nbytes}")
    else:
        w.a(f"s_add_u32 s{d}, s{p}, s{off}\ns_addc_u32 s{d+1}, s{p+1}, 0\ns_and_b32 s{d+1}, s{d+1}, 0xffff\ns_sub_u32 s{d+2}, {nbytes}, s{off}")
    w.a(f"s_mov_b32 s{d+3}, 0x20000")

class Wave(W):
    def __init__(self, name, cfg):
        super().__init__(name); self.cfg = cfg; self.stamps = []
    def stamp(self, label):
        if self.cfg.amp >= 0 and label == self.cfg.ampl: self.a("s_memrealtime s[72:73]"); self.amped = True
        if self.cfg.prof in (1, 2) and len(self.stamps) < 17 and label not in ("hw", "setup"):
            k = 66 + 2*len(self.stamps); self.stamps.append(label); self.a(f"s_mem{'real' if self.cfg.prof == 2 else ''}time s[{k}:{k+1}]")
    def retry(self, label):
        x = self.lab("giveup")
        self.a(f"s_cbranch_vccz {x}\ns_sub_u32 s{sSPIN}, s{sSPIN}, 1\ns_cmp_gt_i32 s{sSPIN}, 0\ns_cbranch_scc1 {label}\n{x}:")
    def wsum(self, v):
        L = [f"v_add_u32_dpp v{v}, v{v}, v{v} row_ror:{k} row_mask:0xf bank_mask:0xf" for k in (8, 4, 2, 1)]
        L += [f"v_add_u32_dpp v{v}, v{v}, v{v} row_bcast:15 row_mask:0xa bank_mask:0xf", f"v_add_u32_dpp v{v}, v{v}, v{v} row_bcast:31 row_mask:0xc bank_mask:0xf"]
        return L
    def end(self):
        if self.cfg.prof:
            self.a("s_memrealtime s[100:101]\ns_waitcnt vmcnt(0) lgkmcnt(0)")
            srd(self, 32, pWS, WSZ)
            self.a(f"s_lshl_b32 s{sT}, s2, 3\ns_add_u32 s{sT}, s{sT}, s3\ns_lshl_b32 s{sT}, s{sT}, 7\ns_add_u32 s{sT}, s{sT}, {PROF}")
            self.a("v_mov_b32 v1, 0\ns_mov_b64 exec, 1")
            vals = [64, 100, 62, sSPIN] + [66 + 2*i for i in range(len(self.stamps))] if self.cfg.prof < 3 else [64, 100]
            for i, s in enumerate(vals):
                self.a(f"v_mov_b32 v2, s{s}\nbuffer_store_dword v2, v1, s[32:35], s{sT} offen offset:{4*i}")
        if self.cfg.amp >= 0 and getattr(self, 'amped', False):
            x = self.lab("amp")
            self.a(f"""s_waitcnt vmcnt(0)
s_cmp_lg_u32 s2, {self.cfg.amp}
s_cbranch_scc1 {x}e
s_memrealtime s[66:67]
s_waitcnt lgkmcnt(0)
s_sub_u32 s68, s72, s64
s_min_u32 s68, s68, 20000
s_mul_i32 s68, s68, {self.cfg.ampk}
{x}:
s_memrealtime s[70:71]
s_waitcnt lgkmcnt(0)
s_sub_u32 s69, s70, s66
s_cmp_lt_u32 s69, s68
s_cbranch_scc1 {x}
{x}e:""")
        self.a("s_endpgm")

def chunk_order(w, cfg, dst, mul, E):
    w.a(f"s_add_u32 s{sT}, s{sJ}, 1\ns_cmp_gt_u32 s{sJ}, {cfg.JN}\ns_cselect_b32 s{sT}, s{sJ}, s{sT}")
    w.a(f"s_cmp_eq_u32 s{sJ}, {cfg.JN}\ns_cselect_b32 s{sT}, {cfg.BASE_N}, s{sT}")
    if E:
        assert 1 <= cfg.JN <= 6
        w.a(f"s_cmp_eq_u32 s{sJ}, 0")
        for t in range(7): w.a(f"s_mov_b32 s{dst+t}, {t*mul}\ns_cselect_b32 s{dst+t}, {(6-t)*mul}, s{dst+t}")
        return
    for t in range(7):
        w.a(f"s_cmp_ge_u32 s{sT}, 7\ns_cselect_b32 s{sT}, 0, s{sT}\ns_mul_i32 s{dst+t}, s{sT}, {mul}")
        if t < 6: w.a(f"s_add_u32 s{sT}, s{sT}, 1")

def chunk_seq(cfg, j):
    if j == 0: return [6-t for t in range(7)]
    if j == 7: return list(range(7))
    b = cfg.BASE_N if j == cfg.JN else (j if j > cfg.JN else j+1)
    return [(b+t) % 7 for t in range(7)]
def slot_table(cfg):
    pos = [[7]*7 for _ in range(8)]
    for c in range(7):
        arr = []
        for j in range(8):
            t = chunk_seq(cfg, j).index(c)
            if t == 6 and j != cfg.JN: continue
            arr.append(((cfg.DTE + cfg.STE*(t+1)) if j in (0, 7) else cfg.STM*max(t, 0.5) + j + (cfg.DTN if j in (1, 6) else 0), j, t))
        assert len(arr) == 7
        for k, (_, j, t) in enumerate(sorted(arr)): pos[j][t] = k
    return pos

def ffn_line0(w, d):
    w.a(f"s_lshl_b32 s{d}, s{sJ}, 2\ns_sub_u32 s{d}, s{d}, 2\ns_max_i32 s{d}, s{d}, 0")

def make_groups(role):
    g = []
    if role != 'E':
        for m in 'kv': g += [(m, kb, l) for kb in range(14) for l in range(2)]
        for t in range(4): g += [('w1', kb, t) for kb in range(14)]
        g += [('w2', kb, 0) for kb in range(6)] + [('w2', kb, 1) for kb in range(6)]
        g += [('w2', kb, 0) for kb in (6, 7)] + [('w2', kb, 1) for kb in (6, 7)]
        for t in range(2, 7): g += [('w2', kb, t) for kb in range(8)]
    else:
        for t in range(2): g += [('w1', kb, t) for kb in range(14)]
        for kb in range(14): g += [('q', kb, l) for l in range(4)]
        for kb in range(4): g += [('w2', kb, t) for t in range(7)]
        for t in range(7): g += [('wo', kb, t) for kb in range(7)]
    return g

vLANE, vT0, vT1, vT2 = 0, 1, 2, 3
vBA, vBB = 4, 6
vXW, vXR, vFR, vFW = 8, 9, 10, 11
vKVA, vHA, vOA, vPA = 12, 14, 16, 18
vOWA, vOWB = 18, 19
vMSG, vFOFF, vCK, vNON, vHIM, vEM, vTAG, vONES = 20, 21, 22, 23, 24, 25, 26, 27
vQA = 28; vB = 36; T8 = 56
XF = 64; ACC = [176 + 16*i for i in range(5)]
sR, sC, sMSG, sOWN, sL2E, sEPS, sMASK = 30, 31, 48, 55, 56, 57, 58
rX, rWS, rAUX = 32, 36, 40

class Job:
    def __init__(s, acc, act, g, sub, base, wfirst, first=False, span=1, pre=None, fill=None):
        s.acc, s.act, s.g, s.sub, s.base, s.wfirst, s.first, s.span, s.pre, s.fill = acc, act, g, sub, base, wfirst, first, span, pre or [], fill
class Code:
    def __init__(s, fn, fence=True): s.fn, s.fence = fn, fence
class Fill:
    def __init__(s, items, delay=2): s.items, s.delay = items, delay
class Flush: pass
SKIP = "SKIP"

def est_time(ins):
    t = 0; mf = 0; st = 0
    for x in ins:
        if x.kind in ('label', 'comment'): continue
        if x.kind == 'mfma': t = max(t, mf); mf = t + 34; t += 10
        elif x.kind == 'ds_w': t += 70 if '128' in x.op else 35
        elif x.kind == 'vm_s': t += 12; st += 31*4 if x.wide else 12
        elif x.kind == 'vm_l': t += 12; st += 18*4
        elif x.kind == 'ds_r': t += 7
        elif x.note == 'trans': t += 8
        else: t += 4.6
    return t, st

class Compute(Wave):
    def __init__(self, role, cfg):
        super().__init__("c" + role, cfg); self.role = role; self.groups = make_groups(role)
        self.gi = {g: i for i, g in enumerate(self.groups)}
        self.bars = []; self.ev = {}; self.done = -1; self.acq = 0
        extra = {}
        if role == 'E' and cfg.XS:
            g0 = self.gi[('wo', 0, 0)] + NSLOT
            for i in range(8): extra[g0 + i] = (STG + (i & 1)*HALF + (i >> 1)*4096, "kvb" if i < 4 else "o")
        if role != 'E':
            g0 = self.gi[('w1', 0, 0)] + 20
            for i in range(cfg.XM): extra[g0 + i] = (STG + (i & 1)*HALF + OOFF + (i >> 1)*4096, "xdead")
            g1 = self.gi[('w2', 0, 3)]
            for i in range(cfg.XH): extra[g1 + i] = (STG + (i >> 1)*HALF + OOFF + (i & 1)*4096, "o")
        self.baseC = {vHA: vKVA, vOA: vKVA if role == 'E' else vQA + 2, vPA: vQA + 3}
        self.addr = []; self.avail = []; main = []
        for g in range(len(self.groups)):
            if g in extra: self.addr.append(extra[g][0]); self.avail.append(extra[g][1])
            else:
                self.addr.append(RING + (len(main) % NSLOT)*4096); self.avail.append(main[-NSLOT] if len(main) >= NSLOT else -1); main.append(g)
    def barrier(self, need=None, name=None, long=False):
        if need is not None: self.acq = need
        n = 0
        while n < len(self.groups) and self.lastuse[n] <= self.done: n += 1
        self.bars.append(dict(pos=len(self.ins), need=self.acq, nrel=n, long=long))
        self.a("s_barrier")
        if name: self.ev[name] = len(self.bars)
    def emit_fill(self, it):
        if callable(it): it()
        elif it != SKIP: self.a(it)
    def run(self, items):
        cfg = self.cfg; jobs = [x for x in items if isinstance(x, Job)]; N = len(self.groups)
        for n, j in enumerate(jobs): j.n = n
        self.lastuse = {}
        for j in jobs:
            for g in range(j.g, j.g + j.span): self.lastuse[g] = j.n
        lim = {}; cur = len(jobs); nxt = len(jobs)
        for x in reversed(items):
            if isinstance(x, Job): lim[x.n] = cur; nxt = x.n
            elif isinstance(x, Code) and x.fence: cur = nxt
        st = dict(rd=0); fq = []
        self.nextneed = lambda: min(N, max(self.acq, jobs[st['rd']].g + jobs[st['rd']].span - 1 + cfg.CH)) if st['rd'] < len(jobs) else N
        def reads(n):
            j = jobs[n]
            if j.g + j.span > self.acq:
                nd = max(j.g + j.span, self.acq + cfg.CH)
                self.barrier(N if nd > N - (cfg.TAILE if self.role == 'E' else cfg.TAILM) else nd)
            for p in j.pre: self.emit_fill(p)
            ad = self.addr[j.g]; base = (self.baseC.get(j.base), j.base, j.base + 1)[ad >> 16]; imm = (ad & 0xffff) + j.sub*2048
            b = vB + 4*(n % cfg.NB)
            self.a(f"ds_read_b64_tr_b16 {vr(b, 2)}, v{base} offset:{imm}\nds_read_b64_tr_b16 {vr(b+2, 2)}, v{base} offset:{imm+256}")
            st['rd'] = n + 1
        def operands(j): return vset(vB + 4*(j.n % cfg.NB), 4) | vset(j.act, 4)
        for x in items:
            if isinstance(x, Job):
                if st['rd'] <= x.n:
                    while st['rd'] < min(x.n + cfg.D, lim[x.n]): reads(st['rd'])
                b = vr(vB + 4*(x.n % cfg.NB), 4); act = vr(x.act, 4); acc = vr(x.acc, 16)
                A, B = (b, act) if x.wfirst else (act, b)
                self.a(f"v_mfma_f32_32x32x16_bf16 {acc}, {A}, {B}, {'0' if x.first else acc}")
                self.done = x.n
                if st['rd'] < min(x.n + 1 + cfg.D, lim[x.n]): reads(st['rd'])
                if cfg.W2:
                    if x.n % 2 == 0:
                        s = set()
                        for k in (x.n+1, x.n+2):
                            if k < st['rd']: s |= operands(jobs[k])
                        self.need(s)
                elif x.n + 1 < st['rd']: self.need(operands(jobs[x.n + 1]))
                bud = x.fill or cfg.FILL
                while fq and bud > 0 and fq[0][0] <= x.n:
                    it = fq.pop(0)[1]; self.emit_fill(it)
                    if it == SKIP: break
                    bud -= 2 if (isinstance(it, str) and it.startswith(TRANS)) else 1
            elif isinstance(x, Fill): fq += [(self.done + x.delay, it) for it in x.items]
            elif isinstance(x, Flush):
                while fq: self.emit_fill(fq.pop(0)[1])
            else: x.fn()
        assert not fq
    def plan_loader(self):
        cfg = self.cfg; N = len(self.groups); iss = []; cur = 0; credit = 0.0
        for k, b in enumerate(self.bars):
            free = cur
            while free < N and (self.ev[self.avail[free]] <= k if isinstance(self.avail[free], str) else self.avail[free] < (self.bars[k-1]['nrel'] if k else 0)): free += 1
            t, st = est_time(self.ins[(self.bars[k-1]['pos'] if k else 0):b['pos']])
            b['t'] = t
            if self.role == 'E' and cfg.WOG and k >= self.ev['o']: st = 0
            credit += (t - st)/cfg.GT
            want = cur + int(credit) if not b['long'] else N
            if k == 0: want = cfg.INITE if self.role == 'E' else cfg.INIT
            la = cfg.LA
            if 'l0' in self.ev and 0 <= k - (self.ev['l0'] + cfg.L1D + cfg.HOLD0) < cfg.HOLD: want = cur; la = cfg.CH; credit = 0
            new = min(max(want, b['need'] + la, cur), free, N)
            assert new >= b['need'], (self.role, k, new, b)
            credit = min(max(credit - (new - cur), 0.0), 0.99)
            cur = new; iss.append(cur)
        self.iss = iss; self.kN = iss.index(N)

    def tile_addr(self, dst, col):
        self.a(f"""v_lshrrev_b32 v{vT0}, 6, v{col}
v_lshl_add_u32 v{dst}, v{vT0}, 12, v{vT1}
v_bfe_u32 v{vT0}, v{col}, 5, 1
v_lshl_add_u32 v{dst}, v{vT0}, 9, v{dst}
v_and_b32 v{vT0}, 31, v{col}
v_lshl_add_u32 v{dst}, v{vT0}, 1, v{dst}
v_add_u32 v{dst+1}, 0x10000, v{dst}""")
    def head_addr(self, dst, soff, width):
        c = vB
        self.a(f"""v_add_u32 v{c}, s{soff}, v{vT2}
v_subrev_u32 v{c+1}, 32, v{c}
v_cmp_le_u32 vcc, {width}, v{c}
v_cndmask_b32 v{c}, v{c}, v{c+1}, vcc""")
        self.tile_addr(dst, c)
    def setup(self):
        a = self.a; cfg = self.cfg; E = self.role == 'E'; c = vB
        a(f"s_mov_b32 s{sL2E}, 0x3fb8aa3b\ns_mov_b32 s{sEPS}, 0x358637bd")
        srd(self, rWS, pWS, WSZ)
        a(f"""v_lshrrev_b32 v{vT0}, 5, v{vLANE}
v_lshlrev_b32 v{vT1}, 10, v{vT0}
v_bfe_u32 v{vT0}, v{vLANE}, 2, 2
v_lshl_add_u32 v{vT1}, v{vT0}, 6, v{vT1}
v_add_u32 v{vT1}, {RING}, v{vT1}
v_bfe_u32 v{vT0}, v{vLANE}, 4, 1
v_and_b32 v{vT2}, 3, v{vLANE}
v_lshl_add_u32 v{vT2}, v{vT0}, 2, v{vT2}
v_lshlrev_b32 v{vT2}, 2, v{vT2}""")
        if self.role == 'M':
            a(f"s_mul_i32 s59, s{sJ}, 56\ns_and_b32 s59, s59, 63\ns_mul_i32 s60, s{sC}, 28\ns_add_u32 s59, s59, s60")
            self.head_addr(vKVA, 59, 128)
        if self.role == 'N':
            a(f"s_and_b32 s59, s{sJ}, 4\ns_lshl_b32 s59, s59, 2\ns_mul_i32 s60, s{sC}, 56\ns_add_u32 s59, s59, s60")
            self.head_addr(vKVA, 59, 128); a("s_add_u32 s59, s59, 28"); self.head_addr(vQA, 59, 128)
        if E:
            a(f"s_and_b32 s59, s{sJ}, 1\ns_lshl_b32 s59, s59, 5\ns_mul_i32 s60, s{sC}, 112\ns_add_u32 s59, s59, s60")
            for hh in range(4):
                self.head_addr(vQA + 2*hh, 59, 256)
                if hh < 3: a("s_add_u32 s59, s59, 28")
        a(f"s_lshl_b32 s59, s{sC}, 5")
        a(f"""v_and_b32 v{c}, 16, v{vLANE}
v_and_b32 v{c+1}, 1, v{vLANE}
v_lshl_add_u32 v{c}, v{c+1}, 3, v{c}
v_bfe_u32 v{c+1}, v{vLANE}, 1, 1
v_lshl_add_u32 v{c}, v{c+1}, 2, v{c}
v_add_u32 v{c}, s59, v{c}""")
        self.tile_addr(vHA, c)
        a(f"""v_and_b32 v{c}, 1, v{vLANE}
v_lshlrev_b32 v{c}, 4, v{c}
v_bfe_u32 v{c+1}, v{vLANE}, 4, 1
v_lshl_add_u32 v{c}, v{c+1}, 3, v{c}
v_bfe_u32 v{c+1}, v{vLANE}, 1, 1
v_lshl_add_u32 v{c}, v{c+1}, 2, v{c}
v_add_u32 v{c}, s59, v{c}""")
        self.tile_addr(vOA, c)
        if not E:
            a(f"s_lshl_b32 s59, s{sC}, 12\ns_sub_u32 s60, 4096, s59")
            for k in range(2): a(f"v_add_u32 v{vPA+k}, s60, v{vOA+k}\nv_add_u32 v{vOA+k}, s59, v{vOA+k}")
        a(f"""v_lshlrev_b32 v{vMSG}, 4, v{vLANE}
s_mul_i32 s59, s{sR}, {HALF}
s_add_u32 s59, s59, {STG}
v_add_u32 v{vFR}, s59, v{vMSG}
s_lshl_b32 s60, s{sC}, 11
v_add_u32 v{vFW}, s60, v{vFR}
v_lshrrev_b32 v{vT0}, 5, v{vLANE}
v_and_b32 v{vT1}, 31, v{vLANE}
v_lshl_add_u32 v{vT2}, v{vT1}, 4, s59
v_mul_u32_u24 v{vXR}, 528, v{vT0}
v_add_u32 v{vXR}, v{vXR}, v{vT2}
v_add_u32 v{vHIM}, -1, v{vT0}
v_subrev_u32 v{vEM}, 28, v{vT1}
v_ashrrev_i32 v{vEM}, 31, v{vEM}
v_mov_b32 v{vONES}, 0x3f803f80
v_subrev_u32 v{vFOFF}, 63, v{vLANE}
v_and_b32 v{vFOFF}, {OOB}, v{vFOFF}""")
        if E:
            a(f"""s_mul_i32 s60, s{sC}, 7168
v_add_u32 v{vOWA}, s60, v{vT2}
v_mul_u32_u24 v{vOWB}, 504, v{vT0}
v_add_u32 v{vOWB}, v{vOWB}, v{vOWA}
v_lshl_add_u32 v{vOWA}, v{vT0}, 3, v{vOWA}""")
        else:
            a(f"s_sub_u32 s60, 2048, s60\nv_add_u32 v{vFR}, s60, v{vFR}")
        chunk_order(self, cfg, sMSG, 32*MSG, E)
        a(f"s_mul_i32 s59, s{sRB}, {7*32*MSG}\ns_mul_i32 s60, s3, {MSG}\ns_add_u32 s59, s59, s60\ns_add_u32 s61, s59, {XP}")
        tab = [sum(p << (4*t) for t, p in enumerate(r)) for r in slot_table(cfg)]
        js = {'E': (0, 7), 'N': (1, 6), 'M': (2, 3, 4, 5)}[self.role]
        a(f"s_mov_b32 s60, {tab[js[0]]}")
        for jj in js[1:]: a(f"s_cmp_eq_u32 s{sJ}, {jj}\ns_cselect_b32 s60, {tab[jj]}, s60")
        for t in range(7): a(f"s_bfe_u32 s59, s60, {hex(0x30000 + 4*t)}\ns_lshl_b32 s59, s59, 13\ns_add_u32 s59, s59, s61\ns_add_u32 s{sMSG+t}, s{sMSG+t}, s59")
        a(f"s_lshl_b32 s59, s3, 15\ns_add_u32 s59, s59, {XFL - (XP >> 9)}\nv_or_b32 v{vFOFF}, s59, v{vFOFF}")
        ffn_line0(self, 60)
        a(f"s_lshl_b32 s59, s60, 7\ns_lshl_b32 s60, s{sC}, 6\ns_add_u32 s59, s59, s60"); srd(self, rAUX, pB1, 3584, 59)
        a(f"""v_and_b32 v{c}, 19, v{vLANE}
v_bfe_u32 v{c+1}, v{vLANE}, 2, 1
v_lshl_add_u32 v{c}, v{c+1}, 3, v{c}
v_bfe_u32 v{c+1}, v{vLANE}, 3, 1
v_lshl_add_u32 v{c}, v{c+1}, 2, v{c}
v_lshrrev_b32 v{c+1}, 5, v{vLANE}
v_lshlrev_b32 v{c+1}, 31, v{c+1}
v_lshl_add_u32 v{c}, v{c}, 1, v{c+1}""")
        for i in range(7): a(f"buffer_load_dwordx4 {vr(ACC[0] + 28 + 4*i, 4)}, v{vBB}, s[{rX}:{rX+3}], s15 offen offset:{i*128}")
        a("s_barrier")
        if self.role == 'M': a(f"s_lshl_b32 s59, s{sJ}, 1\ns_add_u32 s59, s59, s{sC}")
        if self.role == 'N': a(f"s_and_b32 s59, s{sJ}, 6\ns_add_u32 s59, s59, s{sC}\ns_lshl_b32 s59, s59, 1")
        if not E: a(f"""s_lshl_b32 s59, s59, 5
s_add_u32 s59, s59, s{sRB}
s_lshl_b32 s59, s59, 1
s_add_u32 s59, s59, s{sR}
s_lshl_b32 s59, s59, 11
s_add_u32 s59, s59, {KVP}
s_add_u32 s60, s59, 131072""")
    def layernorm(self):
        a = self.a; T = ACC[0] + 56
        a(f"s_mov_b32 s{sMASK}, 0xffff0000")
        for grp in range(2):
            X = ACC[0] + 28*grp; s1, s2 = T, T+1
            a(f"v_mov_b32 v{s1}, 0\nv_mov_b32 v{s2}, 0")
            for i in range(28): a(f"v_dot2c_f32_bf16 v{s1}, v{X+i}, v{vONES}\nv_dot2c_f32_bf16 v{s2}, v{X+i}, v{X+i}")
            if grp == 1:
                self.stamp("x1")
                a(f"v_add_u32 v{vXW}, s44, v{vXW}")
                for t in range(2 if self.role == 'E' else 4): a(f"buffer_load_ushort v{T8+t}, v{vB}, s[{rAUX}:{rAUX+3}], 0 offen offset:{t*128}")
            else:
                self.stamp("x0")
                a(f"s_waitcnt lgkmcnt(0)\ns_add_u32 s{sNON}, s{sNON}, 1\nv_mov_b32 v{vNON}, s{sNON}\nv_and_b32 v{vTAG}, 0xffff, v{vNON}")
            for m in ("quad_perm:[1,0,3,2]", "quad_perm:[2,3,0,1]", "row_half_mirror"):
                for s in (s1, s2): a(f"v_add_f32_dpp v{s}, v{s}, v{s} {m} row_mask:0xf bank_mask:0xf")
            a(f"""v_mul_f32 v{s1}, {f2h(1/448)}, v{s1}
v_mul_f32 v{s2}, {f2h(1/448)}, v{s2}
v_fma_f32 v{s2}, -v{s1}, v{s1}, v{s2}
v_max_f32 v{s2}, 0, v{s2}
v_add_f32 v{s2}, {f2h(1e-5)}, v{s2}
v_rsq_f32 v{T+2}, v{s2}
v_mul_f32 v{T+3}, -v{s1}, v{T+2}""")
            for i0 in range(0, 28, 4):
                t = T + 4
                for k in range(4): a(f"v_lshlrev_b32 v{t+2*k}, 16, v{X+i0+k}\nv_and_b32 v{t+2*k+1}, s{sMASK}, v{X+i0+k}")
                for k in range(4): a(f"v_pk_fma_f32 {vr(t+2*k,2)}, {vr(t+2*k,2)}, {vr(T+2,2)}, {vr(T+2,2)} op_sel:[0,0,1] op_sel_hi:[1,0,1]")
                for k in range(4): a(f"v_cvt_pk_bf16_f32 v{X+i0+k}, v{t+2*k}, v{t+2*k+1}")
                a(f"ds_write_b128 v{vXW}, {vr(X+i0, 4)} offset:{(i0//4)*4224}")
                if grp == 1 and i0//4 == self.cfg.A2: a("s_barrier")
    def bias_init(self, acc, t):
        one = "1.0" if t & 1 else "0x3f80"
        return [f"v_mov_b32 v{vBB + (t >> 1)}, {one}", f"v_mov_b32 v{vBB + 1 - (t >> 1)}, 0", SKIP,
                f"v_mfma_f32_32x32x8bf16_1k {vr(acc, 16)}, {vr(vBA, 2)}, {vr(vBB, 2)}, 0"]
    def phi(self, acc, dst, tmp):
        L = []
        for i0 in range(0, 16, 4):
            r = [acc + i0 + k for k in range(4)]
            L += [f"v_mul_f32 v{tmp+k}, s{sL2E}, v{r[k]}" for k in range(4)]
            for k in range(4): L += [f"v_exp_f32 v{tmp+k}, v{tmp+k} clamp", f"v_max_f32 v{r[k]}, s{sEPS}, v{r[k]}"]
            L += [f"v_add_f32 v{r[k]}, v{r[k]}, v{tmp+k}" for k in range(4)]
            L += [f"v_cvt_pk_bf16_f32 v{dst + i0//2 + k}, v{r[2*k]}, v{r[2*k+1]}" for k in range(2)]
        return L
    def pack(self, acc, dst=None):
        dst = acc if dst is None else dst
        return [f"v_cvt_pk_bf16_f32 v{dst+i}, v{acc+2*i}, v{acc+2*i+1}" for i in range(8)]
    def h_epi(self, acc, dst):
        L = []
        for h in range(2):
            L += [f"v_mul_f32 v{acc+i}, v{acc+i}, abs(v{acc+i})" for i in range(8*h, 8*h+8)]
            L += self.pack(acc, dst)[4*h:4*h+4]
            L += [f"v_pk_max_i16 v{dst+i}, v{dst+i}, 0" for i in range(4*h, 4*h+4)]
        return L
    def h_write(self, src, t):
        for h in range(2): self.a(f"ds_write_b128 v{vFW}, {vr(src+4*h, 4)} offset:{HOFF + (4*t+h)*1024}")
    def send(self, acc, t):
        P = self.pack(acc); L = []
        st = lambda h: f"buffer_store_dwordx4 {vr(acc+4*h, 4)}, v{vMSG}, s[{rWS}:{rWS+3}], s{sMSG+t} offen offset:{1024*h} sc1"
        L += P[:4] + [st(0)] + P[4:]
        L += [f"v_add3_u32 v{vCK}, v{acc}, v{acc+1}, v{acc+2}", f"v_add3_u32 v{vT0}, v{acc+3}, v{acc+4}, v{acc+5}",
              f"v_add3_u32 v{vCK}, v{vCK}, v{acc+6}, v{acc+7}", f"v_add_u32 v{vCK}, v{vCK}, v{vT0}"]
        ws = self.wsum(vCK); sp = self.cfg.SP if t < 5 else 0
        for k, x in enumerate(ws):
            if k == sp: L.append(st(1))
            L += [SKIP, x] if t < self.cfg.FAST or k % 2 == 0 else [x]
        if sp >= 6: L.append(st(1))
        L += [f"v_add_u32 v{vCK}, v{vCK}, v{vNON}",
              f"buffer_store_dwordx2 {vr(vCK, 2)}, v{vFOFF}, s[{rWS}:{rWS+3}], s{8+t} offen sc1"]
        d = self.cfg.dbgst
        if d & 1: L = [x for x in L if not x.startswith("buffer_store_dwordx4")]
        if d & 2: L = [x for x in L if not x.startswith("buffer_store_dwordx2")]
        if d & 4: L = [x.replace(" sc1", "") for x in L]
        if d & 8: L = [x for x in L if x.startswith("buffer") or x == SKIP]
        return L
    def kv_epi(self, a):
        K, Dd = ACC[2*a], ACC[2*a+1]; V = K + 8
        L = self.phi(K, K, T8) + self.pack(Dd, V) + [f"v_bfi_b32 v{V+i}, v{vEM}, v{V+i}, v{vONES}" for i in range(8)]
        L += [f"v_mfma_f32_32x32x16_bf16 {vr(Dd,16)}, {vr(K+4*kk,4)}, {vr(V+4*kk,4)}, {vr(Dd,16) if kk else 0}" for kk in range(2)]
        L2 = self.pack(Dd) + [f"v_lshl_or_b32 v{Dd+8}, v{Dd+3}, 16, v{vTAG}", SKIP, f"v_permlane32_swap_b32 v{Dd+6}, v{Dd+7}",
                              f"v_and_or_b32 v{Dd+7}, v{Dd+3}, s{sMASK}, v{vTAG}", f"v_mov_b32 v{Dd+3}, v{Dd+8}"]
        L2 += [f"buffer_store_dwordx4 {vr(Dd+4*i, 4)}, v{vMSG}, s[{rWS}:{rWS+3}], s{59+a} offen offset:{i*1024} sc1" for i in (1, 0)]
        return L, L2
    def flag_offsets(self):
        L = []
        for t in range(7): L += [f"s_lshr_b32 s{8+t}, s{sMSG+t}, 13", f"s_and_b32 s{sT}, s{8+t}, -8", f"s_add_u32 s{8+t}, s{8+t}, s{sT}", f"s_lshl_b32 s{8+t}, s{8+t}, 3"]
        return L
    def bias_pack(self):
        return [f"v_lshl_or_b32 v{vBA}, v{T8+1}, 16, v{T8}", f"v_mov_b32 v{vBA+1}, 0" if self.role == 'E' else f"v_lshl_or_b32 v{vBA+1}, v{T8+3}, 16, v{T8+2}", SKIP]
    xread = lambda self, s: [f"ds_read_b128 {vr(XF+4*s, 4)}, v{vXR} offset:{s*1056}"]
    def kv_phase(self, items):
        na = 2 if self.role == 'N' else 1
        ep = [self.kv_epi(a) for a in range(na)]
        for wi, m in enumerate('kv'):
            for s in range(28):
                for a in range(na):
                    items.append(Job(ACC[2*a+wi], XF+4*s, self.gi[(m, s >> 1, 0)], s & 1, vQA if a else vKVA, False, s == 0, 2,
                                     None if a or wi else self.xread(s), (self.cfg.KF if na == 2 else 5) if wi else None))
                if wi == 0 and s == 2: items.append(Fill(self.flag_offsets(), 0))
                if wi == 0 and s == 20: items.append(Fill(self.bias_pack() + self.bias_init(ACC[4], 0), 0))
            items.append(Flush())
            if wi == 0: items.append(Fill(sum((e[0][:72] for e in ep), [])))
        items.append(Code(lambda: self.stamp("kvmm"), False))
        def mark(): self.ev["l0"] = len(self.bars); self.stamp("l0st")
        e1, e2 = ep[0][0][72:], ep[0][1]
        if na == 2: e1 = e1 + ep[1][0][72:] + e2; e2 = ep[1][1]
        e1 = [lambda: self.barrier(name="xdead")] + e1
        e2 = e2 + [f"v_subrev_u32 v{c}, 0x10000, v{b}" for b, c in self.baseC.items()]
        items.append(Code(lambda: [self.emit_fill(x) for x in e1], False))
        items.append(Fill(e2 + [mark] + self.bias_init(ACC[2], 1), 3))
    def checksum(self, R, n, fl, cnt):
        a = self.a
        a(f"v_sub_u32 v{vCK}, 0, v{fl}")
        for i in range(0, n, 2): a(f"v_add3_u32 v{vCK}, v{vCK}, v{R+i}, v{R+i+1}")
        for s in self.wsum(vCK): a(s)
        a(f"v_mul_lo_u32 v{vT0}, v{vNON}, {cnt}\nv_add_u32 v{vCK}, v{vCK}, v{vT0}\nv_readlane_b32 s{sT}, v{vCK}, 63")
        a(f"s_cmp_lg_u32 s{sT}, 0\ns_cselect_b64 vcc, -1, 0")
    def finale(self, acc, can_non):
        self.stamp("mmend")
        a = self.a
        a(f"s_lshl_b32 s59, s{sC}, 11\ns_add_u32 s59, s59, {OOFF}\nv_add_u32 v{vT1}, s59, v{vFW}")
        a(f"s_lshl_b32 s59, s3, 8\nv_lshl_add_u32 v{vT2}, v{vLANE}, 2, s59")
        if can_non:
            own, fin = self.lab("own"), self.lab("fin")
            a(f"s_cmp_lg_u32 s{sJ}, {self.cfg.JN}\ns_nop 7\ns_cbranch_scc1 {own}")
            for x in self.send(acc, 6): self.emit_fill(x)
            a(f"s_branch {fin}\n{own}:")
        for i in range(4): a(f"ds_write_b128 v{vT1}, {vr(acc+4*i, 4)} offset:{i*1024}")
        a(f"ds_write_b32 v{vT2}, v{vONES}")
        if can_non: a(f"{fin}:")
        if self.cfg.prof: a("s_waitcnt vmcnt(0)"); self.stamp("end")
        self.end()

    def build(self):
        a = self.a; cfg = self.cfg; gi = self.gi; it = []
        self.setup(); self.stamp("setup")
        self.layernorm()
        def xbar():
            a("s_waitcnt lgkmcnt(0)"); self.stamp("ln"); self.barrier(cfg.CH, long=True); self.stamp("b0")
        it.append(Code(xbar))
        def xchg(long=False):
            a("s_waitcnt lgkmcnt(0)"); self.barrier(self.nextneed(), long=long, name="o")
        if self.role != 'E':
            self.kv_phase(it)
            buf = [ACC[4], ACC[2], ACC[4], ACC[2]]; HK = [ACC[0], ACC[0]+8, ACC[1], ACC[1]+8]
            for t in range(4):
                it += [Job(buf[t], XF+4*s, gi[('w1', s >> 1, t)], s & 1, vHA, True, fill=(4 if t == 0 and s < 10 else None)) for s in range(28)]
                it.append(Flush())
                it.append(Fill(self.h_epi(buf[t], HK[t]) + (self.bias_init(buf[t], t+2) if t < 2 else [])))
            it.append(Code(lambda: self.stamp("ffn1"), False))
            ob = lambda t: (ACC[4], ACC[3], ACC[2])[t % 3]
            def J(t, h, kk, own, first=False, pre=None, fill=None):
                return Job(ob(t), (HK[h] if own else XF + 8*h) + 4*kk, gi[('w2', 2*h, t)], kk, vOA if own else vPA, True, first, 2, pre, fill)
            for t in range(2): it += [J(t, h, kk, True, h + kk == 0, fill=3) for h in range(3) for kk in range(2)]
            it.append(Flush())
            def hw():
                self.stamp("hw")
                for t in range(4): self.h_write(HK[t], t)
            it.append(Code(hw, False))
            for t in range(2): it += [J(t, 3, kk, True) for kk in range(2)]
            it.append(Code(xchg)); it.append(Code(lambda: self.stamp("hx"), False))
            rd = lambda h, kk: [f"ds_read_b128 {vr(XF+8*h+4*kk, 4)}, v{vFR} offset:{HOFF + (4*h+kk)*1024}"]
            it += [J(0, h, kk, False, pre=rd(h, kk)) for h in range(4) for kk in range(2)] + [Fill(self.send(ob(0), 0))]
            it += [J(1, h, kk, False, fill=3) for h in range(4) for kk in range(2)] + [Fill(self.send(ob(1), 1))]
            for t in range(2, 7):
                it += [J(t, h, kk, own, h + kk == 0 and own, fill=4 if t > cfg.FAST else 3 if t == 2 else None) for h in range(4) for own in (True, False) for kk in range(2)] + [Flush()]
                if t < 6: it.append(Fill(self.send(ob(t), t)))
            self.run(it)
            self.finale(ob(6), self.role == 'M')
        else:
            buf = [ACC[2], ACC[4]]
            for s in range(28):
                it.append(Job(buf[0], XF+4*s, gi[('w1', s >> 1, 0)], s & 1, vHA, True, s == 0, 1, self.xread(s)))
                if s == 14: it.append(Fill(self.bias_pack() + self.bias_init(buf[1], 1), 0))
            b0 = self.bias_init(buf[0], 0); b0[-1] = b0[-1][:-1] + vr(buf[0], 16)
            it.append(Fill(b0 + [SKIP]*6 + self.h_epi(buf[0], T8), 3))
            it += [Job(buf[1], XF+4*s, gi[('w1', s >> 1, 1)], s & 1, vHA, True) for s in range(28)] + [Flush()]
            it.append(Fill(self.h_epi(buf[1], buf[1])))
            it.append(Code(lambda: self.stamp("ffn1"), False))
            for s in range(28):
                it += [Job(ACC[hh], XF+4*s, gi[('q', s >> 1, 0)], s & 1, vQA + 2*hh, True, s == 0, 4, fill=1) for hh in range(4)]
                if s == 16: it.append(Fill(self.flag_offsets(), 0))
                if s == cfg.HWS: it += [Flush(), Code(lambda: (self.ev.update(hw=len(self.bars)), self.h_write(T8, 0), self.h_write(buf[1], 1)), False)]
            it.append(Code(lambda: self.stamp("q"), False))
            f = []
            for hh in range(4):
                d = ACC[0] + 8*hh
                f += self.phi(ACC[hh], d, T8)
            it.append(Fill(f))
            for s in range(8):
                hb = vQA + 4*(s & 1)
                for t in range(7):
                    pre = [f"ds_read_b128 {vr(hb, 4)}, v{vFR} offset:{HOFF + s*1024}"] if t == 0 else []
                    it.append(Job(XF + 16*t, hb, gi[('w2', s >> 1, t)], s & 1, vOA, True, s == 0, 1, pre, cfg.QFILL))
            def ocalc():
                self.barrier(name="kvb")
                self.stamp("ffn2a")
            it.append(Code(ocalc)); it.append(Flush())
            def ocalc2():
                KB = ACC[2]
                a(f"""s_and_b32 s59, s{sJ}, 1
s_lshl_b32 s59, s59, 1
s_add_u32 s59, s59, s{sC}
s_lshl_b32 s59, s59, 13
s_add_u32 s59, s59, {KVF}
s_add_u32 s60, s59, 4096
v_subrev_u32 v{vKVA}, 0x10000, v{vOA}
s_mul_i32 s61, s{sC}, {HALF}
s_add_u32 s61, s61, {STG + KVB}
v_add_u32 v{vXW}, s61, v{vMSG}
s_mov_b32 s61, 0x07060302""")
                self.stamp("phi")
                self.barrier(name="kvr", long=True)
                self.stamp("kvr")
                for i in range(8): a(f"ds_read_b128 {vr(KB+4*i, 4)}, v{vXW} offset:{i*1024}")
                lp, ck = self.lab("l2_"), self.lab("l2c")
                a(f"{ck}:\nv_mov_b32 v{vT0}, 0")
                for hh in range(4):
                    a(f"v_xor_b32 v{vT1}, v{KB+8*hh+3}, v{vTAG}\nv_xor_b32 v{vT2}, v{KB+8*hh+7}, v{vTAG}\nv_or3_b32 v{vT0}, v{vT0}, v{vT1}, v{vT2}")
                    a(f"v_perm_b32 v{KB+8*hh+3}, v{KB+8*hh+7}, v{KB+8*hh+3}, s61\nv_mov_b32 v{KB+8*hh+7}, 0")
                a(f"v_and_b32 v{vT0}, 0xffff, v{vT0}\nv_cmp_ne_u32 vcc, 0, v{vT0}")
                for hh in range(4): a(f"v_permlane32_swap_b32 v{KB+8*hh+6}, v{KB+8*hh+7}")
                self.retry(lp)
                self.ool += [f"{lp}:"]
                self.ool += [f"buffer_load_dwordx4 {vr(KB+4*i, 4)}, v{vMSG}, s[{rWS}:{rWS+3}], s{59 + (i >> 2)} offen offset:{(i & 3)*1024} sc1" for i in range(8)]
                self.ool += ["s_waitcnt vmcnt(0)", f"s_branch {ck}"]
                self.stamp("kvok")
                nb = [ACC[4], vB, ACC[4], vB]
                def mm(hh):
                    for kk in range(2):
                        a(f"v_mfma_f32_32x32x16_bf16 {vr(nb[hh],16)}, {vr(KB+8*hh+4*kk,4)}, {vr(ACC[0]+8*hh+4*kk,4)}, {vr(nb[hh],16) if kk else 0}")
                def ep(hh):
                    n = nb[hh]
                    a(f"v_mov_b32 v{vT0}, v{n+12}\nv_mov_b32 v{vCK}, v{n+12}\nv_permlane32_swap_b32 v{vT0}, v{vCK}")
                    a(f"v_add_f32 v{vCK}, s{sEPS}, v{vCK}\nv_rcp_f32 v{vCK}, v{vCK}")
                    for i in range(4):
                        for k in range(4): a(f"v_mul_f32 v{n+4*i+k}, v{n+4*i+k}, v{vCK}")
                        for k in range(2): a(self.pack(n)[2*i+k])
                        g0 = 7*hh + 2*i
                        off = OOFF + (g0 >> 2)*1024 + ((g0 >> 1) & 1)*512 + (g0 & 1)*8
                        if i == 3: a("s_mov_b32 exec_hi, 0")
                        a(f"ds_write_b64 v{vOWB if g0 & 1 else vOWA}, {vr(n+2*i, 2)} offset:{off}")
                        if i == 3: a("s_mov_b32 exec_hi, -1")
                mm(0); mm(1); ep(0); mm(2); ep(1); mm(3); ep(2); ep(3)
                xchg(True)
                self.stamp("o")
            it.append(Code(ocalc2))
            for t in range(7):
                for s in range(14):
                    pre = [f"ds_read_b128 {vr(ACC[0]+4*s, 4)}, v{vFR} offset:{OOFF + s*1024}"] if t == 0 else []
                    it.append(Job(XF + 16*t, ACC[0]+4*s, gi[('wo', s >> 1, t)], s & 1, vOA, True, False, 1, pre, 4 if t > cfg.FAST else 3))
                it.append(Flush())
                if t < 6: it.append(Fill(self.send(XF + 16*t, t)))
            self.run(it)
            self.finale(XF + 96, False)
        self.plan_loader()

def weight_srds(w, E):
    w.a(f"s_mul_i32 s49, s{sJ}, 56\ns_lshr_b32 s49, s49, 6\ns_lshl_b32 s49, s49, 7")
    if E:
        w.a(f"s_and_b32 s48, s{sJ}, 1\ns_mul_i32 s59, s48, {224*896}\ns_mul_i32 s48, s48, 384")
        srd(w, 44, pWO, 401408, 59)
    ffn_line0(w, 60)
    w.a("s_lshl_b32 s59, s60, 7"); srd(w, 36, pW1, 1605632, 59)
    w.a(f"s_mul_i32 s59, s60, {64*896}"); srd(w, 40, pW2, 1605632, 59)

class Pf:
    def __init__(s, w): s.w = w; s.n = 0; assert w.cfg.G == 16
    def new(s, rs):
        s.n += 1; v = 16 + s.n
        return v, f"buffer_load_dword v{48 + s.n}, v{v}, s[{rs}:{rs+3}], 0 offen"
    def cols(s, rs, sbase, off, stride, nl, lstep=None):
        v, ins = s.new(rs)
        line = f"v_min_u32 v9, {nl-1}, v9\nv_lshl_add_u32 v{v}, v9, 7, v{v}" if lstep is None else \
               f"v_and_b32 v10, 1, v9\nv_lshl_add_u32 v{v}, v10, 7, v{v}\nv_lshrrev_b32 v9, 1, v9\nv_mul_u32_u24 v9, {lstep}, v9\nv_add_u32 v{v}, v9, v{v}"
        s.w.a(f"""s_mul_i32 s60, s61, 14
v_and_b32 v{v}, 15, v0
v_min_u32 v{v}, 13, v{v}
v_add_u32 v{v}, s60, v{v}
v_mul_u32_u24 v{v}, {stride}, v{v}
v_lshrrev_b32 v9, 4, v0
{line}""")
        if off: s.w.a(f"v_add_u32 v{v}, {off}, v{v}")
        if sbase is not None: s.w.a(f"v_add_u32 v{v}, s{sbase}, v{v}")
        return ins
    def chunks(s, rs, nr, t0, t1):
        v, ins = s.new(rs)
        s.w.a(f"s_mul_i32 s60, s61, {nr}\nv_and_b32 v{v}, 7, v0\nv_min_u32 v{v}, {nr-1}, v{v}\nv_add_u32 v{v}, s60, v{v}\nv_mul_u32_u24 v{v}, 896, v{v}\nv_mov_b32 v9, s{50+t0}")
        for t in range(t0+1, t1): s.w.a(f"v_mov_b32 v10, s{50+t}\nv_cmp_le_u32 vcc, {8*(t-t0)}, v0\nv_cndmask_b32 v9, v9, v10, vcc")
        s.w.a(f"v_add_u32 v{v}, v9, v{v}")
        return ins

gA, gR, gY = 16, 64, 128
vGO, vGB, vGM, vGC, vGT, vGN, vLO, vHI, vXD, vTW, vTR, vOF = 36, 37, 39, 32, 33, 34, 35, 15, 38, 40, 41, 42
def gather_stage1(w, cfg):
    a = w.a
    srd(w, 32, pX, 1835008); srd(w, 36, pWS, WSZ)
    a(f"""s_mov_b64 s[0:1], s[{pB2}:{pB2+1}]
s_sub_u32 s57, s3, 4
s_cmp_gt_u32 s{sJ}, {cfg.JN}
s_subb_u32 s58, s{sJ}, 0
s_mul_i32 s61, s{sRB}, 7
s_add_u32 s61, s61, s58
s_lshl_b32 s60, s57, 8
s_add_u32 s60, s60, s61
s_lshl_b32 s60, s60, 7
s_add_u32 s60, s60, {XFL}
s_add_u32 s48, s{pWS}, s60
s_addc_u32 s49, s{pWS+1}, 0
s_waitcnt lgkmcnt(0)
s_mov_b32 s26, s{sNON}
s_load_dwordx16 s[8:23], s[48:49], 0 glc
s_lshl_b32 s61, s61, 5
s_add_u32 s61, s61, s57
s_lshl_b32 s61, s61, 11
s_add_u32 s61, s61, {XP}
s_lshl_b32 s58, s58, 7
s_and_b32 s60, s57, 1
s_lshl_b32 s60, s60, 6
s_add_u32 s58, s58, s60
s_lshr_b32 s27, s57, 1
s_lshl_b32 s60, s{sRB}, 1
s_add_u32 s60, s60, s27
s_mul_i32 s60, s60, {32*896}
s_add_u32 s60, s60, s58
v_lshrrev_b32 v{vTR}, 2, v0
v_and_b32 v{vGM}, 3, v0
v_mul_u32_u24 v{vGO}, 896, v{vTR}
v_lshl_add_u32 v{vGO}, v{vGM}, 4, v{vGO}
v_mul_u32_u24 v{vTR}, 80, v{vTR}
v_lshl_add_u32 v{vTR}, v{vGM}, 4, v{vTR}
v_and_b32 v{vGB}, 32, v0
v_and_b32 v{vGM}, 31, v0
v_lshl_add_u32 v{vXD}, v{vGM}, 6, v{vGB}
v_lshl_add_u32 v{vTW}, v{vGM}, 4, v{vXD}
v_lshlrev_b32 v{vGM}, 4, v0
s_mul_i32 s27, s27, {HALF}
s_and_b32 s57, s57, 1
s_lshl_b32 s57, s57, 11
s_add_u32 s27, s27, s57
s_add_u32 s57, s57, s27
s_add_u32 s57, s57, {STG + OOFF}
s_add_u32 s27, s27, {STG + OOFF + 8192}
v_add_u32 v{vGT}, s57, v{vGM}
v_add_u32 v{vTW}, s57, v{vTW}
v_add_u32 v{vTR}, s57, v{vTR}
v_add_u32 v{vXD}, s27, v{vXD}
v_mov_b32 v{vGN}, s26""")

def ready_mask(a):
    a("s_mov_b32 s57, 0")
    for i in range(7, -1, -1): a(f"s_cmp_eq_u32 s{9+2*i}, s26\ns_addc_u32 s57, s57, s57")
    a("s_and_b32 s57, s57, s56")
def cksum_total(a):
    a("s_bcnt1_i32_b32 s51, s30\ns_mul_i32 s51, s51, s26")
    for i in range(8): a(f"s_bitcmp1_b32 s30, {i}\ns_cselect_b32 s59, s{8+2*i}, 0\ns_sub_u32 s51, s51, s59")

def gather_stage2(w, cfg):
    a = w.a
    srd(w, 40, 0, 896); srd(w, 44, pOUT, 1835008)
    a(f"s_add_u32 s57, s60, {16*896}")
    for h in range(2):
        a(f"s_add_u32 m0, s27, {h*1024}\nbuffer_load_dwordx4 v{vGO}, s[32:35], s{57 if h else 60} offen lds")
        a(f"buffer_load_dwordx4 {vr(gY+8+4*h, 4)}, v{vGB}, s[40:43], s58 offen offset:{16*h}")
    a(f"s_load_dwordx16 s[8:23], s[48:49], 0 glc")
    for k in range(7): a(f"s_add_u32 s{50+k}, s61, {k*8192}")
    a(f"v_mov_b32 v{vLO}, 0x3f80\nv_mov_b32 v{vHI}, 1.0\nv_mov_b32 v{vGC}, 0")
    return 4

def build_gather(cfg, role):
    w = Wave("g" + role, cfg); E = role == 'E'; gS, gT = 144, 160
    a = lambda t: w.a(re.sub(r"\bg_", f"g{role}_", t))
    w.stamps = ["-"]*8
    POLL = "s_load_dwordx16 s[8:23], s[48:49], 0 glc"
    def addp(x):
        L = []
        for i in range(8):
            L += [f"v_lshlrev_b32 v{vLO}, 16, v{x+i}", f"v_and_b32 v{vHI}, s27, v{x+i}", f"v_add_f32 v{gA+2*i}, v{gA+2*i}, v{vLO}", f"v_add_f32 v{gA+2*i+1}, v{gA+2*i+1}, v{vHI}"]
        return L
    def addd(x):
        return [f"v_dot2c_f32_bf16 v{gA+k}, v{x+k//2}, v{vHI if k & 1 else vLO}" for k in range(16)]
    ld = lambda k: [f"buffer_load_dwordx4 {vr(gR+8*k+4*h, 4)}, v{vGM}, s[36:39], s{50+k} offen offset:{1024*h} sc1" for h in range(2)]
    def base(mid=None):
        for i in range(4): a(f"ds_read_b128 {vr(gA+4*i, 4)}, v{vGT} offset:{i*1024}")
        for h in range(2): a(f"ds_read_b128 {vr(gY+4*h, 4)}, v{vXD} offset:{16*h}")
        a("s_waitcnt lgkmcnt(0)")
        if mid: a(mid)
        for x in addd(gY+8) + addd(gY): a(x)
    def process(k):
        if k == 6: a("s_waitcnt vmcnt(0)"); w.stamp("gin")
        for q in range(0, 8, 2): a(f"v_add3_u32 v{vGC}, v{vGC}, v{gR+8*k+q}, v{gR+8*k+q+1}")
        L = addd(gR + 8*k)
        if k == 6:
            for x in w.wsum(vGC) + [f"v_readlane_b32 s59, v{vGC}, 63"]:
                a(L.pop(0)); a(L.pop(0)); a(x)
        for x in L: a(x)
    w.npre = 0
    w.stamp("gstart")
    a("s_mov_b32 s31, 0\ns_waitcnt vmcnt(0)")
    for k in range(7):
        a(f"s_cmp_lg_u32 s{9+2*k}, s26\ns_cbranch_scc1 g_wait{k}\ng_go{k}:")
        w.ool += re.sub(r"\bg_", f"g{role}_", f"""g_wait{k}:
s_waitcnt lgkmcnt(0)
s_cmp_eq_u32 s{9+2*k}, s26
s_cbranch_scc1 g_go{k}
s_sub_u32 s{sSPIN}, s{sSPIN}, 1
s_cmp_le_i32 s{sSPIN}, 0
s_cbranch_scc1 g_go{k}
s_call_b64 s[58:59], g_idle
s_branch g_wait{k}""").split("\n")
        for x in ld(k): a(x)
        if k + 1 == cfg.FP: a(POLL)
    w.stamp("gall")
    a("s_mul_i32 s30, s26, 7")
    for i in range(7): a(f"s_sub_u32 s30, s30, s{8+2*i}")
    a(f"""s_cmp_lg_u32 s31, 0
s_cbranch_scc1 g_sum
g_ownw:
ds_read_b32 v{gT}, v{vOF}
s_sub_u32 s{sSPIN}, s{sSPIN}, 1
s_cmp_le_i32 s{sSPIN}, 0
s_waitcnt lgkmcnt(0)
s_cbranch_scc1 g_redo
v_cmp_eq_u32 vcc, 0, v{gT}
s_cbranch_vccnz g_ownw
g_redo:""")
    base()
    a("g_sum:")
    for k in range(7): process(k)
    a("s_add_u32 s59, s59, s30\ns_cmp_lg_u32 s59, 0\ns_cbranch_scc1 g_fail\ng_done:")
    a("s_waitcnt lgkmcnt(0)")
    for h in range(2):
        for i in range(4*h, 4*h+4): a(f"v_cvt_pk_bf16_f32 v{gA+i}, v{gA+2*i}, v{gA+2*i+1}")
        a(f"ds_write_b128 v{vTW}, {vr(gA+4*h, 4)} offset:{16*h}")
    for u in range(2): a(f"ds_read_b128 {vr(gA+8+4*u, 4)}, v{vTR} offset:{u*1280}")
    for u in range(2): a(f"buffer_store_dwordx4 {vr(gA+8+4*u, 4)}, v{vGO}, s[44:47], s{57 if u else 60} offen {cfg.OSC.replace('_', ' ')}")
    w.stamp("gst")
    a(f"""s_lshl_b32 s59, s{sRB}, 3
s_add_u32 s59, s59, s{sJ}
s_lshl_b32 s59, s59, 3
s_add_u32 s59, s59, s3
s_cmp_lg_u32 s59, {2*8 + 7}
s_cbranch_scc1 g_exit
s_mov_b64 exec, 1
buffer_store_dword v{vGN}, v{vGM}, s[36:39], 0 offen sc1
s_mov_b64 exec, -1
g_exit:""")
    if cfg.prof: a("s_waitcnt vmcnt(0)"); w.stamp("gend"); w.stamps.append("gF")
    w.end()
    if cfg.prof: w.stamps.pop()
    a(f"g_fail:\ns_sub_u32 s{sSPIN}, s{sSPIN}, {1000 if cfg.prof else 64}\ns_cmp_le_i32 s{sSPIN}, 0\ns_cbranch_scc1 g_done")
    a(f"s_waitcnt lgkmcnt(0)\n{POLL}\nv_mov_b32 v{vGC}, 0")
    for k in range(7):
        for x in ld(k): a(x)
    a("s_waitcnt vmcnt(0) lgkmcnt(0)\ns_mul_i32 s30, s26, 7")
    for i in range(7): a(f"s_sub_u32 s30, s30, s{8+2*i}")
    a(f"""s_branch g_redo
g_idle:
s_cmp_lg_u32 s31, 0
s_cbranch_scc1 g_idle2
ds_read_b32 v{gT}, v{vOF}
s_waitcnt lgkmcnt(0)
v_cmp_eq_u32 vcc, 0, v{gT}
s_cbranch_vccnz g_idle2
s_mov_b32 s31, 1""")
    w.stamp("gF")
    base(POLL)
    a(f"s_setpc_b64 s[58:59]\ng_idle2:\n{POLL}\ns_setpc_b64 s[58:59]")
    return w

def touch_flags(w, cfg):
    if cfg.TOUCH: w.a(f"""s_cmp_gt_u32 s{sJ}, {cfg.JN}
s_subb_u32 s60, s{sJ}, 0
s_mul_i32 s61, s{sRB}, 7
s_add_u32 s60, s60, s61
s_lshl_b32 s61, s3, 8
s_add_u32 s60, s60, s61
s_lshl_b32 s60, s60, 7
s_add_u32 s60, s60, {XFL - 131072}
s_load_dword s26, s[{pWS}:{pWS+1}], s60 glc""")

def to_gather(w, cfg, role):
    assert 3 <= cfg.JN <= 5
    if role == 'M': w.a(f"s_cmp_eq_u32 s{sJ}, {cfg.JN}\ns_cbranch_scc1 gM_exit")
    w.a(f"s_branch gather_{role}")

def build_loader(role, cfg, comp):
    w = Wave("l" + role, cfg); a = w.a; E = role == 'E'
    vo = {2688: 2, 3584: 3, 896: 4}
    weight_srds(w, E); chunk_order(w, cfg, 50, 128, E)
    a(f"""s_sub_u32 s30, s3, 4
s_lshl_b32 s31, s30, 11
s_lshl_b32 s59, s30, 4
v_bfe_u32 v12, v0, 2, 3
v_add_u32 v12, s59, v12
v_lshrrev_b32 v13, 5, v0
v_lshlrev_b32 v13, 6, v13
v_and_b32 v14, 3, v0
v_lshl_add_u32 v13, v14, 4, v13""")
    for st, r in vo.items(): a(f"v_mul_u32_u24 v{r}, {st}, v12\nv_add_u32 v{r}, v{r}, v13")
    pf = Pf(w); ev = comp.ev; late = {}; first = []
    def at(k, fn): late.setdefault(k, []).append(fn)
    a(f"s_lshl_b32 s61, s{sG}, 1\ns_add_u32 s61, s61, s30")
    if E:
        first.append(pf.cols(36, None, 0, 3584, 2))
        if cfg.QT < 0: first.append(pf.cols(32, 48, 0, 2688, 4))
        else: at(cfg.QT, lambda: pf.cols(32, 48, 0, 2688, 4))
        at(ev['hw'] - cfg.PE2, lambda: pf.chunks(40, 4, 0, 7))
        if cfg.WOA: at(ev['hw'] - cfg.PE2, lambda: pf.chunks(44, 7, 0, cfg.WOA))
        if cfg.WOA < 7: at(ev['kvb'] - cfg.WOT, lambda: pf.chunks(44, 7, cfg.WOA, 7))
    else:
        first += [pf.cols(32, 49, 896, 2688, 4, 896), pf.cols(36, None, 0, 3584, cfg.W1A)]
        if cfg.W1A < 4: at(ev['xdead'] - cfg.PKD, lambda: pf.cols(36, None, cfg.W1A*128, 3584, 4 - cfg.W1A))
        if cfg.PK: at(ev['xdead'] - cfg.PKD, lambda: pf.chunks(40, 8, 0, cfg.PK))
        if cfg.PL > cfg.PK: at(ev['l0'] + cfg.L1D + cfg.PLD - 1, lambda: pf.chunks(40, 8, cfg.PK, cfg.PL))
        if cfg.PL < 7: at(ev['o'] - 1 - cfg.PHD, lambda: pf.chunks(40, 8, cfg.PL, 7))
    a(f"s_waitcnt lgkmcnt(0)\ns_add_u32 s{sNON}, s{sNON}, 1")
    w.stamp("rdy"); a("s_barrier"); w.stamp("start")
    for x in first: a(x)
    late = {k: [f() for f in v] for k, v in late.items()}
    touch_flags(w, cfg)
    if cfg.A2 >= 0: a("s_barrier")
    N = len(comp.groups); g = 0; ops = []
    for k, b in enumerate(comp.bars):
        while g < comp.iss[k]:
            m, kb, l = comp.groups[g]
            rs, st, base, lit = {'k': (32, 2688, 49, 896 + l*128), 'v': (32, 2688, 49, 1792 + l*128),
                                 'q': (32, 2688, 48, l*128), 'w1': (36, 3584, None, l*128),
                                 'w2': (40, 896, 50 + l, 0), 'wo': (44, 896, 50 + l, 0)}[m]
            for p in range(2):
                o = lit + (kb*32 + p*8)*st
                a(f"s_add_u32 m0, s31, {comp.addr[g] + p*1024}")
                a(f"s_mov_b32 s59, {o}" if base is None else f"s_add_u32 s59, s{base}, {o}")
                a(f"buffer_load_dwordx4 v{vo[st]}, s[{rs}:{rs+3}], s59 offen lds"); ops.append(g)
            g += 1
            if g in (comp.iss[0], 56, 112, N): w.stamp(f"iss{g}")
        for x in late.pop(k, []): a(x); ops.append(-1)
        assert cfg.G1 >= 1
        if k == comp.kN + 1 - cfg.G1: gather_stage1(w, cfg)
        a(f"s_waitcnt vmcnt({len(ops) - ops.index(b['need'] - 1) - 2})\ns_barrier")
        if k == comp.kN: ops += [-1]*gather_stage2(w, cfg); w.stamp("g0iss")
    assert not late
    assert comp.bars[-1]['need'] == N
    to_gather(w, cfg, role)
    return w

def build_proto(role, cfg, comp):
    w = Wave("p" + role, cfg); a = w.a; E = role == 'E'
    rWS_ = 52; NBAR = len(comp.bars)
    def tick_to(n):
        l = w.lab("tk"); a(f"{l}:\ns_cmp_ge_u32 s31, {n}\ns_cbranch_scc1 {l}x\ns_barrier\ns_add_u32 s31, s31, 1\ns_branch {l}\n{l}x:")
    def srd_w2():
        ffn_line0(w, 60); a(f"s_mul_i32 s60, s60, {64*896}"); srd(w, 40, pW2, 1605632, 60)
    def poll(start, lim, on):
        a(f"s_add_u32 s48, s{pWS}, s60\ns_addc_u32 s49, s{pWS+1}, 0\ns_and_b32 s50, s{sNON}, 0xff\ns_mul_i32 s50, s50, 0x01010101\ns_mov_b32 s51, s50")
        if cfg.TOUCH and on == 1:
            for i in range(4): a(f"s_load_dword s{sT}, s[48:49], {128*i} glc")
        tick_to(start)
        if on != 2: w.stamp("poll")
        if not on: return
        lp = w.lab("po"); a(f"s_waitcnt lgkmcnt(0)\n{lp}:")
        for i in range(4): a(f"s_load_dwordx4 s[{32+4*i}:{35+4*i}], s[48:49], {128*i} glc")
        l = w.lab("tw")
        a(f"{l}:\ns_cmp_ge_u32 s31, {lim}\ns_cbranch_scc1 {l}x\ns_barrier\ns_add_u32 s31, s31, 1\ns_getreg_b32 s{sT}, hwreg(HW_REG_IB_STS, 8, 4)\ns_cmp_lg_u32 s{sT}, 0\ns_cbranch_scc1 {l}\n{l}x:")
        a("s_waitcnt lgkmcnt(0)\ns_xor_b64 vcc, s[32:33], s[50:51]")
        for i in range(1, 8): a(f"s_xor_b64 s[32:33], s[{32+2*i}:{33+2*i}], s[50:51]\ns_or_b64 vcc, vcc, s[32:33]")
        w.retry(lp)
    def tick(lim):
        l = w.lab("tk"); a(f"s_cmp_ge_u32 s31, {lim}\ns_cbranch_scc1 {l}\ns_barrier\ns_add_u32 s31, s31, 1\n{l}:")
    a("s_sub_u32 s30, s3, 6\ns_mov_b32 s31, 0")
    srd(w, rWS_, pWS, WSZ)
    a(f"s_waitcnt lgkmcnt(0)\ns_add_u32 s{sNON}, s{sNON}, 1")
    touch_flags(w, cfg); a("s_barrier")
    if cfg.A2 >= 0: a("s_barrier")
    if E:
        l = w.lab("seen")
        tick_to(1)
        a(f"""s_cmp_lg_u32 s30, 0
s_cbranch_scc1 {l}
s_and_b32 s59, s{sJ}, 1
s_lshl_b32 s59, s59, 5
s_add_u32 s59, s59, s{sRB}
s_lshr_b32 s60, s59, 4
s_mul_i32 s60, s60, 112
s_add_u32 s59, s59, s60
s_add_u32 s59, s59, {NT2}
v_mov_b32 v2, s{sNON}
s_mov_b64 exec, 1
buffer_store_byte v2, v0, s[{rWS_}:{rWS_+3}], s59 offen sc1
s_mov_b64 exec, -1
{l}:""")
        a(f"""s_and_b32 s59, s{sJ}, 1
s_lshl_b32 s59, s59, 1
s_add_u32 s59, s59, s30
s_lshl_b32 s60, s59, 9
s_and_b32 s61, s{sRB}, {cfg.NREP-1}
s_mul_i32 s61, s61, 2304
s_add_u32 s60, s60, s61
s_add_u32 s60, s60, {NT1}
s_lshl_b32 s59, s59, 13
s_add_u32 s59, s59, {KVF}
s_mul_i32 s61, s30, {HALF}
s_add_u32 s61, s61, {STG + KVB}
v_lshlrev_b32 v3, 4, v0""")
        lim = comp.ev["kvr"] - 1
        poll(comp.ev["kvr"] - cfg.L2T, lim, cfg.L2N)
        w.stamp("l2go")
        for h in range(2):
            a(f"s_add_u32 m0, s61, {h*4096}\ns_add_u32 s58, s59, {h*4096}")
            for i in range(4): a(f"buffer_load_dwordx4 v3, s[{rWS_}:{rWS_+3}], s58 offen offset:{i*1024} sc1 lds")
        tick_to(lim)
        a("s_waitcnt vmcnt(0)")
        w.stamp("l2in")
    else:
        fin, fin2 = w.lab("fin"), w.lab("fin")
        a(f"""s_sub_u32 s59, s{sJ}, 2
s_cmp_lt_u32 s59, 4
s_cselect_b32 s56, s30, 0
s_cmp_eq_u32 s{sJ}, 1
s_cselect_b32 s59, 0, s{sJ}
s_add_u32 s59, s59, s30
s_lshl_b32 s59, s59, 5
s_add_u32 s61, s59, s{sRB}
s_lshr_b32 s59, s61, 4
s_lshl_b32 s60, s59, 9
s_add_u32 s60, s60, {NT0}
s_mul_i32 s24, s59, 112
s_add_u32 s24, s24, s61
s_add_u32 s24, s24, {NT1}
s_lshl_b32 s59, s59, 17
s_and_b32 s58, s61, 15
s_lshl_b32 s58, s58, 7
s_add_u32 s59, s59, s58
s_add_u32 s59, s59, {KVP}
s_lshl_b32 s61, s61, 7
s_add_u32 s61, s61, {KVF}
v_lshrrev_b32 v20, 3, v0
v_lshlrev_b32 v20, 11, v20
v_and_b32 v33, 7, v0
v_lshl_add_u32 v20, v33, 4, v20
v_lshlrev_b32 v13, 4, v0
v_mul_u32_u24 v14, 2304, v0
s_and_b32 s58, s{sNON}, 0xffff
v_mov_b32 v12, s58
s_mov_b32 s58, 0xffff0000""".replace("s24", "s15"))
        for i in range(1, 8): a(f"v_add_u32 v{20+i}, 16384, v{19+i}")
        poll(comp.ev["l0"] + cfg.L1D, NBAR, 0)
        a(f"s_cmp_lg_u32 s56, {7 if cfg.noL1 else 0}\ns_cbranch_scc1 {fin}")
        w.stamp("l1go")
        lp = w.lab("l1_"); a(f"{lp}:")
        for i in range(8): a(f"buffer_load_dwordx4 {vr(64+4*i, 4)}, v{20+i}, s[{rWS_}:{rWS_+3}], s59 offen sc1")
        tick(NBAR)
        A = 96
        for k in range(3): a(f"v_lshlrev_b32 v{A+k}, 16, v{64+k}")
        for k in range(4): a(f"v_and_b32 v{A+4+k}, s58, v{64+k}")
        a(f"v_mov_b32 v{A+3}, 0\nv_xor_b32 v3, v67, v12")
        for i in range(1, 8):
            R = 64 + 4*i
            a(f"v_xor_b32 v10, v{R+3}, v12\nv_or_b32 v3, v3, v10")
            for k in range(3): a(f"v_lshlrev_b32 v{104+k}, 16, v{R+k}")
            for k in range(4): a(f"v_and_b32 v{R+k}, s58, v{R+k}")
            for k in range(3): a(f"v_add_f32 v{A+k}, v{A+k}, v{104+k}")
            for k in range(4): a(f"v_add_f32 v{A+4+k}, v{A+4+k}, v{R+k}")
        a("v_and_b32 v3, 0xffff, v3\nv_cmp_ne_u32 vcc, 0, v3")
        for k in range(0, 8, 2): a(f"v_permlane16_swap_b32 v{A+k}, v{A+k+1}")
        w.retry(lp)
        w.stamp("l1ok")
        for k in range(0, 8, 2): a(f"v_add_f32 v{A+k}, v{A+k}, v{A+k+1}")
        for k in (0, 4): a(f"v_permlane32_swap_b32 v{A+k}, v{A+k+2}")
        for k in (0, 4): a(f"v_add_f32 v{A+k}, v{A+k}, v{A+k+2}")
        for k in (0, 4): a(f"v_add_f32_dpp v{A+k}, v{A+k}, v{A+k} row_ror:8 row_mask:0xf bank_mask:0xf")
        a(f"""v_cvt_pk_bf16_f32 v64, v{A}, v{A+4}
v_cvt_pk_bf16_f32 v65, v{A}, v{A+4}
v_permlane16_swap_b32 v64, v65
v_mov_b32 v66, v64
v_mov_b32 v67, v65
v_permlane32_swap_b32 v64, v66
v_permlane32_swap_b32 v65, v67
v_and_or_b32 v67, v67, s58, v12
s_mov_b64 exec, 0xff
buffer_store_dwordx4 v[64:67], v13, s[{rWS_}:{rWS_+3}], s61 offen sc1
s_mov_b32 exec_lo, {hex((1 << cfg.NREP)-1)}
buffer_store_byte v12, v14, s[{rWS_}:{rWS_+3}], s15 offen sc1
s_mov_b64 exec, -1""")
        w.stamp("l1st")
        a(f"s_branch {fin2}\n{fin}:")
        if role == 'M':
            a(f"s_lshl_b32 s59, s{sRB}, 3\ns_add_u32 s59, s59, s{sJ}\ns_cmp_lg_u32 s59, 2\ns_cbranch_scc1 {fin2}\ns_mov_b32 s60, {NT2}")
            poll(0, NBAR, 2)
        a(f"{fin2}:")
    mp = cfg.MPE if E else cfg.MP; kS = max(comp.kN, NBAR - 2)
    if mp >= 0:
        a(f"s_cmp_eq_u32 s30, 0\ns_cselect_b32 s59, {comp.ev['o'] + mp}, {comp.kN + 1 - cfg.G1}")
        tick_to("s59")
    else: tick_to(comp.kN + 1 - cfg.G1)
    a("s_waitcnt vmcnt(0)")
    gather_stage1(w, cfg)
    if mp >= 0:
        l = w.lab("mp")
        a(f"""s_cmp_lg_u32 s30, 0
s_cbranch_scc1 {l}x
s_cmp_eq_u32 s{sJ}, {cfg.JN}
s_cselect_b32 s56, 0, 0x7f
s_sub_u32 s52, s61, 4096
v_lshlrev_b32 v2, 7, v0
{l}:
s_cmp_ge_u32 s31, {kS}
s_cbranch_scc1 {l}x
s_barrier
s_add_u32 s31, s31, 1""")
        ready_mask(a)
        a(f"""s_cbranch_scc0 {l}n
s_ff1_i32_b32 s59, s57
s_bitset0_b32 s56, s59
s_lshl_b32 s59, s59, 13
s_add_u32 s59, s59, s52
buffer_load_dword v3, v2, s[36:39], s59 offen sc1
{l}n:
s_getreg_b32 s59, hwreg(HW_REG_IB_STS, 8, 4)
s_cmp_gt_u32 s59, 0
s_cbranch_scc1 {l}
s_cmp_ge_u32 s31, {kS - 1}
s_cbranch_scc1 {l}
s_load_dwordx16 s[8:23], s[48:49], 0 glc
s_branch {l}
{l}x:""")
    tick_to(kS + 1)
    gather_stage2(w, cfg); w.stamp("g0iss")
    tick_to(NBAR)
    to_gather(w, cfg, role)
    return w

def build(cfg, verbose=False):
    G = cfg.G; ns = 32 // G; ncg = 8 // ns; lg = lambda n: n.bit_length() - 1
    e = Wave("e", cfg); a = e.a; nr = 448 // G
    a("s_cmp_ge_u32 s2, 256\ns_cbranch_scc1 kernel_exit")
    a("s_load_dwordx16 s[8:23], s[0:1], 0\ns_load_dwordx4 s[24:27], s[0:1], 64\ns_load_dwordx2 s[28:29], s[0:1], 80")
    if cfg.prof or cfg.amp >= 0: a(f"s_memrealtime s[64:65]\ns_mem{'real' if cfg.prof == 2 else ''}time s[100:101]")
    pm = "s_mov_b32 s62, s100\n" if cfg.prof else ""
    disp = lambda n: f"{pm}s_cmp_gt_u32 s46, 1\ns_cbranch_scc1 {n}_M\ns_cmp_eq_u32 s46, 0\ns_cbranch_scc1 {n}_E\ns_branch {n}_N"
    a(f"""v_lshrrev_b32 v1, 6, v0
v_and_b32 v0, 63, v0
v_readfirstlane_b32 s3, v1
s_and_b32 s30, s2, 7
s_lshr_b32 s31, s2, 3
s_and_b32 s{sJ}, s30, {ncg-1}
s_lshl_b32 s{sJ}, s{sJ}, {lg(ns)}
s_and_b32 s{sT}, s31, {ns-1}
s_add_u32 s{sJ}, s{sJ}, s{sT}
s_lshl_b32 s{sJ}, s{sJ}, 2
s_lshr_b32 s{sJ}, {hex(cfg.JMAP)}, s{sJ}
s_and_b32 s{sJ}, s{sJ}, 7
s_lshr_b32 s{sG}, s31, {lg(ns)}
s_sub_u32 s46, 7, s{sJ}
s_min_u32 s46, s46, s{sJ}
s_cmp_lg_u32 s3, 7
s_cbranch_scc1 nocodepf
s_getpc_b64 s[32:33]
codepf_pc:
s_cmp_eq_u32 s46, 0
s_mov_b32 s59, role_M_start-codepf_pc
s_cselect_b32 s59, role_E_start-codepf_pc, s59
s_mov_b32 s34, role_M_end-role_M_start
s_cselect_b32 s34, role_E_end-role_E_start, s34
s_cmp_eq_u32 s46, 1
s_cselect_b32 s59, role_N_start-codepf_pc, s59
s_cselect_b32 s34, role_N_end-role_N_start, s34
s_add_u32 s32, s32, s59
s_addc_u32 s33, s33, 0
s_and_b32 s33, s33, 0xffff
s_mov_b32 s35, 0x20000
s_lshl_b32 s59, s{sG}, 7
v_mul_u32_u24 v2, {G*128}, v0
buffer_load_dword v39, v2, s[32:35], s59 offen
nocodepf:
s_lshr_b32 s{sRB}, s30, {lg(ncg)}
s_lshl_b32 s{sRB}, s{sRB}, {lg(G)}
s_add_u32 s{sRB}, s{sRB}, s{sG}
s_mov_b32 s{sSPIN}, {cfg.spin}
s_cmp_ge_u32 s3, 4
s_cbranch_scc1 helpers
v_lshrrev_b32 v4, 3, v0
v_and_b32 v5, 7, v0
v_mul_u32_u24 v6, 896, v4
v_lshl_add_u32 v6, v5, 4, v6
s_lshr_b32 s{sR}, s3, 1
s_and_b32 s{sC}, s3, 1
s_and_b32 s45, s{sJ}, {cfg.XROT}
s_lshl_b32 s59, s{sRB}, 2
s_add_u32 s59, s59, s3
s_lshl_b32 s59, s59, 1
s_add_u32 s59, s59, s45
s_xor_b32 s60, s59, 1
s_mul_i32 s59, s59, {8*896}
s_mul_i32 s60, s60, {8*896}
s_mov_b32 s34, 1835008
s_mov_b32 s35, 0x20000
s_waitcnt lgkmcnt(0)
s_mov_b32 s32, s{pX}
s_and_b32 s33, s{pX+1}, 0xffff""")
    for i in range(7): a(f"buffer_load_dwordx4 {vr(ACC[0] + 4*i, 4)}, v6, s[{rX}:{rX+3}], s59 offen offset:{i*128}")
    a(f"""s_load_dword s{sNON}, s[{pWS}:{pWS+1}], 0
s_mov_b32 s15, s60
s_lshl_b32 s44, s45, 8
s_sub_u32 s44, 128, s44
s_mul_i32 s59, s{sR}, {HALF}
s_lshl_b32 s60, s{sC}, 8
s_add_u32 s59, s59, s60
s_lshl_b32 s60, s45, 7
s_add_u32 s59, s59, s60
s_add_u32 s59, s59, {STG}
v_mul_u32_u24 v{vXW}, 528, v5
v_lshl_add_u32 v{vXW}, v4, 4, v{vXW}
v_add_u32 v{vXW}, s59, v{vXW}
{disp("comp")}""")
    xl = [x for x in e.ins if x.kind == 'vm_l' and ('v', 39) not in x.wr]
    a(f"helpers:\ns_lshl_b32 s59, s3, 8\ns_sub_u32 s59, s59, 1024\nv_lshl_add_u32 v{vOF}, v0, 2, s59\nv_mov_b32 v2, 0\nds_write_b32 v{vOF}, v2\ns_waitcnt lgkmcnt(0)\ns_load_dword s{sNON}, s[{pWS}:{pWS+1}], 0")
    srd(e, 32, pQKV, 1204224)
    a("s_cmp_ge_u32 s3, 6\ns_cbranch_scc1 protos")
    a(disp("load") + "\nprotos:")
    a(f"""s_cmp_eq_u32 s3, 6
s_cselect_b32 s36, s{pB1}, s{pB2}
s_cselect_b32 s37, s{pB1+1}, s{pB2+1}
s_cselect_b32 s38, 28, 7
s_lshl_b32 s38, s38, 7
s_and_b32 s37, s37, 0xffff
s_mov_b32 s39, 0x20000
v_lshlrev_b32 v2, 11, v0
s_lshl_b32 s59, s{sG}, 7
buffer_load_dword v38, v2, s[36:39], s59 offen""")
    a(disp("proto"))
    info = {}; texts = {}
    for role in 'MNE':
        c = Compute(role, cfg); c.ins = list(xl); npre = len(c.ins)
        c.build()
        st = []; m, o = c.finish(st); texts['c' + role] = (m[npre:], o); info['c' + role] = c.stamps
        if verbose:
            print(role, "compute instrs", len(m), "nops", len(st), sum(p for p, _ in st), "barriers", len(c.bars), "est", int(sum(b['t'] for b in c.bars)), file=sys.stderr)
            if verbose > 1: print(" ".join(f"{int(b['t'])}:{b['need']}/{i}" for b, i in zip(c.bars, c.iss)), file=sys.stderr)
        gw = build_gather(cfg, role); m, o = gw.finish(); texts['g' + role] = (m[gw.npre:], o)
        for k, wv in (('l', build_loader(role, cfg, c)), ('p', build_proto(role, cfg, c))):
            texts[k + role] = wv.finish(); assert len(wv.stamps) <= 8
            info[k + role] = wv.stamps + ['-']*(8-len(wv.stamps)) + gw.stamps[8:] if cfg.prof else []
    out = e.finish()[0]
    lab = dict(c='comp', l='load', p='proto', g='gather')
    def sect(k): return [".p2align 6", f"{lab[k[0]]}_{k[1]}:"] + texts[k][0] + texts[k][1]
    out += ["kernel_exit:", "s_endpgm"]
    for r in 'MNE': out += [".p2align 7", f"role_{r}_start:"] + sect('p'+r) + sect('l'+r) + sect('c'+r) + sect('g'+r) + [f"role_{r}_end:"]
    head = f"""; fused LayerNorm + linear attention + squared-ReLU FFN, one launch of 256 workgroups x 8 waves (generated by my own script)
; @launch grid=(256,1,1) block=(512,1,1) lds=163840
.amdgcn_target "amdgcn-amd-amdhsa--gfx950"
.text
.globl {NAME}
.p2align 8
.type {NAME},@function
{NAME}:
"""
    tail = f"""
.section .rodata,"a"
.p2align 6
.amdhsa_kernel {NAME}
  .amdhsa_next_free_vgpr 256
  .amdhsa_next_free_sgpr 102
  .amdhsa_accum_offset 256
  .amdhsa_group_segment_fixed_size 0
  .amdhsa_kernarg_size 88
  .amdhsa_user_sgpr_count 2
  .amdhsa_user_sgpr_kernarg_segment_ptr 1
  .amdhsa_system_sgpr_workgroup_id_x 1
.end_amdhsa_kernel
"""
    return head + "\n".join(out) + tail, info

if __name__ == "__main__":
    import json
    kw = {}
    for x in sys.argv[2:]:
        k, v = x.split("="); kw[k] = int(v, 0) if v.lstrip("-")[0].isdigit() else v
    t, info = build(Cfg(**kw), 2)
    open(sys.argv[1], "w").write(t)
    json.dump(dict(info=info, G=Cfg(**kw).G, JMAP=Cfg(**kw).JMAP, spin=Cfg(**kw).spin), open(sys.argv[1] + ".json", "w"))
```

```python
import sys, struct, re
sys.path.insert(0, 'work')
from dsl import *
NAME = "parallel_sum__linear_attn_block__dense_activation_squared_relu__prompt_kernel"
f2h = lambda f: hex(struct.unpack("<I", struct.pack("<f", f))[0])
OOB = 0x80000000
STG, HALF, RING, NSLOT = 4096, 30720, 65536, 24
HOFF, OOFF = 0, 16384
KVP, KVF, NT0, XP, PROF, WSZ = 1 << 20, 5 << 20, (5 << 20) + 65536, 6 << 20, 32 << 20, 64 << 20
MSG = 2048
NT2 = NT0
NT1 = NT0 + 16384
XFL = 22 << 20
KVB = 8192
sNON = 14
sJ, sRB, sG, sT = 4, 5, 6, 7
pX, pQKV, pWO, pW1, pB1, pW2, pB2, pOUT, pDBG, pWS = 8, 10, 12, 16, 18, 20, 22, 24, 26, 28
sSPIN = 63
SPINMAX = 1 << 12

class Cfg:
    G = 16; JN = 3; BASE_N = 3; SP = 5; TAILE = 4; G1 = 1; MP = 2; MPE = 0; DTE = 800; XM = 0; XH = 4; HOLD = 0; HOLD0 = 1; FAST = 5; DTN = 0; GM = 1; JMAP = 0x74652130; W1A = 4; PK = 0; PL = 4; PLD = 1; PHD = 1; QT = 0; WOA = 0; WOT = 8; OSC = ''; FP = 1; KF = 3; TLB = 0; NPRE = 30; BA = 1; EPF = 1; X5 = ''; X16 = ''; PADB = 1024; GK = 0; A2E = 3; LB = 1; MPX = 4; LAG = 3; FF = 4; LP = 2; X1 = 0; X3 = 0; X4 = 0; PKD = 0; HWS = 11; NREP = 8; STM = 850; STE = 650; WOG = 1; FREE = 0; RCAP = 7; TAILM = 0; XS = 1; PE2 = 1; INITE = 11; L2T = 1; PSL = 0; XROT = 0; dbgst = 0; noL1 = 0; spin = 30000; D = 4; NB = 5; CH = 4; LA = 7; FILL = 2; prof = 0
    pf = 1; amp = -1; ampk = 10; ampl = ''; ampx = -1; L1D = 8; L1T = 0; PLN = 2; LD = 1; OP = 1; L1N = 0; A2 = 3; L2N = 0; TOUCH = 1; GT = 73; INIT = 11; W2 = 1; QFILL = 4
    def __init__(self, **kw):
        for k, v in kw.items():
            assert hasattr(Cfg, k), k
            setattr(self, k, v)

def srd(w, d, p, nbytes, off=None):
    if off is None:
        w.a(f"s_mov_b32 s{d}, s{p}\ns_and_b32 s{d+1}, s{p+1}, 0xffff\ns_mov_b32 s{d+2}, {nbytes}")
    else:
        w.a(f"s_add_u32 s{d}, s{p}, s{off}\ns_addc_u32 s{d+1}, s{p+1}, 0\ns_and_b32 s{d+1}, s{d+1}, 0xffff\ns_sub_u32 s{d+2}, {nbytes}, s{off}")
    w.a(f"s_mov_b32 s{d+3}, 0x20000")

class Wave(W):
    def __init__(self, name, cfg):
        super().__init__(name); self.cfg = cfg; self.stamps = []
    def stamp(self, label):
        if self.cfg.amp >= 0 and label == self.cfg.ampl: self.a("s_memrealtime s[72:73]"); self.amped = True
        if self.cfg.prof in (1, 2) and len(self.stamps) < 17 and label not in ("hw", "setup") and not (self.cfg.GK and label in ("gin", "gst")):
            k = 66 + 2*len(self.stamps); self.stamps.append(label); self.a(f"s_mem{'real' if self.cfg.prof == 2 else ''}time s[{k}:{k+1}]")
    def retry(self, label):
        x = self.lab("giveup")
        self.a(f"s_cbranch_vccz {x}\ns_sub_u32 s{sSPIN}, s{sSPIN}, 1\ns_cmp_gt_i32 s{sSPIN}, 0\ns_cbranch_scc1 {label}\n{x}:")
    def ampcalc(self):
        if self.cfg.ampl == 'retry': return f"s_sub_u32 s68, {self.cfg.spin}, s{sSPIN}\ns_mul_i32 s68, s68, 100"
        if self.cfg.ampl != 'skew': return "s_sub_u32 s68, s72, s64"
        return "s_load_dwordx8 s[72:79], s[26:27], 0 glc\ns_waitcnt lgkmcnt(0)\ns_mov_b32 s68, s72\ns_mov_b32 s69, s72\n" + "\n".join(f"s_max_u32 s68, s68, s{72+i}\ns_min_u32 s69, s69, s{72+i}" for i in range(1, 8)) + f"\ns_sub_u32 s68, s{68 if self.cfg.ampx < 0 else 72 + self.cfg.ampx}, s69\ns_add_u32 s68, s68, 5"
    def wsum(self, v):
        L = [f"v_add_u32_dpp v{v}, v{v}, v{v} row_ror:{k} row_mask:0xf bank_mask:0xf" for k in (8, 4, 2, 1)]
        L += [f"v_add_u32_dpp v{v}, v{v}, v{v} row_bcast:15 row_mask:0xa bank_mask:0xf", f"v_add_u32_dpp v{v}, v{v}, v{v} row_bcast:31 row_mask:0xc bank_mask:0xf"]
        return L
    def end(self):
        if self.cfg.prof:
            self.a("s_memrealtime s[100:101]\ns_waitcnt vmcnt(0) lgkmcnt(0)")
            srd(self, 32, pWS, WSZ)
            self.a(f"s_lshl_b32 s{sT}, s2, 3\ns_add_u32 s{sT}, s{sT}, s3\ns_lshl_b32 s{sT}, s{sT}, 7\ns_add_u32 s{sT}, s{sT}, {PROF}")
            self.a("v_mov_b32 v1, 0\ns_mov_b64 exec, 1")
            vals = [64, 100, 62, sSPIN] + [66 + 2*i for i in range(len(self.stamps))] if self.cfg.prof < 3 else [64, 100]
            for i, s in enumerate(vals):
                self.a(f"v_mov_b32 v2, s{s}\nbuffer_store_dword v2, v1, s[32:35], s{sT} offen offset:{4*i}")
        if self.cfg.amp >= 0 and (getattr(self, 'amped', False) or (self.cfg.ampl in ('karg', 'pre1', 'x0', 'x1', 'skew', 'retry') and self.name[0] == 'c')):
            x = self.lab("amp")
            self.a(f"""s_waitcnt vmcnt(0)
s_cmp_lg_u32 s2, {self.cfg.amp}
s_cbranch_scc1 {x}e
s_memrealtime s[66:67]
s_waitcnt lgkmcnt(0)
{self.ampcalc()}
s_min_u32 s68, s68, 20000
s_mul_i32 s68, s68, {self.cfg.ampk}
{x}:
s_memrealtime s[70:71]
s_waitcnt lgkmcnt(0)
s_sub_u32 s69, s70, s66
s_cmp_lt_u32 s69, s68
s_cbranch_scc1 {x}
{x}e:""")
        self.a("s_endpgm")

def chunk_order(w, cfg, dst, mul, E):
    w.a(f"s_add_u32 s{sT}, s{sJ}, 1\ns_cmp_gt_u32 s{sJ}, {cfg.JN}\ns_cselect_b32 s{sT}, s{sJ}, s{sT}")
    w.a(f"s_cmp_eq_u32 s{sJ}, {cfg.JN}\ns_cselect_b32 s{sT}, {cfg.BASE_N}, s{sT}")
    if E:
        assert 1 <= cfg.JN <= 6
        w.a(f"s_cmp_eq_u32 s{sJ}, 0")
        for t in range(7): w.a(f"s_mov_b32 s{dst+t}, {t*mul}\ns_cselect_b32 s{dst+t}, {(6-t)*mul}, s{dst+t}")
        return
    for t in range(7):
        w.a(f"s_cmp_ge_u32 s{sT}, 7\ns_cselect_b32 s{sT}, 0, s{sT}\ns_mul_i32 s{dst+t}, s{sT}, {mul}")
        if t < 6: w.a(f"s_add_u32 s{sT}, s{sT}, 1")

def chunk_seq(cfg, j):
    if j == 0: return [6-t for t in range(7)]
    if j == 7: return list(range(7))
    b = cfg.BASE_N if j == cfg.JN else (j if j > cfg.JN else j+1)
    return [(b+t) % 7 for t in range(7)]
def slot_table(cfg):
    pos = [[7]*7 for _ in range(8)]
    for c in range(7):
        arr = []
        for j in range(8):
            t = chunk_seq(cfg, j).index(c)
            if t == 6 and j != cfg.JN: continue
            arr.append(((cfg.DTE + cfg.STE*(t+1)) if j in (0, 7) else cfg.STM*max(t, 0.5) + j + (cfg.DTN if j in (1, 6) else 0), j, t))
        assert len(arr) == 7
        for k, (_, j, t) in enumerate(sorted(arr)): pos[j][t] = k
    return pos

def ffn_line0(w, d):
    w.a(f"s_lshl_b32 s{d}, s{sJ}, 2\ns_sub_u32 s{d}, s{d}, 2\ns_max_i32 s{d}, s{d}, 0")

def make_groups(role):
    g = []
    if role != 'E':
        for m in 'kv': g += [(m, kb, l) for kb in range(14) for l in range(2)]
        for t in range(4): g += [('w1', kb, t) for kb in range(14)]
        g += [('w2', kb, 0) for kb in range(6)] + [('w2', kb, 1) for kb in range(6)]
        g += [('w2', kb, 0) for kb in (6, 7)] + [('w2', kb, 1) for kb in (6, 7)]
        for t in range(2, 7): g += [('w2', kb, t) for kb in range(8)]
    else:
        for t in range(2): g += [('w1', kb, t) for kb in range(14)]
        for kb in range(14): g += [('q', kb, l) for l in range(4)]
        for kb in range(4): g += [('w2', kb, t) for t in range(7)]
        for t in range(7): g += [('wo', kb, t) for kb in range(7)]
    return g

vLANE, vT0, vT1, vT2 = 0, 1, 2, 3
vBA, vBB = 4, 6
vXW, vXR, vFR, vFW = 8, 9, 10, 11
vKVA, vHA, vOA, vPA = 12, 14, 16, 18
vOWA, vOWB = 18, 19
vMSG, vFOFF, vCK, vNON, vXP, vEM, vTAG, vONES = 20, 21, 22, 23, 24, 25, 26, 27
vQA = 28; vB = 36; T8 = 56
XF = 64; ACC = [176 + 16*i for i in range(5)]
sR, sC, sMSG, sOWN, sL2E, sEPS, sMASK = 30, 31, 48, 55, 56, 57, 58
rX, rWS, rAUX = 32, 36, 40

class Job:
    def __init__(s, acc, act, g, sub, base, wfirst, first=False, span=1, pre=None, fill=None):
        s.acc, s.act, s.g, s.sub, s.base, s.wfirst, s.first, s.span, s.pre, s.fill = acc, act, g, sub, base, wfirst, first, span, pre or [], fill
class Code:
    def __init__(s, fn, fence=True): s.fn, s.fence = fn, fence
class Fill:
    def __init__(s, items, delay=2): s.items, s.delay = items, delay
class Flush: pass
SKIP = "SKIP"

def est_time(ins):
    t = 0; mf = 0; st = 0
    for x in ins:
        if x.kind in ('label', 'comment'): continue
        if x.kind == 'mfma': t = max(t, mf); mf = t + 34; t += 10
        elif x.kind == 'ds_w': t += 70 if '128' in x.op else 35
        elif x.kind == 'vm_s': t += 12; st += 31*4 if x.wide else 12
        elif x.kind == 'vm_l': t += 12; st += 18*4
        elif x.kind == 'ds_r': t += 7
        elif x.note == 'trans': t += 8
        else: t += 4.6
    return t, st

def tile_addr(w, dst, col):
    w.a(f"""v_lshrrev_b32 v{vT0}, 6, v{col}
v_lshl_add_u32 v{dst}, v{vT0}, 12, v{vT1}
v_bfe_u32 v{vT0}, v{col}, 5, 1
v_lshl_add_u32 v{dst}, v{vT0}, 9, v{dst}
v_and_b32 v{vT0}, 31, v{col}
v_lshl_add_u32 v{dst}, v{vT0}, 1, v{dst}
v_add_u32 v{dst+1}, 0x10000, v{dst}""")
def head_addr(w, dst):
    c = T8 + 4
    w.a(f"""v_add_u32 v{c}, s45, v{vT2}
v_cmp_le_u32 vcc, s44, v{c}
v_subrev_u32 v{c+1}, 32, v{c}
v_cndmask_b32 v{c}, v{c}, v{c+1}, vcc""")
    tile_addr(w, dst, c)
def common_setup(w):
    a = w.a; c = T8 + 4
    a(f"""s_mul_i32 s59, s{sR}, {HALF}
s_add_u32 s59, s59, {STG}
s_lshl_b32 s61, s{sC}, 8
s_add_u32 s61, s61, s59
v_mul_u32_u24 v{vXW}, 528, v5
v_lshl_add_u32 v{vXW}, v4, 4, v{vXW}
v_add_u32 v{vXW}, s61, v{vXW}
v_mov_b32 v{vONES}, 0x3f803f80
v_lshlrev_b32 v{vMSG}, 4, v{vLANE}
v_add_u32 v{vFR}, s59, v{vMSG}
s_lshl_b32 s61, s{sC}, 11
v_add_u32 v{vFW}, s61, v{vFR}
v_lshrrev_b32 v{vT0}, 5, v{vLANE}
v_lshl_add_u32 v{vXR}, v{vT0}, 4, v{vFR}
v_lshlrev_b32 v{vT1}, 10, v{vT0}
v_bfe_u32 v{vT0}, v{vLANE}, 2, 2
v_lshl_add_u32 v{vT1}, v{vT0}, 6, v{vT1}
v_add_u32 v{vT1}, {RING}, v{vT1}
v_bfe_u32 v{vT0}, v{vLANE}, 4, 1
v_and_b32 v{vT2}, 3, v{vLANE}
v_lshl_add_u32 v{vT2}, v{vT0}, 2, v{vT2}
v_lshlrev_b32 v{vT2}, 2, v{vT2}
s_lshl_b32 s59, s{sJ}, 2
s_lshr_b32 s45, 0x42345600, s59
s_and_b32 s45, s45, 15
s_lshl_b32 s45, s45, 3
s_min_u32 s59, s46, 2
s_lshr_b32 s59, 112, s59
s_mul_i32 s59, s59, s{sC}
s_add_u32 s45, s45, s59
s_cmp_eq_u32 s46, 0
s_cselect_b32 s44, 2, 1
s_lshl_b32 s44, s44, 7""")
    head_addr(w, vQA); a("s_add_u32 s45, s45, 28"); head_addr(w, vQA + 2)
    a(f"""s_lshl_b32 s59, s{sC}, 9
v_and_b32 v{c}, 2, v{vLANE}
v_lshl_add_u32 v{c}, v{c}, 2, v{vT1}
v_add_u32 v{c}, s59, v{c}
v_and_b32 v{c+1}, 1, v{vLANE}
v_and_b32 v{vT0}, 16, v{vLANE}
v_lshl_add_u32 v{vHA}, v{c+1}, 4, v{c}
v_lshl_add_u32 v{vHA}, v{vT0}, 1, v{vHA}
v_add_u32 v{vHA+1}, 0x10000, v{vHA}
v_lshl_add_u32 v{vOA}, v{c+1}, 5, v{c}
v_add_u32 v{vOA}, v{vT0}, v{vOA}
v_add_u32 v{vOA+1}, 0x10000, v{vOA}""")
    ffn_line0(w, 61); c = vB
    a(f"s_lshl_b32 s59, s61, 7\ns_lshl_b32 s61, s{sC}, 6\ns_add_u32 s59, s59, s61"); srd(w, rAUX, pB1, 3584, 59)
    a(f"""v_and_b32 v{c}, 19, v{vLANE}
v_bfe_u32 v{c+1}, v{vLANE}, 2, 1
v_lshl_add_u32 v{c}, v{c+1}, 3, v{c}
v_bfe_u32 v{c+1}, v{vLANE}, 3, 1
v_lshl_add_u32 v{c}, v{c+1}, 2, v{c}
v_lshrrev_b32 v{c+1}, 5, v{vLANE}
v_lshlrev_b32 v{c+1}, 31, v{c+1}
v_lshl_add_u32 v{c}, v{c}, 1, v{c+1}""")
def layernorm(w):
    a = w.a; T = ACC[0] + 56
    a(f"s_mov_b32 s{sMASK}, 0xffff0000")
    for grp in range(2):
        X = ACC[0] + 28*grp; s1, s2 = T, T+1
        a(f"v_mov_b32 v{s1}, 0\nv_mov_b32 v{s2}, 0")
        for i in range(28): a(f"v_dot2c_f32_bf16 v{s1}, v{X+i}, v{vONES}\nv_dot2c_f32_bf16 v{s2}, v{X+i}, v{X+i}")
        w.stamp(f"x{grp}")
        if grp == 1:
            for t in range(4): a(f"buffer_load_ushort v{T8+t}, v{vB}, s[{rAUX}:{rAUX+3}], 0 offen offset:{t*128}")
        else:
            a(f"s_waitcnt lgkmcnt(0)\ns_add_u32 s{sNON}, s{sNON}, 1\nv_mov_b32 v{vNON}, s{sNON}\nv_and_b32 v{vTAG}, 0xffff, v{vNON}")
        for m in ("quad_perm:[1,0,3,2]", "quad_perm:[2,3,0,1]", "row_half_mirror"):
            for s in (s1, s2): a(f"v_add_f32_dpp v{s}, v{s}, v{s} {m} row_mask:0xf bank_mask:0xf")
        a(f"""v_mul_f32 v{s1}, {f2h(1/448)}, v{s1}
v_mul_f32 v{s2}, {f2h(1/448)}, v{s2}
v_fma_f32 v{s2}, -v{s1}, v{s1}, v{s2}
v_max_f32 v{s2}, 0, v{s2}
v_add_f32 v{s2}, {f2h(1e-5)}, v{s2}
v_rsq_f32 v{T+2}, v{s2}
v_mul_f32 v{T+3}, -v{s1}, v{T+2}""")
        for i0 in range(0, 28, 4):
            t = T + 4
            for k in range(4): a(f"v_lshlrev_b32 v{t+2*k}, 16, v{X+i0+k}\nv_and_b32 v{t+2*k+1}, s{sMASK}, v{X+i0+k}")
            for k in range(4): a(f"v_pk_fma_f32 {vr(t+2*k,2)}, {vr(t+2*k,2)}, {vr(T+2,2)}, {vr(T+2,2)} op_sel:[0,0,1] op_sel_hi:[1,0,1]")
            for k in range(4): a(f"v_cvt_pk_bf16_f32 v{X+i0+k}, v{t+2*k}, v{t+2*k+1}")
            a(f"ds_write_b128 v{vXW}, {vr(X+i0, 4)} offset:{(i0//4)*4224 + grp*128}")
            if grp == 1 and i0//4 == w.cfg.A2: a("s_barrier")

class Compute(Wave):
    def __init__(self, role, cfg):
        super().__init__("c" + role, cfg); self.role = role; self.groups = make_groups(role)
        self.gi = {g: i for i, g in enumerate(self.groups)}
        self.bars = []; self.ev = {}; self.done = -1; self.acq = 0
        extra = {}
        if role == 'E' and cfg.XS:
            g0 = self.gi[('wo', 0, 0)] + NSLOT
            for i in range(8): extra[g0 + i] = (STG + (i & 1)*HALF + (i >> 1)*4096, "kvb" if i < 4 else "o")
        if role != 'E':
            g0 = self.gi[('w1', 0, 0)] + 20
            for i in range(cfg.XM): extra[g0 + i] = (STG + (i & 1)*HALF + OOFF + (i >> 1)*4096, "xdead")
            g1 = self.gi[('w2', 0, 3)]
            for i in range(cfg.XH): extra[g1 + i] = (STG + (i >> 1)*HALF + OOFF + (i & 1)*4096, "o")
        self.baseC = {vHA: vKVA, vOA: vKVA if role == 'E' else vQA + 4, vPA: vQA + 5}
        self.addr = []; self.avail = []; main = []
        for g in range(len(self.groups)):
            if g in extra: self.addr.append(extra[g][0]); self.avail.append(extra[g][1])
            else:
                self.addr.append(RING + (len(main) % NSLOT)*4096); self.avail.append(main[-NSLOT] if len(main) >= NSLOT else -1); main.append(g)
    def barrier(self, need=None, name=None, long=False):
        if need is not None: self.acq = need
        n = 0
        while n < len(self.groups) and self.lastuse[n] <= self.done: n += 1
        self.bars.append(dict(pos=len(self.ins), need=self.acq, nrel=n, long=long))
        self.a("s_barrier")
        if name: self.ev[name] = len(self.bars)
    def emit_fill(self, it):
        if callable(it): it()
        elif it != SKIP: self.a(it)
    def run(self, items):
        cfg = self.cfg; jobs = [x for x in items if isinstance(x, Job)]; N = len(self.groups)
        for n, j in enumerate(jobs): j.n = n
        self.lastuse = {}
        for j in jobs:
            for g in range(j.g, j.g + j.span): self.lastuse[g] = j.n
        lim = {}; cur = len(jobs); nxt = len(jobs)
        for x in reversed(items):
            if isinstance(x, Job): lim[x.n] = cur; nxt = x.n
            elif isinstance(x, Code) and x.fence: cur = nxt
        st = dict(rd=0); fq = []
        self.nextneed = lambda: min(N, max(self.acq, jobs[st['rd']].g + jobs[st['rd']].span - 1 + cfg.CH)) if st['rd'] < len(jobs) else N
        def reads(n):
            j = jobs[n]
            if j.g + j.span > self.acq:
                nd = max(j.g + j.span, self.acq + cfg.CH)
                self.barrier(N if nd > N - (cfg.TAILE if self.role == 'E' else cfg.TAILM) else nd)
            for p in j.pre: self.emit_fill(p)
            ad = self.addr[j.g]; base = (self.baseC.get(j.base), j.base, j.base + 1)[ad >> 16]; imm = (ad & 0xffff) + j.sub*2048
            b = vB + 4*(n % cfg.NB)
            self.a(f"ds_read_b64_tr_b16 {vr(b, 2)}, v{base} offset:{imm}\nds_read_b64_tr_b16 {vr(b+2, 2)}, v{base} offset:{imm+256}")
            st['rd'] = n + 1
        def operands(j): return vset(vB + 4*(j.n % cfg.NB), 4) | vset(j.act, 4)
        for x in items:
            if isinstance(x, Job):
                if st['rd'] <= x.n:
                    while st['rd'] < min(x.n + cfg.D, lim[x.n]): reads(st['rd'])
                b = vr(vB + 4*(x.n % cfg.NB), 4); act = vr(x.act, 4); acc = vr(x.acc, 16)
                A, B = (b, act) if x.wfirst else (act, b)
                x16 = self.role in cfg.X16 and not x.first
                m16 = lambda q: f"v_mfma_f32_16x16x32_bf16 {vr(x.acc + 8*x.sub + 4*q, 4)}, {(A, B)[q]}, {(B, A)[q]}, {vr(x.acc + 8*x.sub + 4*q, 4)}"
                self.a(m16(0) if x16 else f"v_mfma_f32_32x32x16_bf16 {acc}, {A}, {B}, {'0' if x.first else acc}")
                self.done = x.n
                if x16 and 'b' in cfg.X16: self.a(m16(1))
                if st['rd'] < min(x.n + 1 + cfg.D, lim[x.n]): reads(st['rd'])
                if x16 and 'b' not in cfg.X16: self.a(m16(1))
                if cfg.W2:
                    if x.n % 2 == 0:
                        s = set()
                        for k in (x.n+1, x.n+2):
                            if k < st['rd']: s |= operands(jobs[k])
                        self.need(s)
                elif x.n + 1 < st['rd']: self.need(operands(jobs[x.n + 1]))
                bud = x.fill or cfg.FILL
                while fq and bud > 0 and fq[0][0] <= x.n:
                    it = fq.pop(0)[1]; self.emit_fill(it)
                    if it == SKIP: break
                    bud -= 2 if (isinstance(it, str) and it.startswith(TRANS)) else 1
            elif isinstance(x, Fill): fq += [(self.done + x.delay, it) for it in x.items]
            elif isinstance(x, Flush):
                while fq: self.emit_fill(fq.pop(0)[1])
            else: x.fn()
        assert not fq
    def plan_loader(self):
        cfg = self.cfg; N = len(self.groups); iss = []; cur = 0; credit = 0.0
        for k, b in enumerate(self.bars):
            free = cur
            while free < N and (self.ev[self.avail[free]] <= k if isinstance(self.avail[free], str) else self.avail[free] < (self.bars[k-1]['nrel'] if k else 0)): free += 1
            t, st = est_time(self.ins[(self.bars[k-1]['pos'] if k else 0):b['pos']])
            b['t'] = t
            if self.role == 'E' and cfg.WOG and k >= self.ev['o']: st = 0
            credit += (t - st)/cfg.GT
            want = cur + int(credit) if not b['long'] else N
            if k == 0: want = cfg.INITE if self.role == 'E' else cfg.INIT
            la = cfg.LA
            if 'l0' in self.ev and 0 <= k - (self.ev['l0'] + cfg.L1D + cfg.HOLD0) < cfg.HOLD: want = cur; la = cfg.CH; credit = 0
            new = min(max(want, b['need'] + la, cur), free, N)
            assert new >= b['need'], (self.role, k, new, b)
            credit = min(max(credit - (new - cur), 0.0), 0.99)
            cur = new; iss.append(cur)
        self.iss = iss; self.kN = iss.index(N)

    def lazy_setup(self):
        w = W("tmp"); a = w.a; cfg = self.cfg; E = self.role == 'E'
        if E:
            for hh in (2, 3): a("s_add_u32 s45, s45, 28"); head_addr(w, vQA + 2*hh)
            a(f"""v_lshrrev_b32 v{vT0}, 5, v{vLANE}
s_mul_i32 s60, s{sC}, 7168
v_mul_u32_u24 v{vOWB}, 24, v{vT0}
v_sub_u32 v{vOWB}, v{vXR}, v{vOWB}
v_add_u32 v{vOWB}, s60, v{vOWB}
v_mul_u32_u24 v{vOWA}, 496, v{vT0}
v_sub_u32 v{vOWA}, v{vOWB}, v{vOWA}""")
        else:
            a(f"s_lshl_b32 s59, s{sC}, 12\ns_sub_u32 s60, 4096, s59")
            for k in range(2): a(f"v_add_u32 v{vPA+k}, s60, v{vOA+k}\nv_add_u32 v{vOA+k}, s59, v{vOA+k}")
            a(f"""s_lshr_b32 s60, s60, 1
v_add_u32 v{vFR}, s60, v{vFR}
v_and_b32 v{vEM}, 31, v{vLANE}
v_subrev_u32 v{vEM}, 28, v{vEM}
v_ashrrev_i32 v{vEM}, 31, v{vEM}""")
        a(f"s_mov_b32 s{sL2E}, 0x3fb8aa3b\ns_mov_b32 s{sEPS}, 0x358637bd")
        srd(w, rWS, pWS, WSZ)
        js = {'E': (0, 7), 'N': (1, 6), 'M': (2, 3, 4, 5)}[self.role]; pos = slot_table(cfg)
        tab = lambda j, m: sum((c*m + p) << (8*t) for t, (c, p) in enumerate(zip(chunk_seq(cfg, j), pos[j])))
        words = lambda j: [tab(j, 8) & 0xffffffff, tab(j, 8) >> 32, tab(j, 16) & 0xffffffff, tab(j, 16) >> 32]
        for k, x in enumerate(words(js[0])): a(f"s_mov_b32 s{40+k}, {x}")
        for jj in js[1:]:
            a(f"s_cmp_eq_u32 s{sJ}, {jj}")
            for k, x in enumerate(words(jj)): a(f"s_cselect_b32 s{40+k}, {x}, s{40+k}")
        for t in range(7):
            a(f"s_bfe_u32 s{sMSG+t}, s{40 + (t >> 2)}, {hex(0x80000 + 8*(t & 3))}\ns_lshl_b32 s{sMSG+t}, s{sMSG+t}, 13")
            a(f"s_bfe_u32 s{8+t}, s{42 + (t >> 2)}, {hex(0x80000 + 8*(t & 3))}\ns_lshl_b32 s{8+t}, s{8+t}, 3")
        a(f"""s_mul_i32 s59, s{sRB}, {7*32*MSG}
s_lshl_b32 s60, s3, 11
s_add_u32 s59, s59, s60
s_add_u32 s59, s59, {XP}
v_add_u32 v{vXP}, s59, v{vMSG}
s_mul_i32 s59, s{sRB}, 896
s_lshl_b32 s60, s3, 15
s_add_u32 s59, s59, s60
s_add_u32 s59, s59, {XFL}
v_subrev_u32 v{vFOFF}, 63, v{vLANE}
v_and_b32 v{vFOFF}, {OOB}, v{vFOFF}
v_or_b32 v{vFOFF}, s59, v{vFOFF}""")
        if self.role == 'M': a(f"s_lshl_b32 s59, s{sJ}, 1\ns_add_u32 s59, s59, s{sC}")
        if self.role == 'N': a(f"s_and_b32 s59, s{sJ}, 6\ns_add_u32 s59, s59, s{sC}\ns_lshl_b32 s59, s59, 1")
        if not E: a(f"""s_lshl_b32 s59, s59, 5
s_add_u32 s59, s59, s{sRB}
s_lshl_b32 s59, s59, 1
s_add_u32 s59, s59, s{sR}
s_lshl_b32 s59, s59, 11
s_add_u32 s59, s59, {KVP}
s_add_u32 s60, s59, 131072""")
        return [x.text for x in w.ins]
    def bias_init(self, acc, t):
        one = "1.0" if t & 1 else "0x3f80"
        return [f"v_mov_b32 v{vBB + (t >> 1)}, {one}", f"v_mov_b32 v{vBB + 1 - (t >> 1)}, 0", SKIP,
                f"v_mfma_f32_32x32x8bf16_1k {vr(acc, 16)}, {vr(vBA, 2)}, {vr(vBB, 2)}, 0"]
    def phi(self, acc, dst, tmp):
        L = []
        for i0 in range(0, 16, 4):
            r = [acc + i0 + k for k in range(4)]
            L += [f"v_mul_f32 v{tmp+k}, s{sL2E}, v{r[k]}" for k in range(4)]
            for k in range(4): L += [f"v_exp_f32 v{tmp+k}, v{tmp+k} clamp", f"v_max_f32 v{r[k]}, s{sEPS}, v{r[k]}"]
            L += [f"v_add_f32 v{r[k]}, v{r[k]}, v{tmp+k}" for k in range(4)]
            L += [f"v_cvt_pk_bf16_f32 v{dst + i0//2 + k}, v{r[2*k]}, v{r[2*k+1]}" for k in range(2)]
        return L
    def pack(self, acc, dst=None):
        dst = acc if dst is None else dst
        return [f"v_cvt_pk_bf16_f32 v{dst+i}, v{acc+2*i}, v{acc+2*i+1}" for i in range(8)]
    def h_epi(self, acc, dst):
        L = []
        for h in range(2):
            L += [f"v_mul_f32 v{acc+i}, v{acc+i}, abs(v{acc+i})" for i in range(8*h, 8*h+8)]
            L += self.pack(acc, dst)[4*h:4*h+4]
            L += [f"v_pk_max_i16 v{dst+i}, v{dst+i}, 0" for i in range(4*h, 4*h+4)]
        return L
    def h_write(self, src, t):
        for h in range(2): self.a(f"ds_write_b128 v{vFW}, {vr(src+4*h, 4)} offset:{HOFF + (4*t+h)*1024}")
    def send(self, acc, t):
        P = self.pack(acc); L = []
        st = lambda h: f"buffer_store_dwordx4 {vr(acc+4*h, 4)}, v{vXP}, s[{rWS}:{rWS+3}], s{sMSG+t} offen offset:{1024*h} sc1"
        L += P[:4] + [st(0)] + P[4:]
        L += [f"v_add3_u32 v{vCK}, v{acc}, v{acc+1}, v{acc+2}", f"v_add3_u32 v{vT0}, v{acc+3}, v{acc+4}, v{acc+5}",
              f"v_add3_u32 v{vCK}, v{vCK}, v{acc+6}, v{acc+7}", f"v_add_u32 v{vCK}, v{vCK}, v{vT0}"]
        ws = self.wsum(vCK); sp = self.cfg.SP if t < 5 else 0
        for k, x in enumerate(ws):
            if k == sp: L.append(st(1))
            L += [SKIP, x] if t < self.cfg.FAST or k % 2 == 0 else [x]
        if sp >= 6: L.append(st(1))
        L += [f"v_add_u32 v{vCK}, v{vCK}, v{vNON}",
              f"buffer_store_dwordx2 {vr(vCK, 2)}, v{vFOFF}, s[{rWS}:{rWS+3}], s{8+t} offen sc1"]
        if t == 5 and self.cfg.LB: L.append(lambda: self.barrier(len(self.groups)))
        if 'c' in self.cfg.X5: L = [x for x in L if callable(x) or not (x.startswith('v_add') or x == SKIP)]
        d = self.cfg.dbgst
        if d & 1: L = [x for x in L if not x.startswith("buffer_store_dwordx4")]
        if d & 2: L = [x for x in L if not x.startswith("buffer_store_dwordx2")]
        if d & 4: L = [x.replace(" sc1", "") for x in L]
        if d & 8: L = [x for x in L if x.startswith("buffer") or x == SKIP]
        return L
    def kv_epi(self, a):
        K, Dd = ACC[2*a], ACC[2*a+1]; V = K + 8
        L = self.phi(K, K, T8) + self.pack(Dd, V) + [f"v_bfi_b32 v{V+i}, v{vEM}, v{V+i}, v{vONES}" for i in range(8)]
        L += [f"v_mfma_f32_32x32x16_bf16 {vr(Dd,16)}, {vr(K+4*kk,4)}, {vr(V+4*kk,4)}, {vr(Dd,16) if kk else 0}" for kk in range(2)]
        L2 = self.pack(Dd) + [f"v_lshl_or_b32 v{Dd+8}, v{Dd+3}, 16, v{vTAG}", SKIP, f"v_permlane32_swap_b32 v{Dd+6}, v{Dd+7}",
                              f"v_and_or_b32 v{Dd+7}, v{Dd+3}, s{sMASK}, v{vTAG}", f"v_mov_b32 v{Dd+3}, v{Dd+8}"]
        L2 += [f"buffer_store_dwordx4 {vr(Dd+4*i, 4)}, v{vMSG}, s[{rWS}:{rWS+3}], s{59+a} offen offset:{i*1024} sc1" for i in ((1,) if self.cfg.X1 else (1, 0))]
        return L, L2
    def flag_offsets(self):
        L = []
        for t in range(7): L += [f"s_lshr_b32 s{8+t}, s{sMSG+t}, 13", f"s_and_b32 s{sT}, s{8+t}, -8", f"s_add_u32 s{8+t}, s{8+t}, s{sT}", f"s_lshl_b32 s{8+t}, s{8+t}, 3"]
        return L
    def bias_pack(self):
        return [f"v_lshl_or_b32 v{vBA}, v{T8+1}, 16, v{T8}", f"v_mov_b32 v{vBA+1}, 0" if self.role == 'E' else f"v_lshl_or_b32 v{vBA+1}, v{T8+3}, 16, v{T8+2}", SKIP]
    xread = lambda self, s: [f"ds_read_b128 {vr(XF+4*s, 4)}, v{vXR} offset:{s*1056}"]
    def kv_phase(self, items):
        na = 2 if self.role == 'N' else 1
        ep = [self.kv_epi(a) for a in range(na)]
        for wi, m in enumerate('kv'):
            for s in range(28):
                for a in range(na):
                    items.append(Job(ACC[2*a+wi], XF+4*s, self.gi[(m, s >> 1, 0)], s & 1, vQA + 2*a, False, s == 0, 2,
                                     None if a or wi else self.xread(s), (self.cfg.KF if na == 2 else 5) if wi else None))
                if wi == 0 and s == 20: items.append(Fill(self.bias_pack() + self.bias_init(ACC[4], 0), 0))
            items.append(Flush())
            if wi == 0: items.append(Fill(sum((e[0][:72] for e in ep[:1 if 'f' in self.cfg.X5 else 2]), [])))
        items.append(Code(lambda: self.stamp("kvmm"), False))
        def mark(): self.ev["l0"] = len(self.bars); self.stamp("l0st")
        e1, e2 = ep[0][0][72:], ep[0][1]
        if na == 2: e1 = e1 + ep[1][0][72:] + e2; e2 = ep[1][1]
        e1 = [lambda: self.barrier(name="xdead")] + e1
        e2 = e2 + [f"v_subrev_u32 v{c}, 0x10000, v{b}" for b, c in self.baseC.items()]
        items.append(Code(lambda: [self.emit_fill(x) for x in e1], False))
        items.append(Fill(e2 + [mark] + self.bias_init(ACC[2], 1), 3))
    def checksum(self, R, n, fl, cnt):
        a = self.a
        a(f"v_sub_u32 v{vCK}, 0, v{fl}")
        for i in range(0, n, 2): a(f"v_add3_u32 v{vCK}, v{vCK}, v{R+i}, v{R+i+1}")
        for s in self.wsum(vCK): a(s)
        a(f"v_mul_lo_u32 v{vT0}, v{vNON}, {cnt}\nv_add_u32 v{vCK}, v{vCK}, v{vT0}\nv_readlane_b32 s{sT}, v{vCK}, 63")
        a(f"s_cmp_lg_u32 s{sT}, 0\ns_cselect_b64 vcc, -1, 0")
    def finale(self, acc, can_non):
        self.stamp("mmend")
        a = self.a
        a(f"s_lshl_b32 s59, s{sC}, 11\ns_add_u32 s59, s59, {OOFF}\nv_add_u32 v{vT1}, s59, v{vFW}")
        a(f"s_lshl_b32 s59, s3, 8\nv_lshl_add_u32 v{vT2}, v{vLANE}, 2, s59")
        if can_non:
            own, fin = self.lab("own"), self.lab("fin")
            a(f"s_cmp_lg_u32 s{sJ}, {self.cfg.JN}\ns_nop 7\ns_cbranch_scc1 {own}")
            for x in self.send(acc, 6): self.emit_fill(x)
            a(f"s_branch {fin}\n{own}:")
        for i in range(4): a(f"ds_write_b128 v{vT1}, {vr(acc+4*i, 4)} offset:{i*1024}")
        a(f"ds_write_b32 v{vT2}, v{vONES}")
        if can_non: a(f"{fin}:")
        if self.cfg.prof: a("s_waitcnt vmcnt(0)"); self.stamp("end")
        self.end()

    def build(self):
        a = self.a; cfg = self.cfg; gi = self.gi; it = []
        lazy = self.lazy_setup()
        def xbar():
            self.stamp("role")
            for x in lazy[:cfg.NPRE]: a(x)
            a("s_waitcnt lgkmcnt(0)"); self.stamp("ln"); self.barrier(cfg.CH, long=True); self.stamp("b0")
        it.append(Code(xbar)); it.append(Fill(lazy[cfg.NPRE:], 2))
        def xchg(long=False):
            a("s_waitcnt lgkmcnt(0)"); self.barrier(self.nextneed(), long=long, name="o")
        if self.role != 'E':
            self.kv_phase(it)
            buf = [ACC[4], ACC[2], ACC[4], ACC[2]]; HK = [ACC[0], ACC[0]+8, ACC[1], ACC[1]+8]
            for t in range(4):
                it += [Job(buf[t], XF+4*s, gi[('w1', s >> 1, t)], s & 1, vHA, True, fill=(4 if t == 0 and s < 10 else None)) for s in range(28)]
                it.append(Flush())
                it.append(Fill(self.h_epi(buf[t], HK[t]) + (self.bias_init(buf[t], t+2) if t < 2 else [])))
            it.append(Code(lambda: self.stamp("ffn1"), False))
            ob = lambda t: (ACC[4], ACC[3], ACC[2])[t % 3]
            def J(t, h, kk, own, first=False, pre=None, fill=None):
                return Job(ob(t), (HK[h] if own else XF + 8*h) + 4*kk, gi[('w2', 2*h, t)], kk, vOA if own else vPA, True, first, 2, pre, fill)
            for t in range(2): it += [J(t, h, kk, True, h + kk == 0, fill=3) for h in range(3) for kk in range(2)]
            it.append(Flush())
            def hw():
                self.stamp("hw")
                for t in range(4 if 'e' not in cfg.X5 else 1): self.h_write(HK[t], t)
            it.append(Code(hw, False))
            for t in range(2): it += [J(t, 3, kk, True) for kk in range(2)]
            it.append(Code(xchg)); it.append(Code(lambda: self.stamp("hx"), False))
            rd = lambda h, kk: [f"ds_read_b128 {vr(XF+8*h+4*kk, 4)}, v{vFR} offset:{HOFF + (4*h+kk)*1024}"]
            it += [J(0, h, kk, False, pre=rd(h, kk)) for h in range(4) for kk in range(2)] + [Fill(self.send(ob(0), 0))]
            it += [J(1, h, kk, False, fill=3) for h in range(4) for kk in range(2)] + [Fill(self.send(ob(1), 1))]
            for t in range(2, 7):
                it += [J(t, h, kk, own, h + kk == 0 and own, fill=cfg.FF if t > cfg.FAST else 3 if t == 2 else None) for h in range(4) for own in (True, False) for kk in range(2)] + [Flush()]
                if t < 6: it.append(Fill(self.send(ob(t), t)))
            self.run(it)
            self.finale(ob(6), self.role == 'M')
        else:
            buf = [ACC[2], ACC[4]]
            for s in range(28):
                it.append(Job(buf[0], XF+4*s, gi[('w1', s >> 1, 0)], s & 1, vHA, True, s == 0, 1, self.xread(s)))
                if s == 14: it.append(Fill(self.bias_pack() + self.bias_init(buf[1], 1), 0))
                if s == 21: it.append(Flush())
            b0 = self.bias_init(buf[0], 0); b0[-1] = b0[-1][:-1] + vr(buf[0], 16)
            it.append(Fill(b0 + [SKIP]*6 + self.h_epi(buf[0], T8), 3))
            it += [Job(buf[1], XF+4*s, gi[('w1', s >> 1, 1)], s & 1, vHA, True) for s in range(28)] + [Flush()]
            it.append(Fill(self.h_epi(buf[1], buf[1])))
            it.append(Code(lambda: self.stamp("ffn1"), False))
            for s in range(28):
                it += [Job(ACC[hh], XF+4*s, gi[('q', s >> 1, 0)], s & 1, vQA + 2*hh, True, s == 0, 4, fill=1) for hh in range(4)]
                if s == cfg.HWS: it += [Flush(), Code(lambda: (self.ev.update(hw=len(self.bars)), self.h_write(T8, 0), self.h_write(buf[1], 1)), False)]
            it.append(Code(lambda: self.stamp("q"), False))
            f = []
            for hh in range(4):
                d = ACC[0] + 8*hh
                f += self.phi(ACC[hh], d, T8) if 'a' not in cfg.X5 else self.pack(ACC[hh], d)
            it.append(Fill(f))
            for s, t in ([(2*kb + u, t) for kb in range(4) for t in range(7) for u in range(2)] if cfg.GM else [(s, t) for s in range(8) for t in range(7)]):
                hb = ACC[4] + 4*(s & 3)
                if 1:
                    pre = [f"ds_read_b128 {vr(hb, 4)}, v{vFR} offset:{HOFF + s*1024}"] if t == 0 else []
                    it.append(Job(XF + 16*t, hb, gi[('w2', s >> 1, t)], s & 1, vOA, True, s == 0, 1, pre, cfg.QFILL))
            def ocalc():
                self.barrier(name="kvb")
                self.stamp("ffn2a")
            it.append(Code(ocalc)); it.append(Flush())
            def ocalc2():
                KB = ACC[2]
                a(f"""s_and_b32 s59, s{sJ}, 1
s_lshl_b32 s59, s59, 1
s_add_u32 s59, s59, s{sC}
s_lshl_b32 s59, s59, 13
s_add_u32 s59, s59, {KVF}
s_add_u32 s60, s59, 4096
v_subrev_u32 v{vKVA}, 0x10000, v{vOA}
s_mul_i32 s61, s{sC}, {HALF}
s_add_u32 s61, s61, {STG + KVB}
v_add_u32 v{vXW}, s61, v{vMSG}
s_mov_b32 s61, 0x07060302""")
                self.stamp("phi")
                self.barrier(name="kvr", long=True)
                self.stamp("kvr")
                for i in range(8): a(f"ds_read_b128 {vr(KB+4*i, 4)}, v{vXW} offset:{i*1024}")
                lp, ck = self.lab("l2_"), self.lab("l2c")
                a(f"{ck}:\nv_mov_b32 v{vT0}, 0")
                for hh in range(4):
                    a(f"v_xor_b32 v{vT1}, v{KB+8*hh+3}, v{vTAG}\nv_xor_b32 v{vT2}, v{KB+8*hh+7}, v{vTAG}\nv_or3_b32 v{vT0}, v{vT0}, v{vT1}, v{vT2}")
                    a(f"v_perm_b32 v{KB+8*hh+3}, v{KB+8*hh+7}, v{KB+8*hh+3}, s61\nv_mov_b32 v{KB+8*hh+7}, 0")
                a(f"v_and_b32 v{vT0}, 0xffff, v{vT0}\nv_cmp_ne_u32 vcc, 0, v{vT0}")
                for hh in range(4): a(f"v_permlane32_swap_b32 v{KB+8*hh+6}, v{KB+8*hh+7}")
                self.retry(lp)
                self.ool += [f"{lp}:"]
                self.ool += [f"buffer_load_dwordx4 {vr(KB+4*i, 4)}, v{vMSG}, s[{rWS}:{rWS+3}], s{59 + (i >> 2)} offen offset:{(i & 3)*1024} sc1" for i in range(8)]
                self.ool += ["s_waitcnt vmcnt(0)", f"s_branch {ck}"]
                self.stamp("kvok")
                nb = [ACC[4], vB, ACC[4], vB]
                def mm(hh):
                    for kk in range(2):
                        a(f"v_mfma_f32_32x32x16_bf16 {vr(nb[hh],16)}, {vr(KB+8*hh+4*kk,4)}, {vr(ACC[0]+8*hh+4*kk,4)}, {vr(nb[hh],16) if kk else 0}")
                def ep(hh):
                    n = nb[hh]
                    a(f"v_mov_b32 v{vT0}, v{n+12}\nv_mov_b32 v{vCK}, v{n+12}\nv_permlane32_swap_b32 v{vT0}, v{vCK}")
                    a(f"v_add_f32 v{vCK}, s{sEPS}, v{vCK}\nv_rcp_f32 v{vCK}, v{vCK}")
                    for i in range(4):
                        for k in range(4): a(f"v_mul_f32 v{n+4*i+k}, v{n+4*i+k}, v{vCK}")
                        for k in range(2): a(self.pack(n)[2*i+k])
                        g0 = 7*hh + 2*i
                        off = OOFF + (g0 >> 2)*1024 + ((g0 >> 1) & 1)*512 + (g0 & 1)*8
                        if i == 3: a("s_mov_b32 exec_hi, 0")
                        a(f"ds_write_b64 v{vOWB if g0 & 1 else vOWA}, {vr(n+2*i, 2)} offset:{off}")
                        if i == 3: a("s_mov_b32 exec_hi, -1")
                if cfg.OP:
                    nb = [ACC[4], vB, ACC[2], ACC[0]]; dn = [T8 + 2*hh for hh in range(4)]
                    for hh in range(4): mm(hh)
                    for hh in range(4): a(f"v_mov_b32 v{dn[hh]}, v{nb[hh]+12}\nv_mov_b32 v{dn[hh]+1}, v{nb[hh]+12}")
                    for hh in range(4): a(f"v_permlane32_swap_b32 v{dn[hh]+1}, v{dn[hh]}")
                    for hh in range(4): a(f"v_add_f32 v{dn[hh]}, s{sEPS}, v{dn[hh]}")
                    for hh in range(4): a(f"v_rcp_f32 v{dn[hh]}, v{dn[hh]}")
                    for i in range(4):
                        if i == 3: a("s_mov_b32 exec_hi, 0")
                        for hh in range(4):
                            n = nb[hh]; g0 = 7*hh + 2*i
                            for k in (0, 2): a(f"v_pk_mul_f32 {vr(n+4*i+k, 2)}, {vr(n+4*i+k, 2)}, {vr(dn[hh], 2)} op_sel_hi:[1,0]")
                            for k in range(2): a(f"v_cvt_pk_bf16_f32 v{n+4*i+k}, v{n+4*i+2*k}, v{n+4*i+2*k+1}")
                            a(f"ds_write_b64 v{vOWB if g0 & 1 else vOWA}, {vr(n+4*i, 2)} offset:{OOFF + (g0 >> 2)*1024 + ((g0 >> 1) & 1)*512 + (g0 & 1)*8}")
                    a("s_mov_b32 exec_hi, -1")
                else:
                    mm(0); mm(1); ep(0); mm(2); ep(1); mm(3); ep(2); ep(3)
                xchg(True)
                self.stamp("o")
            it.append(Code(ocalc2))
            for t in range(7):
                for s in range(14):
                    pre = [f"ds_read_b128 {vr(ACC[0]+4*s, 4)}, v{vFR} offset:{OOFF + s*1024}"] if t == 0 else []
                    it.append(Job(XF + 16*t, ACC[0]+4*s, gi[('wo', s >> 1, t)], s & 1, vOA, True, False, 1, pre, cfg.FF if t > cfg.FAST else 3))
                it.append(Flush())
                if t < 6: it.append(Fill(self.send(XF + 16*t, t)))
            self.run(it)
            self.finale(XF + 96, False)
        self.plan_loader()

def weight_srds(w, E):
    w.a(f"s_mul_i32 s49, s{sJ}, 56\ns_lshr_b32 s49, s49, 6\ns_lshl_b32 s49, s49, 7")
    if E:
        w.a(f"s_and_b32 s48, s{sJ}, 1\ns_mul_i32 s59, s48, {224*896}\ns_mul_i32 s48, s48, 384")
        srd(w, 44, pWO, 401408, 59)
    ffn_line0(w, 60)
    w.a("s_lshl_b32 s59, s60, 7"); srd(w, 36, pW1, 1605632, 59)
    w.a(f"s_mul_i32 s59, s60, {64*896}"); srd(w, 40, pW2, 1605632, 59)

class Pf:
    def __init__(s, w): s.w = w; s.n = 0; assert w.cfg.G == 16
    def new(s, rs):
        s.n += 1; v = 16 + s.n
        return v, f"buffer_load_dword v{48 + s.n}, v{v}, s[{rs}:{rs+3}], 0 offen"
    def cols(s, rs, sbase, off, stride, nl, lstep=None):
        v, ins = s.new(rs)
        line = f"v_min_u32 v9, {nl-1}, v9\nv_lshl_add_u32 v{v}, v9, 7, v{v}" if lstep is None else \
               f"v_and_b32 v10, 1, v9\nv_lshl_add_u32 v{v}, v10, 7, v{v}\nv_lshrrev_b32 v9, 1, v9\nv_mul_u32_u24 v9, {lstep}, v9\nv_add_u32 v{v}, v9, v{v}"
        s.w.a(f"""s_mul_i32 s60, s61, 14
v_and_b32 v{v}, 15, v0
v_min_u32 v{v}, 13, v{v}
v_add_u32 v{v}, s60, v{v}
v_mul_u32_u24 v{v}, {stride}, v{v}
v_lshrrev_b32 v9, 4, v0
{line}""")
        if off: s.w.a(f"v_add_u32 v{v}, {off}, v{v}")
        if sbase is not None: s.w.a(f"v_add_u32 v{v}, s{sbase}, v{v}")
        return ins
    def chunks(s, rs, nr, t0, t1):
        v, ins = s.new(rs)
        s.w.a(f"s_mul_i32 s60, s61, {nr}\nv_and_b32 v{v}, 7, v0\nv_min_u32 v{v}, {nr-1}, v{v}\nv_add_u32 v{v}, s60, v{v}\nv_mul_u32_u24 v{v}, 896, v{v}\nv_mov_b32 v9, s{50+t0}")
        for t in range(t0+1, t1): s.w.a(f"v_mov_b32 v10, s{50+t}\nv_cmp_le_u32 vcc, {8*(t-t0)}, v0\nv_cndmask_b32 v9, v9, v10, vcc")
        s.w.a(f"v_add_u32 v{v}, v9, v{v}")
        return ins

gA, gR, gY = 16, 64, 128
vGO, vGB, vGM, vGC, vGT, vGN, vLO, vHI, vXD, vTW, vTR, vOF = 36, 37, 39, 32, 33, 34, 35, 15, 38, 40, 41, 42
def gather_stage1(w, cfg):
    a = w.a
    srd(w, 32, pX, 1835008); srd(w, 36, pWS, WSZ)
    a(f"""s_mov_b64 s[0:1], s[{pB2}:{pB2+1}]
s_sub_u32 s57, s3, 4
s_cmp_gt_u32 s{sJ}, {cfg.JN}
s_subb_u32 s58, s{sJ}, 0
s_mul_i32 s61, s{sRB}, 7
s_add_u32 s61, s61, s58
s_lshl_b32 s60, s57, 8
s_add_u32 s60, s60, s61
s_lshl_b32 s60, s60, 7
s_add_u32 s60, s60, {XFL}
s_add_u32 s48, s{pWS}, s60
s_addc_u32 s49, s{pWS+1}, 0
s_waitcnt lgkmcnt(0)
s_mov_b32 s26, s{sNON}
s_load_dwordx16 s[8:23], s[48:49], 0 glc
s_lshl_b32 s61, s61, 5
s_add_u32 s61, s61, s57
s_lshl_b32 s61, s61, 11
s_add_u32 s61, s61, {XP}
s_lshl_b32 s58, s58, 7
s_and_b32 s60, s57, 1
s_lshl_b32 s60, s60, 6
s_add_u32 s58, s58, s60
s_lshr_b32 s27, s57, 1
s_lshl_b32 s60, s{sRB}, 1
s_add_u32 s60, s60, s27
s_mul_i32 s60, s60, {32*896}
s_add_u32 s60, s60, s58
v_lshrrev_b32 v{vTR}, 2, v0
v_and_b32 v{vGM}, 3, v0
v_mul_u32_u24 v{vGO}, 896, v{vTR}
v_lshl_add_u32 v{vGO}, v{vGM}, 4, v{vGO}
v_mul_u32_u24 v{vTR}, 80, v{vTR}
v_lshl_add_u32 v{vTR}, v{vGM}, 4, v{vTR}
v_and_b32 v{vGB}, 32, v0
v_and_b32 v{vGM}, 31, v0
v_lshl_add_u32 v{vXD}, v{vGM}, 6, v{vGB}
v_lshl_add_u32 v{vTW}, v{vGM}, 4, v{vXD}
v_lshlrev_b32 v{vGM}, 4, v0
s_mul_i32 s27, s27, {HALF}
s_and_b32 s57, s57, 1
s_lshl_b32 s57, s57, 11
s_add_u32 s27, s27, s57
s_add_u32 s57, s57, s27
s_add_u32 s57, s57, {STG + OOFF}
s_add_u32 s27, s27, {STG + OOFF + 8192}
v_add_u32 v{vGT}, s57, v{vGM}
v_add_u32 v{vTW}, s57, v{vTW}
v_add_u32 v{vTR}, s57, v{vTR}
v_add_u32 v{vXD}, s27, v{vXD}
v_mov_b32 v{vGN}, s26""")

def ready_mask(a):
    a("s_mov_b32 s57, 0")
    for i in range(7, -1, -1): a(f"s_cmp_eq_u32 s{9+2*i}, s26\ns_addc_u32 s57, s57, s57")
    a("s_and_b32 s57, s57, s56")
def cksum_total(a):
    a("s_bcnt1_i32_b32 s51, s30\ns_mul_i32 s51, s51, s26")
    for i in range(8): a(f"s_bitcmp1_b32 s30, {i}\ns_cselect_b32 s59, s{8+2*i}, 0\ns_sub_u32 s51, s51, s59")

def gather_stage2(w, cfg):
    a = w.a
    srd(w, 40, 0, 896); srd(w, 44, pOUT, 1835008)
    a(f"s_add_u32 s57, s60, {16*896}")
    for h in range(2):
        a(f"s_add_u32 m0, s27, {h*1024}\nbuffer_load_dwordx4 v{vGO}, s[32:35], s{57 if h else 60} offen lds")
        a(f"buffer_load_dwordx4 {vr(gY+8+4*h, 4)}, v{vGB}, s[40:43], s58 offen offset:{16*h}")
    a(f"s_load_dwordx16 s[8:23], s[48:49], 0 glc")
    for k in range(7): a(f"s_add_u32 s{50+k}, s61, {k*8192}")
    a(f"v_mov_b32 v{vLO}, 0x3f80\nv_mov_b32 v{vHI}, 1.0\nv_mov_b32 v{vGC}, 0")
    return 4

def build_gather(cfg, role):
    w = Wave("g" + role, cfg); E = role == 'E'; gS, gT = 144, 160
    a = lambda t: w.a(re.sub(r"\bg_", f"g{role}_", t))
    w.stamps = ["-"]*8
    POLL = "s_load_dwordx16 s[8:23], s[48:49], 0 glc"
    def addp(x):
        L = []
        for i in range(8):
            L += [f"v_lshlrev_b32 v{vLO}, 16, v{x+i}", f"v_and_b32 v{vHI}, s27, v{x+i}", f"v_add_f32 v{gA+2*i}, v{gA+2*i}, v{vLO}", f"v_add_f32 v{gA+2*i+1}, v{gA+2*i+1}, v{vHI}"]
        return L
    def addd(x):
        return [f"v_dot2c_f32_bf16 v{gA+k}, v{x+k//2}, v{vHI if k & 1 else vLO}" for k in range(16)]
    ld = lambda k: [f"buffer_load_dwordx4 {vr(gR+8*k+4*h, 4)}, v{vGM}, s[36:39], s{50+k} offen offset:{1024*h} sc1" for h in range(2)]
    def base(mid=None):
        for i in range(4): a(f"ds_read_b128 {vr(gT+4*i, 4)}, v{vGT} offset:{i*1024}")
        a("s_waitcnt lgkmcnt(0)")
        if mid: a(mid)
        for i in range(16): a(f"v_add_f32 v{gA+i}, v{gA+i}, v{gT+i}")
    def process(k):
        if k == 6: a("s_waitcnt vmcnt(0)"); w.stamp("gin")
        for q in range(0, 8, 2): a(f"v_add3_u32 v{vGC}, v{vGC}, v{gR+8*k+q}, v{gR+8*k+q+1}")
        L = addd(gR + 8*k)
        if k == 6:
            for x in w.wsum(vGC) + [f"v_readlane_b32 s59, v{vGC}, 63"]:
                a(L.pop(0)); a(L.pop(0)); a(x)
        for x in L: a(x)
    w.npre = 0
    w.stamp("gstart")
    a("g_top:\ns_mov_b32 s31, 1\ns_mov_b32 s27, 0xffff0000\ns_waitcnt vmcnt(0)")
    for h in range(2): a(f"ds_read_b128 {vr(gY+4*h, 4)}, v{vXD} offset:{16*h}")
    done = 0
    for k in range(7):
        a(f"s_cmp_lg_u32 s{9+2*k}, s26\ns_cbranch_scc1 g_wait{k}\ng_go{k}:")
        w.ool += re.sub(r"\bg_", f"g{role}_", f"""g_wait{k}:
s_waitcnt lgkmcnt(0)
s_cmp_eq_u32 s{9+2*k}, s26
s_cbranch_scc1 g_go{k}
s_sub_u32 s{sSPIN}, s{sSPIN}, 1
s_cmp_le_i32 s{sSPIN}, 0
s_cbranch_scc1 g_go{k}
s_call_b64 s[58:59], g_idle
s_branch g_wait{k}""").split("\n")
        if cfg.GK and k in (0, 2, 3, 4, 5): w.stamp(f"go{k}")
        for x in ld(k) if k >= cfg.X3 else []: a(x)
        if k == 0:
            a("s_waitcnt lgkmcnt(0)")
            if cfg.FP: a(POLL)
            for i in range(8): a(f"v_lshlrev_b32 v{gA+2*i}, 16, v{gY+i}\nv_and_b32 v{gA+2*i+1}, s27, v{gY+i}")
            a("s_mov_b32 s31, 0")
        if k == 2:
            for x in addd(gY+8): a(x)
        if cfg.LAG <= k < 6: process(done); done += 1
    w.stamp("gall")
    a("s_mul_i32 s30, s26, 7")
    for i in range(7): a(f"s_sub_u32 s30, s30, s{8+2*i}")
    a(f"""s_cmp_lg_u32 s31, 0
s_cbranch_scc1 g_sum
g_ownw:
ds_read_b32 v{gT}, v{vOF}
s_sub_u32 s{sSPIN}, s{sSPIN}, 1
s_cmp_le_i32 s{sSPIN}, 0
s_waitcnt lgkmcnt(0)
s_cbranch_scc1 g_redo
v_cmp_eq_u32 vcc, 0, v{gT}
s_cbranch_vccnz g_ownw
g_redo:""")
    base()
    a("g_sum:")
    for k in range(done, 7): process(k)
    a("s_add_u32 s59, s59, s30\ns_cmp_lg_u32 s59, 0\ns_cbranch_scc1 g_fail\ng_done:".replace("s_cmp_lg_u32 s59, 0", "s_cmp_lg_u32 s59, s59" if cfg.X3 or 'c' in cfg.X5 else "s_cmp_lg_u32 s59, 0"))
    a("s_waitcnt lgkmcnt(0)")
    for h in range(2):
        for i in range(4*h, 4*h+4): a(f"v_cvt_pk_bf16_f32 v{gA+i}, v{gA+2*i}, v{gA+2*i+1}")
        a(f"ds_write_b128 v{vTW}, {vr(gA+4*h, 4)} offset:{16*h}")
    for u in range(2): a(f"ds_read_b128 {vr(gA+8+4*u, 4)}, v{vTR} offset:{u*1280}")
    for u in range(2): a(f"buffer_store_dwordx4 {vr(gA+8+4*u, 4)}, v{vGO}, s[44:47], s{57 if u else 60} offen {cfg.OSC.replace('_', ' ')}")
    w.stamp("gst")
    a(f"""s_lshl_b32 s59, s{sRB}, 3
s_add_u32 s59, s59, s{sJ}
s_lshl_b32 s59, s59, 3
s_add_u32 s59, s59, s3
s_cmp_lg_u32 s59, {2*8 + 7}
s_cbranch_scc1 g_exit
s_mov_b64 exec, 1
buffer_store_dword v{vGN}, v{vGM}, s[36:39], 0 offen sc1
s_mov_b64 exec, -1
g_exit:""")
    if cfg.prof: a("s_waitcnt vmcnt(0)"); w.stamp("gend"); w.stamps.append("gF")
    w.end()
    if cfg.prof: w.stamps.pop()
    a(f"g_fail:\ns_sub_u32 s{sSPIN}, s{sSPIN}, {1000 if cfg.prof else 64}\ns_cmp_le_i32 s{sSPIN}, 0\ns_cbranch_scc1 g_done")
    a(f"""s_waitcnt lgkmcnt(0)
{POLL}
v_mov_b32 v{vGC}, 0
s_waitcnt lgkmcnt(0)
s_branch g_top
g_idle:
s_cmp_lg_u32 s31, 0
s_cbranch_scc1 g_idle2
ds_read_b32 v{gT}, v{vOF}
s_waitcnt lgkmcnt(0)
v_cmp_eq_u32 vcc, 0, v{gT}
s_cbranch_vccnz g_idle2
s_mov_b32 s31, 1""")
    w.stamp("gF")
    base(POLL)
    a(f"s_setpc_b64 s[58:59]\ng_idle2:\n{POLL}\ns_setpc_b64 s[58:59]")
    return w

def touch_flags(w, cfg):
    if cfg.TOUCH: w.a(f"""s_cmp_gt_u32 s{sJ}, {cfg.JN}
s_subb_u32 s60, s{sJ}, 0
s_mul_i32 s61, s{sRB}, 7
s_add_u32 s60, s60, s61
s_lshl_b32 s61, s3, 8
s_add_u32 s60, s60, s61
s_lshl_b32 s60, s60, 7
s_add_u32 s60, s60, {XFL - 131072}
s_load_dword s26, s[{pWS}:{pWS+1}], s60 glc""")

def to_gather(w, cfg, role):
    assert 3 <= cfg.JN <= 5
    if role == 'M': w.a(f"s_cmp_eq_u32 s{sJ}, {cfg.JN}\ns_cbranch_scc1 gM_exit")
    w.a(f"s_branch gather_{role}")

def build_loader(role, cfg, comp):
    w = Wave("l" + role, cfg); a = w.a; E = role == 'E'
    vo = {2688: 2, 3584: 3, 896: 4}
    weight_srds(w, E); chunk_order(w, cfg, 50, 128, E)
    a(f"""s_sub_u32 s30, s3, 4
s_lshl_b32 s31, s30, 11
s_lshl_b32 s59, s30, 4
v_bfe_u32 v12, v0, 2, 3
v_add_u32 v12, s59, v12
v_lshrrev_b32 v13, 5, v0
v_lshlrev_b32 v13, 6, v13
v_and_b32 v14, 3, v0
v_lshl_add_u32 v13, v14, 4, v13""")
    for st, r in vo.items(): a(f"v_mul_u32_u24 v{r}, {st}, v12\nv_add_u32 v{r}, v{r}, v13")
    pf = Pf(w); ev = comp.ev; late = {}; first = []
    def at(k, fn): late.setdefault(k, []).append(fn)
    a(f"s_lshl_b32 s61, s{sG}, 1\ns_add_u32 s61, s61, s30")
    if E:
        first.append(pf.cols(36, None, 0, 3584, 2))
        if cfg.QT < 0: first.append(pf.cols(32, 48, 0, 2688, 4))
        else: at(cfg.QT, lambda: pf.cols(32, 48, 0, 2688, 4))
        at(ev['hw'] - cfg.PE2, lambda: pf.chunks(40, 4, 0, 7))
        if cfg.WOA: at(ev['hw'] - cfg.PE2, lambda: pf.chunks(44, 7, 0, cfg.WOA))
        if cfg.WOA < 7: at(ev['kvb'] - cfg.WOT, lambda: pf.chunks(44, 7, cfg.WOA, 7))
    else:
        first += [pf.cols(32, 49, 896, 2688, 4, 896), pf.cols(36, None, 0, 3584, cfg.W1A)]
        if cfg.W1A < 4: at(ev['xdead'] - cfg.PKD, lambda: pf.cols(36, None, cfg.W1A*128, 3584, 4 - cfg.W1A))
        if cfg.PK: at(ev['xdead'] - cfg.PKD, lambda: pf.chunks(40, 8, 0, cfg.PK))
        if cfg.PL > cfg.PK: at(ev['l0'] + (cfg.L1D + cfg.PLD - 1 if role == 'M' else cfg.PLN), lambda: pf.chunks(40, 8, cfg.PK, cfg.PL))
        if cfg.PL < 7: at(ev['o'] - 1 - cfg.PHD, lambda: pf.chunks(40, 8, cfg.PL, 7))
    if cfg.BA: a("s_barrier")
    w.stamp("start")
    for x in first: a(x)
    a(f"s_waitcnt lgkmcnt(0)\ns_add_u32 s{sNON}, s{sNON}, 1")
    late = {k: [f() for f in v] for k, v in late.items()}
    touch_flags(w, cfg)
    if cfg.A2 >= 0: a("s_barrier")
    N = len(comp.groups); g = 0; ops = []
    for k, b in enumerate(comp.bars):
        while g < comp.iss[k]:
            m, kb, l = comp.groups[g]
            rs, st, base, lit = {'k': (32, 2688, 49, 896 + l*128), 'v': (32, 2688, 49, 1792 + l*128),
                                 'q': (32, 2688, 48, l*128), 'w1': (36, 3584, None, l*128),
                                 'w2': (40, 896, 50 + l, 0), 'wo': (44, 896, 50 + l, 0)}[m]
            for p in range(2):
                if cfg.X4 and g % cfg.X4 == cfg.X4 - 3 and g > 30: continue
                o = lit + (kb*32 + p*8)*st
                a(f"s_add_u32 m0, s31, {comp.addr[g] + p*1024}")
                a(f"s_mov_b32 s59, {o}" if base is None else f"s_add_u32 s59, s{base}, {o}")
                a(f"buffer_load_dwordx4 v{vo[st]}, s[{rs}:{rs+3}], s59 offen lds"); ops.append(g)
            g += 1
            if g in (comp.iss[0], 56, 112, N): w.stamp(f"iss{g}")
        for x in late.pop(k, []): a(x); ops.append(-1)
        assert cfg.G1 >= 1
        if k == comp.kN + 1 - cfg.G1: gather_stage1(w, cfg)
        a(f"s_waitcnt vmcnt({len(ops) - ops.index(max(x for x in ops if x < b['need'])) - 2})\ns_barrier")
        if k == comp.kN: ops += [-1]*gather_stage2(w, cfg); w.stamp("g0iss")
        if k == len(comp.bars) - 1 - cfg.LP and k > comp.kN + 1: a("s_load_dwordx16 s[8:23], s[48:49], 0 glc")
    assert not late
    assert comp.bars[-1]['need'] == N
    to_gather(w, cfg, role)
    return w

def build_proto(role, cfg, comp):
    w = Wave("p" + role, cfg); a = w.a; E = role == 'E'
    rWS_ = 52; NBAR = len(comp.bars)
    def tick_to(n):
        l = w.lab("tk"); a(f"{l}:\ns_cmp_ge_u32 s31, {n}\ns_cbranch_scc1 {l}x\ns_barrier\ns_add_u32 s31, s31, 1\ns_branch {l}\n{l}x:")
    def srd_w2():
        ffn_line0(w, 60); a(f"s_mul_i32 s60, s60, {64*896}"); srd(w, 40, pW2, 1605632, 60)
    def poll(start, lim, on):
        a(f"s_add_u32 s48, s{pWS}, s60\ns_addc_u32 s49, s{pWS+1}, 0\ns_and_b32 s50, s{sNON}, 0xff\ns_mul_i32 s50, s50, 0x01010101\ns_mov_b32 s51, s50")
        if cfg.TOUCH and on == 1:
            for i in range(4): a(f"s_load_dword s{sT}, s[48:49], {128*i} glc")
        tick_to(start)
        if on != 2: w.stamp("poll")
        if not on: return
        lp = w.lab("po"); a(f"s_waitcnt lgkmcnt(0)\n{lp}:")
        for i in range(4): a(f"s_load_dwordx4 s[{32+4*i}:{35+4*i}], s[48:49], {128*i} glc")
        l = w.lab("tw")
        a(f"{l}:\ns_cmp_ge_u32 s31, {lim}\ns_cbranch_scc1 {l}x\ns_barrier\ns_add_u32 s31, s31, 1\ns_getreg_b32 s{sT}, hwreg(HW_REG_IB_STS, 8, 4)\ns_cmp_lg_u32 s{sT}, 0\ns_cbranch_scc1 {l}\n{l}x:")
        a("s_waitcnt lgkmcnt(0)\ns_xor_b64 vcc, s[32:33], s[50:51]")
        for i in range(1, 8): a(f"s_xor_b64 s[32:33], s[{32+2*i}:{33+2*i}], s[50:51]\ns_or_b64 vcc, vcc, s[32:33]")
        w.retry(lp)
    def tick(lim):
        l = w.lab("tk"); a(f"s_cmp_ge_u32 s31, {lim}\ns_cbranch_scc1 {l}\ns_barrier\ns_add_u32 s31, s31, 1\n{l}:")
    a("s_sub_u32 s30, s3, 6\ns_mov_b32 s31, 0")
    if cfg.BA: a("s_barrier")
    srd(w, rWS_, pWS, WSZ)
    if cfg.TLB:
        l = w.lab("tlb")
        a(f"""s_cmp_lg_u32 s30, 0
s_cbranch_scc1 {l}
s_mul_i32 s59, s{sRB}, {7*65536}
s_add_u32 s59, s59, {XP + 7*8192}
s_add_u32 s60, s59, {6*65536}
v_mov_b32 v2, {OOB}
v_writelane_b32 v2, s59, 0
v_writelane_b32 v2, s60, 1
s_mov_b32 s59, {XFL + (1 << 19)}
v_writelane_b32 v2, s59, 2
s_mov_b32 s59, 4096
v_writelane_b32 v2, s59, 3
s_mov_b32 s59, {7 << 19}
v_writelane_b32 v2, s59, 4
s_mov_b32 s59, {9 << 19}
v_writelane_b32 v2, s59, 5
buffer_load_dword v43, v2, s[{rWS_}:{rWS_+3}], 0 offen
s_branch {l}x
{l}:""")
        srd(w, 36, pW2, 1605632); srd(w, 40, pWO, 401408); srd(w, 44, pOUT, 1835008)
        a(f"""v_mov_b32 v2, 0
s_mul_i32 s59, s{sRB}, 57344
s_cmp_gt_u32 s{sJ}, {cfg.JN}
s_subb_u32 s60, s{sJ}, 0
s_lshl_b32 s60, s60, 7
s_add_u32 s59, s59, s60
s_mov_b64 exec, 1
buffer_load_dword v43, v2, s[36:39], 0 offen
buffer_load_dword v44, v2, s[40:43], 0 offen
buffer_load_dword v45, v2, s[44:47], s59 offen
s_mov_b64 exec, -1
{l}x:""")
    a(f"s_waitcnt lgkmcnt(0)\ns_add_u32 s{sNON}, s{sNON}, 1")
    touch_flags(w, cfg)
    if cfg.A2 >= 0: a("s_barrier")
    if E:
        l = w.lab("seen")
        tick_to(1)
        a(f"""s_cmp_lg_u32 s30, 0
s_cbranch_scc1 {l}
s_and_b32 s59, s{sJ}, 1
s_lshl_b32 s59, s59, 5
s_add_u32 s59, s59, s{sRB}
s_lshr_b32 s60, s59, 4
s_mul_i32 s60, s60, 112
s_add_u32 s59, s59, s60
s_add_u32 s59, s59, {NT2}
v_mov_b32 v2, s{sNON}
s_mov_b64 exec, 1
buffer_store_byte v2, v0, s[{rWS_}:{rWS_+3}], s59 offen sc1
s_mov_b64 exec, -1
{l}:""")
        a(f"""s_and_b32 s59, s{sJ}, 1
s_lshl_b32 s59, s59, 1
s_add_u32 s59, s59, s30
s_lshl_b32 s60, s59, 9
s_and_b32 s61, s{sRB}, {cfg.NREP-1}
s_mul_i32 s61, s61, 2304
s_add_u32 s60, s60, s61
s_add_u32 s60, s60, {NT1}
s_lshl_b32 s59, s59, 13
s_add_u32 s59, s59, {KVF}
s_mul_i32 s61, s30, {HALF}
s_add_u32 s61, s61, {STG + KVB}
v_lshlrev_b32 v3, 4, v0""")
        lim = comp.ev["kvr"] - 1
        poll(comp.ev["kvr"] - cfg.L2T, lim, cfg.L2N)
        w.stamp("l2go")
        for h in range(2):
            a(f"s_add_u32 m0, s61, {h*4096}\ns_add_u32 s58, s59, {h*4096}")
            for i in range(4): a(f"buffer_load_dwordx4 v3, s[{rWS_}:{rWS_+3}], s58 offen offset:{i*1024} sc1 lds")
        tick_to(lim)
        a("s_waitcnt vmcnt(0)")
        w.stamp("l2in")
    elif role == 'M':
        fin2 = w.lab("fin")
        a(f"""s_sub_u32 s59, s{sJ}, 2
s_lshl_b32 s59, s59, 1
s_add_u32 s59, s59, s30
s_lshl_b32 s59, s59, 5
s_add_u32 s61, s59, s{sRB}
s_lshr_b32 s59, s61, 4
s_lshl_b32 s60, s59, 9
s_add_u32 s60, s60, {NT0}
s_mul_i32 s24, s59, 112
s_add_u32 s24, s24, s61
s_add_u32 s24, s24, {NT1}
s_lshl_b32 s59, s59, 17
s_and_b32 s58, s61, 15
s_lshl_b32 s58, s58, 7
s_add_u32 s59, s59, s58
s_add_u32 s59, s59, {KVP}
s_lshl_b32 s61, s61, 7
s_add_u32 s61, s61, {KVF}
v_lshrrev_b32 v20, 3, v0
v_lshlrev_b32 v20, 11, v20
v_and_b32 v33, 7, v0
v_lshl_add_u32 v20, v33, 4, v20
v_lshlrev_b32 v13, 4, v0
v_mul_u32_u24 v14, 2304, v0
s_and_b32 s58, s{sNON}, 0xffff
v_mov_b32 v12, s58
s_mov_b32 s58, 0xffff0000""".replace("s24", "s15"))
        for i in range(1, 8): a(f"v_add_u32 v{20+i}, 16384, v{19+i}")
        a("v_mov_b32 v104, 0x3f80\nv_mov_b32 v105, 1.0")
        poll(comp.ev["l0"] + cfg.L1D, NBAR, 0)
        w.stamp("l1go")
        lp = w.lab("l1_"); a(f"{lp}:")
        if cfg.X1: a("s_or_b32 s59, s59, 1024\ns_and_b32 s60, s61, 1024\ns_lshl_b32 s60, s60, 6\ns_add_u32 s59, s59, s60")
        for i in range(4 if cfg.X1 else 8): a(f"buffer_load_dwordx4 {vr(64+4*i, 4)}, v{20+i}, s[{rWS_}:{rWS_+3}], s59 offen sc1")
        tick(NBAR)
        if 'g' in cfg.X5:
            l = w.lab("nb")
            a(f"{l}:\ns_getreg_b32 s60, hwreg(HW_REG_IB_STS, 0, 4)\ns_cmp_eq_u32 s60, 0\ns_cbranch_scc1 {l}x\ns_cmp_ge_u32 s31, {NBAR}\ns_cbranch_scc1 {l}x\ns_barrier\ns_add_u32 s31, s31, 1\ns_branch {l}\n{l}x:")
        A = 96
        for k in range(3): a(f"v_lshlrev_b32 v{A+k}, 16, v{64+k}")
        for k in range(4): a(f"v_and_b32 v{A+4+k}, s58, v{64+k}")
        a(f"v_mov_b32 v{A+3}, 0\nv_xor_b32 v3, v67, v12")
        for i in range(1, 4 if cfg.X1 else 8):
            R = 64 + 4*i
            a(f"v_xor_b32 v10, v{R+3}, v12\nv_or_b32 v3, v3, v10")
            if cfg.LD:
                a(f"v_and_b32 v{R+3}, s58, v{R+3}\nv_add_f32 v{A+7}, v{A+7}, v{R+3}")
                for k in range(3): a(f"v_dot2c_f32_bf16 v{A+k}, v{R+k}, v104\nv_dot2c_f32_bf16 v{A+4+k}, v{R+k}, v105")
                continue
            for k in range(3): a(f"v_lshlrev_b32 v{104+k}, 16, v{R+k}")
            for k in range(4): a(f"v_and_b32 v{R+k}, s58, v{R+k}")
            for k in range(3): a(f"v_add_f32 v{A+k}, v{A+k}, v{104+k}")
            for k in range(4): a(f"v_add_f32 v{A+4+k}, v{A+4+k}, v{R+k}")
            if i in ((), (3,), (3, 7))[cfg.L1T]: tick(NBAR)
        a("v_and_b32 v3, 0xffff, v3\nv_cmp_ne_u32 vcc, 0, v3")
        for k in range(0, 8, 2): a(f"v_permlane16_swap_b32 v{A+k}, v{A+k+1}")
        w.retry(lp)
        w.stamp("l1ok")
        for k in range(0, 8, 2): a(f"v_add_f32 v{A+k}, v{A+k}, v{A+k+1}")
        for k in (0, 4): a(f"v_permlane32_swap_b32 v{A+k}, v{A+k+2}")
        for k in (0, 4): a(f"v_add_f32 v{A+k}, v{A+k}, v{A+k+2}")
        for k in (0, 4): a(f"v_add_f32_dpp v{A+k}, v{A+k}, v{A+k} row_ror:8 row_mask:0xf bank_mask:0xf")
        a(f"""v_cvt_pk_bf16_f32 v64, v{A}, v{A+4}
v_cvt_pk_bf16_f32 v65, v{A}, v{A+4}
v_permlane16_swap_b32 v64, v65
v_mov_b32 v66, v64
v_mov_b32 v67, v65
v_permlane32_swap_b32 v64, v66
v_permlane32_swap_b32 v65, v67
v_and_or_b32 v67, v67, s58, v12
s_mov_b64 exec, 0xff
buffer_store_dwordx4 v[64:67], v13, s[{rWS_}:{rWS_+3}], s61 offen sc1
s_mov_b32 exec_lo, {hex((1 << cfg.NREP)-1)}
{f"buffer_store_byte v12, v14, s[{rWS_}:{rWS_+3}], s15 offen sc1" if cfg.L2N else ""}
s_mov_b64 exec, -1""")
        w.stamp("l1st")
        a(f"s_lshl_b32 s59, s{sRB}, 3\ns_add_u32 s59, s59, s{sJ}\ns_lshl_b32 s59, s59, 1\ns_add_u32 s59, s59, s30\ns_cmp_lg_u32 s59, 5\ns_cbranch_scc1 {fin2}\ns_mov_b32 s60, {NT2}")
        poll(0, NBAR, 2)
        a(f"{fin2}:")
    mp = cfg.MPE if E else cfg.MP; kS = max(comp.kN, NBAR - cfg.MPX)
    if mp >= 0:
        a(f"s_cmp_eq_u32 s30, 0\ns_cselect_b32 s59, {comp.ev['o'] + mp}, {comp.kN + 1 - cfg.G1}")
        tick_to("s59")
    else: tick_to(comp.kN + 1 - cfg.G1)
    a("s_waitcnt vmcnt(0)")
    gather_stage1(w, cfg)
    if mp >= 0:
        l = w.lab("mp")
        a(f"""s_cmp_lg_u32 s30, 0
s_cbranch_scc1 {l}x
s_cmp_eq_u32 s{sJ}, {cfg.JN}
s_cselect_b32 s56, 0, 0x7f
s_sub_u32 s52, s61, 4096
v_lshlrev_b32 v2, 7, v0
{l}:
s_cmp_ge_u32 s31, {kS}
s_cbranch_scc1 {l}x
s_barrier
s_add_u32 s31, s31, 1""")
        ready_mask(a)
        a(f"""s_cbranch_scc0 {l}n
s_ff1_i32_b32 s59, s57
s_bitset0_b32 s56, s59
s_lshl_b32 s59, s59, 13
s_add_u32 s59, s59, s52
buffer_load_dword v3, v2, s[36:39], s59 offen sc1
{l}n:
s_getreg_b32 s59, hwreg(HW_REG_IB_STS, 8, 4)
s_cmp_gt_u32 s59, 0
s_cbranch_scc1 {l}
s_cmp_ge_u32 s31, {kS - 1}
s_cbranch_scc1 {l}
s_load_dwordx16 s[8:23], s[48:49], 0 glc
s_branch {l}
{l}x:""")
    tick_to(kS + 1)
    gather_stage2(w, cfg); w.stamp("g0iss")
    tick_to(NBAR)
    to_gather(w, cfg, role)
    return w

def build(cfg, verbose=False):
    G = cfg.G; ns = 32 // G; ncg = 8 // ns; lg = lambda n: n.bit_length() - 1
    e = Wave("e", cfg); a = e.a; nr = 448 // G
    a("s_cmp_ge_u32 s2, 256\ns_cbranch_scc1 kernel_exit")
    a("s_load_dwordx16 s[8:23], s[0:1], 0\ns_load_dwordx4 s[24:27], s[0:1], 64\ns_load_dwordx2 s[28:29], s[0:1], 80")
    if cfg.prof or cfg.amp >= 0: a(f"s_memrealtime s[64:65]\ns_mem{'real' if cfg.prof == 2 else ''}time s[100:101]")
    pm = "s_mov_b32 s62, s100\n" if cfg.prof else ""
    disp = lambda n: f"{pm}s_cmp_gt_u32 s46, 1\ns_cbranch_scc1 {n}_M\ns_cmp_eq_u32 s46, 0\ns_cbranch_scc1 {n}_E\ns_branch {n}_N"
    assert cfg.A2 >= 0
    if cfg.EPF:
        a(f"""s_getpc_b64 s[36:37]
entry_pc:
s_and_b32 s37, s37, 0xffff
s_mov_b32 s38, role_E_end-entry_pc+{cfg.PADB}
s_mov_b32 s39, 0x20000
v_lshlrev_b32 v2, 12, v0
s_lshl_b32 s59, s2, 4
s_and_b32 s59, s59, 0xf80
buffer_load_dword v{T8+7}, v2, s[36:39], s59 offen""")
    decode = f"""s_and_b32 s{sJ}, s2, {ncg-1}
s_lshl_b32 s{sJ}, s{sJ}, {lg(ns)}
s_bfe_u32 s{sT}, s2, {hex((lg(ns) << 16) + 3)}
s_add_u32 s{sJ}, s{sJ}, s{sT}
s_lshl_b32 s{sJ}, s{sJ}, 2
s_lshr_b32 s{sJ}, {hex(cfg.JMAP)}, s{sJ}
s_and_b32 s{sJ}, s{sJ}, 7
s_sub_u32 s46, 7, s{sJ}
s_min_u32 s46, s46, s{sJ}
s_mov_b32 s{sSPIN}, {cfg.spin}"""
    a(f"""v_lshrrev_b32 v1, 6, v0
v_and_b32 v0, 63, v0
v_readfirstlane_b32 s3, v1
s_lshr_b32 s{sG}, s2, {3 + lg(ns)}
s_and_b32 s{sRB}, s2, {8 - ncg}
s_lshl_b32 s{sRB}, s{sRB}, {lg(G) - lg(ncg)}
s_add_u32 s{sRB}, s{sRB}, s{sG}
s_cmp_ge_u32 s3, 4
s_cbranch_scc1 helpers
v_lshrrev_b32 v4, 3, v0
v_and_b32 v5, 7, v0
v_mul_u32_u24 v6, 896, v4
v_lshl_add_u32 v6, v5, 4, v6
s_lshl_b32 s59, s{sRB}, 2
s_add_u32 s59, s59, s3
s_mul_i32 s59, s59, {16*896}
s_mov_b32 s34, 1835008
s_mov_b32 s35, 0x20000
s_waitcnt lgkmcnt(0)
s_mov_b32 s32, s{pX}
s_and_b32 s33, s{pX+1}, 0xffff""")
    if cfg.ampl == 'karg' or cfg.GK == 2: e.stamp('karg')
    for i in range(7): a(f"buffer_load_dwordx4 {vr(ACC[0] + 4*i, 4)}, v6, s[{rX}:{rX+3}], s59 offen offset:{i*128}")
    a(f"s_load_dword s{sNON}, s[{pWS}:{pWS+1}], 0\ns_add_u32 s60, s59, {8*896}\ns_lshr_b32 s{sR}, s3, 1\ns_and_b32 s{sC}, s3, 1\n{decode}")
    common_setup(e)
    if cfg.ampl == 'pre1' or cfg.GK == 2: e.stamp('pre1')
    for i in range(7): a(f"buffer_load_dwordx4 {vr(ACC[0] + 28 + 4*i, 4)}, v6, s[{rX}:{rX+3}], s60 offen offset:{i*128}")
    if cfg.BA: a("s_barrier")
    layernorm(e)
    a(disp("comp"))
    xl = [x for x in e.ins if x.op == 'buffer_load_ushort']
    a(f"""helpers:
{decode}
s_lshl_b32 s59, s3, 8
s_sub_u32 s59, s59, 1024
v_lshl_add_u32 v{vOF}, v0, 2, s59
v_mov_b32 v2, 0
ds_write_b32 v{vOF}, v2
s_waitcnt lgkmcnt(0)
s_load_dword s{sNON}, s[{pWS}:{pWS+1}], 0""")
    if cfg.ampl == 'skew':
        srd(e, 36, pDBG, 32); a("v_mov_b32 v2, s64\ns_lshl_b32 s59, s2, 2\nv_mov_b32 v3, s59\nbuffer_store_dword v2, v3, s[36:39], 0 offen sc1")
    srd(e, 32, pQKV, 1204224)
    a("s_cmp_ge_u32 s3, 6\ns_cbranch_scc1 protos")
    a(disp("load") + "\nprotos:")
    a(f"""s_cmp_eq_u32 s3, 6
s_cselect_b32 s36, s{pB1}, s{pB2}
s_cselect_b32 s37, s{pB1+1}, s{pB2+1}
s_cselect_b32 s38, 28, 7
s_lshl_b32 s38, s38, 7
s_and_b32 s37, s37, 0xffff
s_mov_b32 s39, 0x20000
v_lshlrev_b32 v2, 11, v0
s_lshl_b32 s59, s{sG}, 7
buffer_load_dword v38, v2, s[36:39], s59 offen""")
    a(disp("proto"))
    info = {}; texts = {}
    for role in 'MNE':
        c = Compute(role, cfg); c.ins = list(xl); npre = len(c.ins); c.stamps = list(e.stamps)
        c.build()
        st = []; m, o = c.finish(st); texts['c' + role] = (m[npre:], o); info['c' + role] = c.stamps
        if verbose:
            print(role, "compute instrs", len(m), "nops", len(st), sum(p for p, _ in st), "barriers", len(c.bars), "est", int(sum(b['t'] for b in c.bars)), file=sys.stderr)
            if verbose > 1: print(" ".join(f"{int(b['t'])}:{b['need']}/{i}" for b, i in zip(c.bars, c.iss)), file=sys.stderr)
        gw = build_gather(cfg, role); m, o = gw.finish(); texts['g' + role] = (m[gw.npre:], o)
        for k, wv in (('l', build_loader(role, cfg, c)), ('p', build_proto(role, cfg, c))):
            texts[k + role] = wv.finish(); assert len(wv.stamps) <= 8
            info[k + role] = wv.stamps + ['-']*(8-len(wv.stamps)) + gw.stamps[8:] if cfg.prof else []
    out = e.finish()[0]
    lab = dict(c='comp', l='load', p='proto', g='gather')
    def sect(k): return [".p2align 6", f"{lab[k[0]]}_{k[1]}:"] + texts[k][0] + texts[k][1]
    out += ["kernel_exit:", "s_endpgm"]
    for r in 'MNE': out += [".p2align 7", f"role_{r}_start:"] + sect('p'+r) + sect('l'+r) + sect('c'+r) + sect('g'+r) + [f"role_{r}_end:"]
    out += ["s_endpgm"]*(cfg.PADB//4)
    head = f"""; fused LayerNorm + linear attention + squared-ReLU FFN, one launch of 256 workgroups x 8 waves (generated by my own script)
; @launch grid=(256,1,1) block=(512,1,1) lds=163840
.amdgcn_target "amdgcn-amd-amdhsa--gfx950"
.text
.globl {NAME}
.p2align 8
.type {NAME},@function
{NAME}:
"""
    tail = f"""
.section .rodata,"a"
.p2align 6
.amdhsa_kernel {NAME}
  .amdhsa_next_free_vgpr 256
  .amdhsa_next_free_sgpr 102
  .amdhsa_accum_offset 256
  .amdhsa_group_segment_fixed_size 0
  .amdhsa_kernarg_size 88
  .amdhsa_user_sgpr_count 2
  .amdhsa_user_sgpr_kernarg_segment_ptr 1
  .amdhsa_system_sgpr_workgroup_id_x 1
.end_amdhsa_kernel
"""
    return head + "\n".join(out) + tail, info

if __name__ == "__main__":
    import json
    kw = {}
    for x in sys.argv[2:]:
        k, v = x.split("="); kw[k] = int(v, 0) if v.lstrip("-")[0].isdigit() else v
    t, info = build(Cfg(**kw), 2)
    open(sys.argv[1], "w").write(t)
    json.dump(dict(info=info, G=Cfg(**kw).G, JMAP=Cfg(**kw).JMAP, spin=Cfg(**kw).spin), open(sys.argv[1] + ".json", "w"))
```

```python
import sys, struct, re
sys.path.insert(0, 'work')
from dsl import *
NAME = "parallel_sum__linear_attn_block__dense_activation_squared_relu__prompt_kernel"
f2h = lambda f: hex(struct.unpack("<I", struct.pack("<f", f))[0])
OOB = 0x80000000
STG, HALF, RING, NSLOT = 4096, 30720, 65536, 24
HOFF, OOFF = 0, 16384
KVP, KVF, NT0, XP, PROF, WSZ = 1 << 20, 5 << 20, (5 << 20) + 65536, 6 << 20, 32 << 20, 64 << 20
MSG = 2048
NT2 = NT0
NT1 = NT0 + 16384
XFL = 22 << 20
KVB = 8192
sNON = 14
sJ, sRB, sG, sT = 4, 5, 6, 7
pX, pQKV, pWO, pW1, pB1, pW2, pB2, pOUT, pDBG, pWS = 8, 10, 12, 16, 18, 20, 22, 24, 26, 28
sSPIN = 63
SPINMAX = 1 << 12

class Cfg:
    G = 16; JN = 3; BASE_N = 3; SP = 5; TAILE = 4; G1 = 1; MP = 2; MPE = 0; DTE = 800; XM = 0; XH = 4; HOLD = 0; HOLD0 = 1; FAST = 5; DTN = 0; GM = 1; JMAP = 0x74652130; W1A = 4; PK = 0; PL = 4; PLD = 1; PHD = 1; QT = 0; WOA = 0; WOT = 8; OSC = ''; FP = 1; KF = 3; TLB = 0; NPRE = 30; BA = 1; EPF = 1; X5 = ''; X16 = ''; PADB = 1024; GK = 0; A2E = 3; LB = 1; MPX = 4; LAG = 3; FF = 4; LP = 2; X1 = 0; X3 = 0; X4 = 0; PKD = 0; HWS = 11; NREP = 8; STM = 850; STE = 650; WOG = 1; FREE = 0; RCAP = 7; TAILM = 0; XS = 1; PE2 = 1; INITE = 11; L2T = 1; PSL = 0; XROT = 0; dbgst = 0; noL1 = 0; spin = 30000; D = 4; NB = 5; CH = 4; LA = 7; FILL = 2; prof = 0
    pf = 1; amp = -1; ampk = 10; ampl = ''; ampx = -1; ampb = 0; DLY = 0; L1D = 8; L1T = 0; PLN = 2; LD = 1; OP = 1; L1N = 0; A2 = 3; L2N = 0; TOUCH = 1; GT = 73; INIT = 11; W2 = 1; QFILL = 4
    def __init__(self, **kw):
        for k, v in kw.items():
            assert hasattr(Cfg, k), k
            setattr(self, k, v)

def srd(w, d, p, nbytes, off=None):
    if off is None:
        w.a(f"s_mov_b32 s{d}, s{p}\ns_and_b32 s{d+1}, s{p+1}, 0xffff\ns_mov_b32 s{d+2}, {nbytes}")
    else:
        w.a(f"s_add_u32 s{d}, s{p}, s{off}\ns_addc_u32 s{d+1}, s{p+1}, 0\ns_and_b32 s{d+1}, s{d+1}, 0xffff\ns_sub_u32 s{d+2}, {nbytes}, s{off}")
    w.a(f"s_mov_b32 s{d+3}, 0x20000")

class Wave(W):
    def __init__(self, name, cfg):
        super().__init__(name); self.cfg = cfg; self.stamps = []
    def stamp(self, label):
        if self.cfg.amp >= 0 and label == self.cfg.ampl: self.a("s_memrealtime s[72:73]"); self.amped = True
        if self.cfg.prof in (1, 2) and len(self.stamps) < 17 and label not in ("hw", "setup") and not (self.cfg.GK and label in ("gin", "gst")):
            k = 66 + 2*len(self.stamps); self.stamps.append(label); self.a(f"s_mem{'real' if self.cfg.prof == 2 else ''}time s[{k}:{k+1}]")
    def retry(self, label):
        x = self.lab("giveup")
        self.a(f"s_cbranch_vccz {x}\ns_sub_u32 s{sSPIN}, s{sSPIN}, 1\ns_cmp_gt_i32 s{sSPIN}, 0\ns_cbranch_scc1 {label}\n{x}:")
    def ampcalc(self):
        if self.cfg.ampl == 'retry': return f"s_sub_u32 s68, {self.cfg.spin}, s{sSPIN}\ns_mul_i32 s68, s68, 100"
        if self.cfg.ampl != 'skew': return "s_sub_u32 s68, s72, s64"
        return "s_load_dwordx8 s[72:79], s[26:27], 0 glc\ns_waitcnt lgkmcnt(0)\ns_mov_b32 s68, s72\ns_mov_b32 s69, s72\n" + "\n".join(f"s_max_u32 s68, s68, s{72+i}\ns_min_u32 s69, s69, s{72+i}" for i in range(1, 8)) + f"\ns_sub_u32 s68, s{68 if self.cfg.ampx < 0 else 72 + self.cfg.ampx}, s69\ns_add_u32 s68, s68, 5"
    def wsum(self, v):
        L = [f"v_add_u32_dpp v{v}, v{v}, v{v} row_ror:{k} row_mask:0xf bank_mask:0xf" for k in (8, 4, 2, 1)]
        L += [f"v_add_u32_dpp v{v}, v{v}, v{v} row_bcast:15 row_mask:0xa bank_mask:0xf", f"v_add_u32_dpp v{v}, v{v}, v{v} row_bcast:31 row_mask:0xc bank_mask:0xf"]
        return L
    def end(self):
        if self.cfg.prof:
            self.a("s_memrealtime s[100:101]\ns_waitcnt vmcnt(0) lgkmcnt(0)")
            srd(self, 32, pWS, WSZ)
            self.a(f"s_lshl_b32 s{sT}, s2, 3\ns_add_u32 s{sT}, s{sT}, s3\ns_lshl_b32 s{sT}, s{sT}, 7\ns_add_u32 s{sT}, s{sT}, {PROF}")
            self.a("v_mov_b32 v1, 0\ns_mov_b64 exec, 1")
            vals = [64, 100, 62, sSPIN] + [66 + 2*i for i in range(len(self.stamps))] if self.cfg.prof < 3 else [64, 100]
            for i, s in enumerate(vals):
                self.a(f"v_mov_b32 v2, s{s}\nbuffer_store_dword v2, v1, s[32:35], s{sT} offen offset:{4*i}")
        if self.cfg.amp >= 0 and (getattr(self, 'amped', False) or (self.cfg.ampl in ('karg', 'pre1', 'x0', 'x1', 'skew', 'retry') and self.name[0] == 'c')):
            x = self.lab("amp")
            self.a(f"""s_waitcnt vmcnt(0)
s_cmp_lg_u32 s2, {self.cfg.amp}
s_cbranch_scc1 {x}e
s_memrealtime s[66:67]
s_waitcnt lgkmcnt(0)
{self.ampcalc()}
s_min_u32 s68, s68, 20000
s_mul_i32 s68, s68, {self.cfg.ampk}
{x}:
s_memrealtime s[70:71]
s_waitcnt lgkmcnt(0)
s_sub_u32 s69, s70, s66
s_cmp_lt_u32 s69, s68
s_cbranch_scc1 {x}
{x}e:""")
        self.a("s_endpgm")

def chunk_order(w, cfg, dst, mul, E):
    w.a(f"s_add_u32 s{sT}, s{sJ}, 1\ns_cmp_gt_u32 s{sJ}, {cfg.JN}\ns_cselect_b32 s{sT}, s{sJ}, s{sT}")
    w.a(f"s_cmp_eq_u32 s{sJ}, {cfg.JN}\ns_cselect_b32 s{sT}, {cfg.BASE_N}, s{sT}")
    if E:
        assert 1 <= cfg.JN <= 6
        w.a(f"s_cmp_eq_u32 s{sJ}, 0")
        for t in range(7): w.a(f"s_mov_b32 s{dst+t}, {t*mul}\ns_cselect_b32 s{dst+t}, {(6-t)*mul}, s{dst+t}")
        return
    for t in range(7):
        w.a(f"s_cmp_ge_u32 s{sT}, 7\ns_cselect_b32 s{sT}, 0, s{sT}\ns_mul_i32 s{dst+t}, s{sT}, {mul}")
        if t < 6: w.a(f"s_add_u32 s{sT}, s{sT}, 1")

def chunk_seq(cfg, j):
    if j == 0: return [6-t for t in range(7)]
    if j == 7: return list(range(7))
    b = cfg.BASE_N if j == cfg.JN else (j if j > cfg.JN else j+1)
    return [(b+t) % 7 for t in range(7)]
def slot_table(cfg):
    pos = [[7]*7 for _ in range(8)]
    for c in range(7):
        arr = []
        for j in range(8):
            t = chunk_seq(cfg, j).index(c)
            if t == 6 and j != cfg.JN: continue
            arr.append(((cfg.DTE + cfg.STE*(t+1)) if j in (0, 7) else cfg.STM*max(t, 0.5) + j + (cfg.DTN if j in (1, 6) else 0), j, t))
        assert len(arr) == 7
        for k, (_, j, t) in enumerate(sorted(arr)): pos[j][t] = k
    return pos

def ffn_line0(w, d):
    w.a(f"s_lshl_b32 s{d}, s{sJ}, 2\ns_sub_u32 s{d}, s{d}, 2\ns_max_i32 s{d}, s{d}, 0")

def make_groups(role):
    g = []
    if role != 'E':
        for m in 'kv': g += [(m, kb, l) for kb in range(14) for l in range(2)]
        for t in range(4): g += [('w1', kb, t) for kb in range(14)]
        g += [('w2', kb, 0) for kb in range(6)] + [('w2', kb, 1) for kb in range(6)]
        g += [('w2', kb, 0) for kb in (6, 7)] + [('w2', kb, 1) for kb in (6, 7)]
        for t in range(2, 7): g += [('w2', kb, t) for kb in range(8)]
    else:
        for t in range(2): g += [('w1', kb, t) for kb in range(14)]
        for kb in range(14): g += [('q', kb, l) for l in range(4)]
        for kb in range(4): g += [('w2', kb, t) for t in range(7)]
        for t in range(7): g += [('wo', kb, t) for kb in range(7)]
    return g

vLANE, vT0, vT1, vT2 = 0, 1, 2, 3
vBA, vBB = 4, 6
vXW, vXR, vFR, vFW = 8, 9, 10, 11
vKVA, vHA, vOA, vPA = 12, 14, 16, 18
vOWA, vOWB = 18, 19
vMSG, vFOFF, vCK, vNON, vXP, vEM, vTAG, vONES = 20, 21, 22, 23, 24, 25, 26, 27
vQA = 28; vB = 36; T8 = 56
XF = 64; ACC = [176 + 16*i for i in range(5)]
sR, sC, sMSG, sOWN, sL2E, sEPS, sMASK = 30, 31, 48, 55, 56, 57, 58
rX, rWS, rAUX = 32, 36, 40

class Job:
    def __init__(s, acc, act, g, sub, base, wfirst, first=False, span=1, pre=None, fill=None):
        s.acc, s.act, s.g, s.sub, s.base, s.wfirst, s.first, s.span, s.pre, s.fill = acc, act, g, sub, base, wfirst, first, span, pre or [], fill
class Code:
    def __init__(s, fn, fence=True): s.fn, s.fence = fn, fence
class Fill:
    def __init__(s, items, delay=2): s.items, s.delay = items, delay
class Flush: pass
SKIP = "SKIP"

def est_time(ins):
    t = 0; mf = 0; st = 0
    for x in ins:
        if x.kind in ('label', 'comment'): continue
        if x.kind == 'mfma': t = max(t, mf); mf = t + 34; t += 10
        elif x.kind == 'ds_w': t += 70 if '128' in x.op else 35
        elif x.kind == 'vm_s': t += 12; st += 31*4 if x.wide else 12
        elif x.kind == 'vm_l': t += 12; st += 18*4
        elif x.kind == 'ds_r': t += 7
        elif x.note == 'trans': t += 8
        else: t += 4.6
    return t, st

def tile_addr(w, dst, col):
    w.a(f"""v_lshrrev_b32 v{vT0}, 6, v{col}
v_lshl_add_u32 v{dst}, v{vT0}, 12, v{vT1}
v_bfe_u32 v{vT0}, v{col}, 5, 1
v_lshl_add_u32 v{dst}, v{vT0}, 9, v{dst}
v_and_b32 v{vT0}, 31, v{col}
v_lshl_add_u32 v{dst}, v{vT0}, 1, v{dst}
v_add_u32 v{dst+1}, 0x10000, v{dst}""")
def head_addr(w, dst):
    c = T8 + 4
    w.a(f"""v_add_u32 v{c}, s45, v{vT2}
v_cmp_le_u32 vcc, s44, v{c}
v_subrev_u32 v{c+1}, 32, v{c}
v_cndmask_b32 v{c}, v{c}, v{c+1}, vcc""")
    tile_addr(w, dst, c)
def common_setup(w):
    a = w.a; c = T8 + 4
    a(f"""s_mul_i32 s59, s{sR}, {HALF}
s_add_u32 s59, s59, {STG}
s_lshl_b32 s61, s{sC}, 8
s_add_u32 s61, s61, s59
v_mul_u32_u24 v{vXW}, 528, v5
v_lshl_add_u32 v{vXW}, v4, 4, v{vXW}
v_add_u32 v{vXW}, s61, v{vXW}
v_mov_b32 v{vONES}, 0x3f803f80
v_lshlrev_b32 v{vMSG}, 4, v{vLANE}
v_add_u32 v{vFR}, s59, v{vMSG}
s_lshl_b32 s61, s{sC}, 11
v_add_u32 v{vFW}, s61, v{vFR}
v_lshrrev_b32 v{vT0}, 5, v{vLANE}
v_lshl_add_u32 v{vXR}, v{vT0}, 4, v{vFR}
v_lshlrev_b32 v{vT1}, 10, v{vT0}
v_bfe_u32 v{vT0}, v{vLANE}, 2, 2
v_lshl_add_u32 v{vT1}, v{vT0}, 6, v{vT1}
v_add_u32 v{vT1}, {RING}, v{vT1}
v_bfe_u32 v{vT0}, v{vLANE}, 4, 1
v_and_b32 v{vT2}, 3, v{vLANE}
v_lshl_add_u32 v{vT2}, v{vT0}, 2, v{vT2}
v_lshlrev_b32 v{vT2}, 2, v{vT2}
s_lshl_b32 s59, s{sJ}, 2
s_lshr_b32 s45, 0x42345600, s59
s_and_b32 s45, s45, 15
s_lshl_b32 s45, s45, 3
s_min_u32 s59, s46, 2
s_lshr_b32 s59, 112, s59
s_mul_i32 s59, s59, s{sC}
s_add_u32 s45, s45, s59
s_cmp_eq_u32 s46, 0
s_cselect_b32 s44, 2, 1
s_lshl_b32 s44, s44, 7""")
    head_addr(w, vQA); a("s_add_u32 s45, s45, 28"); head_addr(w, vQA + 2)
    a(f"""s_lshl_b32 s59, s{sC}, 9
v_and_b32 v{c}, 2, v{vLANE}
v_lshl_add_u32 v{c}, v{c}, 2, v{vT1}
v_add_u32 v{c}, s59, v{c}
v_and_b32 v{c+1}, 1, v{vLANE}
v_and_b32 v{vT0}, 16, v{vLANE}
v_lshl_add_u32 v{vHA}, v{c+1}, 4, v{c}
v_lshl_add_u32 v{vHA}, v{vT0}, 1, v{vHA}
v_add_u32 v{vHA+1}, 0x10000, v{vHA}
v_lshl_add_u32 v{vOA}, v{c+1}, 5, v{c}
v_add_u32 v{vOA}, v{vT0}, v{vOA}
v_add_u32 v{vOA+1}, 0x10000, v{vOA}""")
    ffn_line0(w, 61); c = vB
    a(f"s_lshl_b32 s59, s61, 7\ns_lshl_b32 s61, s{sC}, 6\ns_add_u32 s59, s59, s61"); srd(w, rAUX, pB1, 3584, 59)
    a(f"""v_and_b32 v{c}, 19, v{vLANE}
v_bfe_u32 v{c+1}, v{vLANE}, 2, 1
v_lshl_add_u32 v{c}, v{c+1}, 3, v{c}
v_bfe_u32 v{c+1}, v{vLANE}, 3, 1
v_lshl_add_u32 v{c}, v{c+1}, 2, v{c}
v_lshrrev_b32 v{c+1}, 5, v{vLANE}
v_lshlrev_b32 v{c+1}, 31, v{c+1}
v_lshl_add_u32 v{c}, v{c}, 1, v{c+1}""")
def layernorm(w):
    a = w.a; T = ACC[0] + 56
    a(f"s_mov_b32 s{sMASK}, 0xffff0000")
    for grp in range(2):
        X = ACC[0] + 28*grp; s1, s2 = T, T+1
        a(f"v_mov_b32 v{s1}, 0\nv_mov_b32 v{s2}, 0")
        for i in range(28): a(f"v_dot2c_f32_bf16 v{s1}, v{X+i}, v{vONES}\nv_dot2c_f32_bf16 v{s2}, v{X+i}, v{X+i}")
        w.stamp(f"x{grp}")
        if grp == 1:
            for t in range(4): a(f"buffer_load_ushort v{T8+t}, v{vB}, s[{rAUX}:{rAUX+3}], 0 offen offset:{t*128}")
        else:
            a(f"s_waitcnt lgkmcnt(0)\ns_add_u32 s{sNON}, s{sNON}, 1\nv_mov_b32 v{vNON}, s{sNON}\nv_and_b32 v{vTAG}, 0xffff, v{vNON}")
        for m in ("quad_perm:[1,0,3,2]", "quad_perm:[2,3,0,1]", "row_half_mirror"):
            for s in (s1, s2): a(f"v_add_f32_dpp v{s}, v{s}, v{s} {m} row_mask:0xf bank_mask:0xf")
        a(f"""v_mul_f32 v{s1}, {f2h(1/448)}, v{s1}
v_mul_f32 v{s2}, {f2h(1/448)}, v{s2}
v_fma_f32 v{s2}, -v{s1}, v{s1}, v{s2}
v_max_f32 v{s2}, 0, v{s2}
v_add_f32 v{s2}, {f2h(1e-5)}, v{s2}
v_rsq_f32 v{T+2}, v{s2}
v_mul_f32 v{T+3}, -v{s1}, v{T+2}""")
        for i0 in range(0, 28, 4):
            t = T + 4
            for k in range(4): a(f"v_lshlrev_b32 v{t+2*k}, 16, v{X+i0+k}\nv_and_b32 v{t+2*k+1}, s{sMASK}, v{X+i0+k}")
            for k in range(4): a(f"v_pk_fma_f32 {vr(t+2*k,2)}, {vr(t+2*k,2)}, {vr(T+2,2)}, {vr(T+2,2)} op_sel:[0,0,1] op_sel_hi:[1,0,1]")
            for k in range(4): a(f"v_cvt_pk_bf16_f32 v{X+i0+k}, v{t+2*k}, v{t+2*k+1}")
            a(f"ds_write_b128 v{vXW}, {vr(X+i0, 4)} offset:{(i0//4)*4224 + grp*128}")
            if grp == 1 and i0//4 == w.cfg.A2: a("s_barrier")

class Compute(Wave):
    def __init__(self, role, cfg):
        super().__init__("c" + role, cfg); self.role = role; self.groups = make_groups(role)
        self.gi = {g: i for i, g in enumerate(self.groups)}
        self.bars = []; self.ev = {}; self.done = -1; self.acq = 0
        extra = {}
        if role == 'E' and cfg.XS:
            g0 = self.gi[('wo', 0, 0)] + NSLOT
            for i in range(8): extra[g0 + i] = (STG + (i & 1)*HALF + (i >> 1)*4096, "kvb" if i < 4 else "o")
        if role != 'E':
            g0 = self.gi[('w1', 0, 0)] + 20
            for i in range(cfg.XM): extra[g0 + i] = (STG + (i & 1)*HALF + OOFF + (i >> 1)*4096, "xdead")
            g1 = self.gi[('w2', 0, 3)]
            for i in range(cfg.XH): extra[g1 + i] = (STG + (i >> 1)*HALF + OOFF + (i & 1)*4096, "o")
        self.baseC = {vHA: vKVA, vOA: vKVA if role == 'E' else vQA + 4, vPA: vQA + 5}
        self.addr = []; self.avail = []; main = []
        for g in range(len(self.groups)):
            if g in extra: self.addr.append(extra[g][0]); self.avail.append(extra[g][1])
            else:
                self.addr.append(RING + (len(main) % NSLOT)*4096); self.avail.append(main[-NSLOT] if len(main) >= NSLOT else -1); main.append(g)
    def barrier(self, need=None, name=None, long=False):
        if need is not None: self.acq = need
        n = 0
        while n < len(self.groups) and self.lastuse[n] <= self.done: n += 1
        self.bars.append(dict(pos=len(self.ins), need=self.acq, nrel=n, long=long))
        self.a("s_barrier")
        if name: self.ev[name] = len(self.bars)
    def emit_fill(self, it):
        if callable(it): it()
        elif it != SKIP: self.a(it)
    def run(self, items):
        cfg = self.cfg; jobs = [x for x in items if isinstance(x, Job)]; N = len(self.groups)
        for n, j in enumerate(jobs): j.n = n
        self.lastuse = {}
        for j in jobs:
            for g in range(j.g, j.g + j.span): self.lastuse[g] = j.n
        lim = {}; cur = len(jobs); nxt = len(jobs)
        for x in reversed(items):
            if isinstance(x, Job): lim[x.n] = cur; nxt = x.n
            elif isinstance(x, Code) and x.fence: cur = nxt
        st = dict(rd=0); fq = []
        self.nextneed = lambda: min(N, max(self.acq, jobs[st['rd']].g + jobs[st['rd']].span - 1 + cfg.CH)) if st['rd'] < len(jobs) else N
        def reads(n):
            j = jobs[n]
            if j.g + j.span > self.acq:
                nd = max(j.g + j.span, self.acq + cfg.CH)
                self.barrier(N if nd > N - (cfg.TAILE if self.role == 'E' else cfg.TAILM) else nd)
            for p in j.pre: self.emit_fill(p)
            ad = self.addr[j.g]; base = (self.baseC.get(j.base), j.base, j.base + 1)[ad >> 16]; imm = (ad & 0xffff) + j.sub*2048
            b = vB + 4*(n % cfg.NB)
            self.a(f"ds_read_b64_tr_b16 {vr(b, 2)}, v{base} offset:{imm}\nds_read_b64_tr_b16 {vr(b+2, 2)}, v{base} offset:{imm+256}")
            st['rd'] = n + 1
        def operands(j): return vset(vB + 4*(j.n % cfg.NB), 4) | vset(j.act, 4)
        for x in items:
            if isinstance(x, Job):
                if st['rd'] <= x.n:
                    while st['rd'] < min(x.n + cfg.D, lim[x.n]): reads(st['rd'])
                b = vr(vB + 4*(x.n % cfg.NB), 4); act = vr(x.act, 4); acc = vr(x.acc, 16)
                A, B = (b, act) if x.wfirst else (act, b)
                x16 = self.role in cfg.X16 and not x.first
                m16 = lambda q: f"v_mfma_f32_16x16x32_bf16 {vr(x.acc + 8*x.sub + 4*q, 4)}, {(A, B)[q]}, {(B, A)[q]}, {vr(x.acc + 8*x.sub + 4*q, 4)}"
                self.a(m16(0) if x16 else f"v_mfma_f32_32x32x16_bf16 {acc}, {A}, {B}, {'0' if x.first else acc}")
                self.done = x.n
                if x16 and 'b' in cfg.X16: self.a(m16(1))
                if st['rd'] < min(x.n + 1 + cfg.D, lim[x.n]): reads(st['rd'])
                if x16 and 'b' not in cfg.X16: self.a(m16(1))
                if cfg.W2:
                    if x.n % 2 == 0:
                        s = set()
                        for k in (x.n+1, x.n+2):
                            if k < st['rd']: s |= operands(jobs[k])
                        self.need(s)
                elif x.n + 1 < st['rd']: self.need(operands(jobs[x.n + 1]))
                bud = x.fill or cfg.FILL
                while fq and bud > 0 and fq[0][0] <= x.n:
                    it = fq.pop(0)[1]; self.emit_fill(it)
                    if it == SKIP: break
                    bud -= 2 if (isinstance(it, str) and it.startswith(TRANS)) else 1
            elif isinstance(x, Fill): fq += [(self.done + x.delay, it) for it in x.items]
            elif isinstance(x, Flush):
                while fq: self.emit_fill(fq.pop(0)[1])
            else: x.fn()
        assert not fq
    def plan_loader(self):
        cfg = self.cfg; N = len(self.groups); iss = []; cur = 0; credit = 0.0
        for k, b in enumerate(self.bars):
            free = cur
            while free < N and (self.ev[self.avail[free]] <= k if isinstance(self.avail[free], str) else self.avail[free] < (self.bars[k-1]['nrel'] if k else 0)): free += 1
            t, st = est_time(self.ins[(self.bars[k-1]['pos'] if k else 0):b['pos']])
            b['t'] = t
            if self.role == 'E' and cfg.WOG and k >= self.ev['o']: st = 0
            credit += (t - st)/cfg.GT
            want = cur + int(credit) if not b['long'] else N
            if k == 0: want = cfg.INITE if self.role == 'E' else cfg.INIT
            la = cfg.LA
            if 'l0' in self.ev and 0 <= k - (self.ev['l0'] + cfg.L1D + cfg.HOLD0) < cfg.HOLD: want = cur; la = cfg.CH; credit = 0
            new = min(max(want, b['need'] + la, cur), free, N)
            assert new >= b['need'], (self.role, k, new, b)
            credit = min(max(credit - (new - cur), 0.0), 0.99)
            cur = new; iss.append(cur)
        self.iss = iss; self.kN = iss.index(N)

    def lazy_setup(self):
        w = W("tmp"); a = w.a; cfg = self.cfg; E = self.role == 'E'
        if E:
            for hh in (2, 3): a("s_add_u32 s45, s45, 28"); head_addr(w, vQA + 2*hh)
            a(f"""v_lshrrev_b32 v{vT0}, 5, v{vLANE}
s_mul_i32 s60, s{sC}, 7168
v_mul_u32_u24 v{vOWB}, 24, v{vT0}
v_sub_u32 v{vOWB}, v{vXR}, v{vOWB}
v_add_u32 v{vOWB}, s60, v{vOWB}
v_mul_u32_u24 v{vOWA}, 496, v{vT0}
v_sub_u32 v{vOWA}, v{vOWB}, v{vOWA}""")
        else:
            a(f"s_lshl_b32 s59, s{sC}, 12\ns_sub_u32 s60, 4096, s59")
            for k in range(2): a(f"v_add_u32 v{vPA+k}, s60, v{vOA+k}\nv_add_u32 v{vOA+k}, s59, v{vOA+k}")
            a(f"""s_lshr_b32 s60, s60, 1
v_add_u32 v{vFR}, s60, v{vFR}
v_and_b32 v{vEM}, 31, v{vLANE}
v_subrev_u32 v{vEM}, 28, v{vEM}
v_ashrrev_i32 v{vEM}, 31, v{vEM}""")
        a(f"s_mov_b32 s{sL2E}, 0x3fb8aa3b\ns_mov_b32 s{sEPS}, 0x358637bd")
        srd(w, rWS, pWS, WSZ)
        js = {'E': (0, 7), 'N': (1, 6), 'M': (2, 3, 4, 5)}[self.role]; pos = slot_table(cfg)
        tab = lambda j, m: sum((c*m + p) << (8*t) for t, (c, p) in enumerate(zip(chunk_seq(cfg, j), pos[j])))
        words = lambda j: [tab(j, 8) & 0xffffffff, tab(j, 8) >> 32, tab(j, 16) & 0xffffffff, tab(j, 16) >> 32]
        for k, x in enumerate(words(js[0])): a(f"s_mov_b32 s{40+k}, {x}")
        for jj in js[1:]:
            a(f"s_cmp_eq_u32 s{sJ}, {jj}")
            for k, x in enumerate(words(jj)): a(f"s_cselect_b32 s{40+k}, {x}, s{40+k}")
        for t in range(7):
            a(f"s_bfe_u32 s{sMSG+t}, s{40 + (t >> 2)}, {hex(0x80000 + 8*(t & 3))}\ns_lshl_b32 s{sMSG+t}, s{sMSG+t}, 13")
            a(f"s_bfe_u32 s{8+t}, s{42 + (t >> 2)}, {hex(0x80000 + 8*(t & 3))}\ns_lshl_b32 s{8+t}, s{8+t}, 3")
        a(f"""s_mul_i32 s59, s{sRB}, {7*32*MSG}
s_lshl_b32 s60, s3, 11
s_add_u32 s59, s59, s60
s_add_u32 s59, s59, {XP}
v_add_u32 v{vXP}, s59, v{vMSG}
s_mul_i32 s59, s{sRB}, 896
s_lshl_b32 s60, s3, 15
s_add_u32 s59, s59, s60
s_add_u32 s59, s59, {XFL}
v_subrev_u32 v{vFOFF}, 63, v{vLANE}
v_and_b32 v{vFOFF}, {OOB}, v{vFOFF}
v_or_b32 v{vFOFF}, s59, v{vFOFF}""")
        if self.role == 'M': a(f"s_lshl_b32 s59, s{sJ}, 1\ns_add_u32 s59, s59, s{sC}")
        if self.role == 'N': a(f"s_and_b32 s59, s{sJ}, 6\ns_add_u32 s59, s59, s{sC}\ns_lshl_b32 s59, s59, 1")
        if not E: a(f"""s_lshl_b32 s59, s59, 5
s_add_u32 s59, s59, s{sRB}
s_lshl_b32 s59, s59, 1
s_add_u32 s59, s59, s{sR}
s_lshl_b32 s59, s59, 11
s_add_u32 s59, s59, {KVP}
s_add_u32 s60, s59, 131072""")
        return [x.text for x in w.ins]
    def bias_init(self, acc, t):
        one = "1.0" if t & 1 else "0x3f80"
        return [f"v_mov_b32 v{vBB + (t >> 1)}, {one}", f"v_mov_b32 v{vBB + 1 - (t >> 1)}, 0", SKIP,
                f"v_mfma_f32_32x32x8bf16_1k {vr(acc, 16)}, {vr(vBA, 2)}, {vr(vBB, 2)}, 0"]
    def phi(self, acc, dst, tmp):
        L = []
        for i0 in range(0, 16, 4):
            r = [acc + i0 + k for k in range(4)]
            L += [f"v_mul_f32 v{tmp+k}, s{sL2E}, v{r[k]}" for k in range(4)]
            for k in range(4): L += [f"v_exp_f32 v{tmp+k}, v{tmp+k} clamp", f"v_max_f32 v{r[k]}, s{sEPS}, v{r[k]}"]
            L += [f"v_add_f32 v{r[k]}, v{r[k]}, v{tmp+k}" for k in range(4)]
            L += [f"v_cvt_pk_bf16_f32 v{dst + i0//2 + k}, v{r[2*k]}, v{r[2*k+1]}" for k in range(2)]
        return L
    def pack(self, acc, dst=None):
        dst = acc if dst is None else dst
        return [f"v_cvt_pk_bf16_f32 v{dst+i}, v{acc+2*i}, v{acc+2*i+1}" for i in range(8)]
    def h_epi(self, acc, dst):
        L = []
        for h in range(2):
            L += [f"v_mul_f32 v{acc+i}, v{acc+i}, abs(v{acc+i})" for i in range(8*h, 8*h+8)]
            L += self.pack(acc, dst)[4*h:4*h+4]
            L += [f"v_pk_max_i16 v{dst+i}, v{dst+i}, 0" for i in range(4*h, 4*h+4)]
        return L
    def h_write(self, src, t):
        for h in range(2): self.a(f"ds_write_b128 v{vFW}, {vr(src+4*h, 4)} offset:{HOFF + (4*t+h)*1024}")
    def send(self, acc, t):
        P = self.pack(acc); L = []
        st = lambda h: f"buffer_store_dwordx4 {vr(acc+4*h, 4)}, v{vXP}, s[{rWS}:{rWS+3}], s{sMSG+t} offen offset:{1024*h} sc1"
        L += P[:4] + [st(0)] + P[4:]
        L += [f"v_add3_u32 v{vCK}, v{acc}, v{acc+1}, v{acc+2}", f"v_add3_u32 v{vT0}, v{acc+3}, v{acc+4}, v{acc+5}",
              f"v_add3_u32 v{vCK}, v{vCK}, v{acc+6}, v{acc+7}", f"v_add_u32 v{vCK}, v{vCK}, v{vT0}"]
        ws = self.wsum(vCK); sp = self.cfg.SP if t < 5 else 0
        for k, x in enumerate(ws):
            if k == sp: L.append(st(1))
            L += [SKIP, x] if t < self.cfg.FAST or k % 2 == 0 else [x]
        if sp >= 6: L.append(st(1))
        L += [f"v_add_u32 v{vCK}, v{vCK}, v{vNON}",
              f"buffer_store_dwordx2 {vr(vCK, 2)}, v{vFOFF}, s[{rWS}:{rWS+3}], s{8+t} offen sc1"]
        if t == 5 and self.cfg.LB: L.append(lambda: self.barrier(len(self.groups)))
        if 'c' in self.cfg.X5: L = [x for x in L if callable(x) or not (x.startswith('v_add') or x == SKIP)]
        d = self.cfg.dbgst
        if d & 1: L = [x for x in L if not x.startswith("buffer_store_dwordx4")]
        if d & 2: L = [x for x in L if not x.startswith("buffer_store_dwordx2")]
        if d & 4: L = [x.replace(" sc1", "") for x in L]
        if d & 8: L = [x for x in L if x.startswith("buffer") or x == SKIP]
        return L
    def kv_epi(self, a):
        K, Dd = ACC[2*a], ACC[2*a+1]; V = K + 8
        L = self.phi(K, K, T8) + self.pack(Dd, V) + [f"v_bfi_b32 v{V+i}, v{vEM}, v{V+i}, v{vONES}" for i in range(8)]
        L += [f"v_mfma_f32_32x32x16_bf16 {vr(Dd,16)}, {vr(K+4*kk,4)}, {vr(V+4*kk,4)}, {vr(Dd,16) if kk else 0}" for kk in range(2)]
        L2 = self.pack(Dd) + [f"v_lshl_or_b32 v{Dd+8}, v{Dd+3}, 16, v{vTAG}", SKIP, f"v_permlane32_swap_b32 v{Dd+6}, v{Dd+7}",
                              f"v_and_or_b32 v{Dd+7}, v{Dd+3}, s{sMASK}, v{vTAG}", f"v_mov_b32 v{Dd+3}, v{Dd+8}"]
        L2 += [f"buffer_store_dwordx4 {vr(Dd+4*i, 4)}, v{vMSG}, s[{rWS}:{rWS+3}], s{59+a} offen offset:{i*1024} sc1" for i in ((1,) if self.cfg.X1 else (1, 0))]
        return L, L2
    def flag_offsets(self):
        L = []
        for t in range(7): L += [f"s_lshr_b32 s{8+t}, s{sMSG+t}, 13", f"s_and_b32 s{sT}, s{8+t}, -8", f"s_add_u32 s{8+t}, s{8+t}, s{sT}", f"s_lshl_b32 s{8+t}, s{8+t}, 3"]
        return L
    def bias_pack(self):
        return [f"v_lshl_or_b32 v{vBA}, v{T8+1}, 16, v{T8}", f"v_mov_b32 v{vBA+1}, 0" if self.role == 'E' else f"v_lshl_or_b32 v{vBA+1}, v{T8+3}, 16, v{T8+2}", SKIP]
    xread = lambda self, s: [f"ds_read_b128 {vr(XF+4*s, 4)}, v{vXR} offset:{s*1056}"]
    def kv_phase(self, items):
        na = 2 if self.role == 'N' else 1
        ep = [self.kv_epi(a) for a in range(na)]
        for wi, m in enumerate('kv'):
            for s in range(28):
                for a in range(na):
                    items.append(Job(ACC[2*a+wi], XF+4*s, self.gi[(m, s >> 1, 0)], s & 1, vQA + 2*a, False, s == 0, 2,
                                     None if a or wi else self.xread(s), (self.cfg.KF if na == 2 else 5) if wi else None))
                if wi == 0 and s == 20: items.append(Fill(self.bias_pack() + self.bias_init(ACC[4], 0), 0))
            items.append(Flush())
            if wi == 0: items.append(Fill(sum((e[0][:72] for e in ep[:1 if 'f' in self.cfg.X5 else 2]), [])))
        items.append(Code(lambda: self.stamp("kvmm"), False))
        def mark(): self.ev["l0"] = len(self.bars); self.stamp("l0st")
        e1, e2 = ep[0][0][72:], ep[0][1]
        if na == 2: e1 = e1 + ep[1][0][72:] + e2; e2 = ep[1][1]
        e1 = [lambda: self.barrier(name="xdead")] + e1
        e2 = e2 + [f"v_subrev_u32 v{c}, 0x10000, v{b}" for b, c in self.baseC.items()]
        items.append(Code(lambda: [self.emit_fill(x) for x in e1], False))
        items.append(Fill(e2 + [mark] + self.bias_init(ACC[2], 1), 3))
    def checksum(self, R, n, fl, cnt):
        a = self.a
        a(f"v_sub_u32 v{vCK}, 0, v{fl}")
        for i in range(0, n, 2): a(f"v_add3_u32 v{vCK}, v{vCK}, v{R+i}, v{R+i+1}")
        for s in self.wsum(vCK): a(s)
        a(f"v_mul_lo_u32 v{vT0}, v{vNON}, {cnt}\nv_add_u32 v{vCK}, v{vCK}, v{vT0}\nv_readlane_b32 s{sT}, v{vCK}, 63")
        a(f"s_cmp_lg_u32 s{sT}, 0\ns_cselect_b64 vcc, -1, 0")
    def finale(self, acc, can_non):
        self.stamp("mmend")
        a = self.a
        a(f"s_lshl_b32 s59, s{sC}, 11\ns_add_u32 s59, s59, {OOFF}\nv_add_u32 v{vT1}, s59, v{vFW}")
        a(f"s_lshl_b32 s59, s3, 8\nv_lshl_add_u32 v{vT2}, v{vLANE}, 2, s59")
        if can_non:
            own, fin = self.lab("own"), self.lab("fin")
            a(f"s_cmp_lg_u32 s{sJ}, {self.cfg.JN}\ns_nop 7\ns_cbranch_scc1 {own}")
            for x in self.send(acc, 6): self.emit_fill(x)
            a(f"s_branch {fin}\n{own}:")
        for i in range(4): a(f"ds_write_b128 v{vT1}, {vr(acc+4*i, 4)} offset:{i*1024}")
        a(f"ds_write_b32 v{vT2}, v{vONES}")
        if can_non: a(f"{fin}:")
        if self.cfg.prof: a("s_waitcnt vmcnt(0)"); self.stamp("end")
        self.end()

    def build(self):
        a = self.a; cfg = self.cfg; gi = self.gi; it = []
        lazy = self.lazy_setup()
        def xbar():
            self.stamp("role")
            for x in lazy[:cfg.NPRE]: a(x)
            a("s_waitcnt lgkmcnt(0)"); self.stamp("ln"); self.barrier(cfg.CH, long=True); self.stamp("b0")
        it.append(Code(xbar)); it.append(Fill(lazy[cfg.NPRE:], 2))
        def xchg(long=False):
            a("s_waitcnt lgkmcnt(0)"); self.barrier(self.nextneed(), long=long, name="o")
        if self.role != 'E':
            self.kv_phase(it)
            buf = [ACC[4], ACC[2], ACC[4], ACC[2]]; HK = [ACC[0], ACC[0]+8, ACC[1], ACC[1]+8]
            for t in range(4):
                it += [Job(buf[t], XF+4*s, gi[('w1', s >> 1, t)], s & 1, vHA, True, fill=(4 if t == 0 and s < 10 else None)) for s in range(28)]
                it.append(Flush())
                it.append(Fill(self.h_epi(buf[t], HK[t]) + (self.bias_init(buf[t], t+2) if t < 2 else [])))
            it.append(Code(lambda: self.stamp("ffn1"), False))
            ob = lambda t: (ACC[4], ACC[3], ACC[2])[t % 3]
            def J(t, h, kk, own, first=False, pre=None, fill=None):
                return Job(ob(t), (HK[h] if own else XF + 8*h) + 4*kk, gi[('w2', 2*h, t)], kk, vOA if own else vPA, True, first, 2, pre, fill)
            for t in range(2): it += [J(t, h, kk, True, h + kk == 0, fill=3) for h in range(3) for kk in range(2)]
            it.append(Flush())
            def hw():
                self.stamp("hw")
                for t in range(4 if 'e' not in cfg.X5 else 1): self.h_write(HK[t], t)
            it.append(Code(hw, False))
            for t in range(2): it += [J(t, 3, kk, True) for kk in range(2)]
            it.append(Code(xchg)); it.append(Code(lambda: self.stamp("hx"), False))
            rd = lambda h, kk: [f"ds_read_b128 {vr(XF+8*h+4*kk, 4)}, v{vFR} offset:{HOFF + (4*h+kk)*1024}"]
            it += [J(0, h, kk, False, pre=rd(h, kk)) for h in range(4) for kk in range(2)] + [Fill(self.send(ob(0), 0))]
            it += [J(1, h, kk, False, fill=3) for h in range(4) for kk in range(2)] + [Fill(self.send(ob(1), 1))]
            for t in range(2, 7):
                it += [J(t, h, kk, own, h + kk == 0 and own, fill=cfg.FF if t > cfg.FAST else 3 if t == 2 else None) for h in range(4) for own in (True, False) for kk in range(2)] + [Flush()]
                if t < 6: it.append(Fill(self.send(ob(t), t)))
            self.run(it)
            self.finale(ob(6), self.role == 'M')
        else:
            buf = [ACC[2], ACC[4]]
            for s in range(28):
                it.append(Job(buf[0], XF+4*s, gi[('w1', s >> 1, 0)], s & 1, vHA, True, s == 0, 1, self.xread(s)))
                if s == 14: it.append(Fill(self.bias_pack() + self.bias_init(buf[1], 1), 0))
                if s == 21: it.append(Flush())
            b0 = self.bias_init(buf[0], 0); b0[-1] = b0[-1][:-1] + vr(buf[0], 16)
            it.append(Fill(b0 + [SKIP]*6 + self.h_epi(buf[0], T8), 3))
            it += [Job(buf[1], XF+4*s, gi[('w1', s >> 1, 1)], s & 1, vHA, True) for s in range(28)] + [Flush()]
            it.append(Fill(self.h_epi(buf[1], buf[1])))
            it.append(Code(lambda: self.stamp("ffn1"), False))
            for s in range(28):
                it += [Job(ACC[hh], XF+4*s, gi[('q', s >> 1, 0)], s & 1, vQA + 2*hh, True, s == 0, 4, fill=1) for hh in range(4)]
                if s == cfg.HWS: it += [Flush(), Code(lambda: (self.ev.update(hw=len(self.bars)), self.h_write(T8, 0), self.h_write(buf[1], 1)), False)]
            it.append(Code(lambda: self.stamp("q"), False))
            f = []
            for hh in range(4):
                d = ACC[0] + 8*hh
                f += self.phi(ACC[hh], d, T8) if 'a' not in cfg.X5 else self.pack(ACC[hh], d)
            it.append(Fill(f))
            for s, t in ([(2*kb + u, t) for kb in range(4) for t in range(7) for u in range(2)] if cfg.GM else [(s, t) for s in range(8) for t in range(7)]):
                hb = ACC[4] + 4*(s & 3)
                if 1:
                    pre = [f"ds_read_b128 {vr(hb, 4)}, v{vFR} offset:{HOFF + s*1024}"] if t == 0 else []
                    it.append(Job(XF + 16*t, hb, gi[('w2', s >> 1, t)], s & 1, vOA, True, s == 0, 1, pre, cfg.QFILL))
            def ocalc():
                self.barrier(name="kvb")
                self.stamp("ffn2a")
            it.append(Code(ocalc)); it.append(Flush())
            def ocalc2():
                KB = ACC[2]
                a(f"""s_and_b32 s59, s{sJ}, 1
s_lshl_b32 s59, s59, 1
s_add_u32 s59, s59, s{sC}
s_lshl_b32 s59, s59, 13
s_add_u32 s59, s59, {KVF}
s_add_u32 s60, s59, 4096
v_subrev_u32 v{vKVA}, 0x10000, v{vOA}
s_mul_i32 s61, s{sC}, {HALF}
s_add_u32 s61, s61, {STG + KVB}
v_add_u32 v{vXW}, s61, v{vMSG}
s_mov_b32 s61, 0x07060302""")
                self.stamp("phi")
                self.barrier(name="kvr", long=True)
                self.stamp("kvr")
                for i in range(8): a(f"ds_read_b128 {vr(KB+4*i, 4)}, v{vXW} offset:{i*1024}")
                lp, ck = self.lab("l2_"), self.lab("l2c")
                a(f"{ck}:\nv_mov_b32 v{vT0}, 0")
                for hh in range(4):
                    a(f"v_xor_b32 v{vT1}, v{KB+8*hh+3}, v{vTAG}\nv_xor_b32 v{vT2}, v{KB+8*hh+7}, v{vTAG}\nv_or3_b32 v{vT0}, v{vT0}, v{vT1}, v{vT2}")
                    a(f"v_perm_b32 v{KB+8*hh+3}, v{KB+8*hh+7}, v{KB+8*hh+3}, s61\nv_mov_b32 v{KB+8*hh+7}, 0")
                a(f"v_and_b32 v{vT0}, 0xffff, v{vT0}\nv_cmp_ne_u32 vcc, 0, v{vT0}")
                for hh in range(4): a(f"v_permlane32_swap_b32 v{KB+8*hh+6}, v{KB+8*hh+7}")
                self.retry(lp)
                self.ool += [f"{lp}:"]
                self.ool += [f"buffer_load_dwordx4 {vr(KB+4*i, 4)}, v{vMSG}, s[{rWS}:{rWS+3}], s{59 + (i >> 2)} offen offset:{(i & 3)*1024} sc1" for i in range(8)]
                self.ool += ["s_waitcnt vmcnt(0)", f"s_branch {ck}"]
                self.stamp("kvok")
                nb = [ACC[4], vB, ACC[4], vB]
                def mm(hh):
                    for kk in range(2):
                        a(f"v_mfma_f32_32x32x16_bf16 {vr(nb[hh],16)}, {vr(KB+8*hh+4*kk,4)}, {vr(ACC[0]+8*hh+4*kk,4)}, {vr(nb[hh],16) if kk else 0}")
                def ep(hh):
                    n = nb[hh]
                    a(f"v_mov_b32 v{vT0}, v{n+12}\nv_mov_b32 v{vCK}, v{n+12}\nv_permlane32_swap_b32 v{vT0}, v{vCK}")
                    a(f"v_add_f32 v{vCK}, s{sEPS}, v{vCK}\nv_rcp_f32 v{vCK}, v{vCK}")
                    for i in range(4):
                        for k in range(4): a(f"v_mul_f32 v{n+4*i+k}, v{n+4*i+k}, v{vCK}")
                        for k in range(2): a(self.pack(n)[2*i+k])
                        g0 = 7*hh + 2*i
                        off = OOFF + (g0 >> 2)*1024 + ((g0 >> 1) & 1)*512 + (g0 & 1)*8
                        if i == 3: a("s_mov_b32 exec_hi, 0")
                        a(f"ds_write_b64 v{vOWB if g0 & 1 else vOWA}, {vr(n+2*i, 2)} offset:{off}")
                        if i == 3: a("s_mov_b32 exec_hi, -1")
                if cfg.OP:
                    nb = [ACC[4], vB, ACC[2], ACC[0]]; dn = [T8 + 2*hh for hh in range(4)]
                    for hh in range(4): mm(hh)
                    for hh in range(4): a(f"v_mov_b32 v{dn[hh]}, v{nb[hh]+12}\nv_mov_b32 v{dn[hh]+1}, v{nb[hh]+12}")
                    for hh in range(4): a(f"v_permlane32_swap_b32 v{dn[hh]+1}, v{dn[hh]}")
                    for hh in range(4): a(f"v_add_f32 v{dn[hh]}, s{sEPS}, v{dn[hh]}")
                    for hh in range(4): a(f"v_rcp_f32 v{dn[hh]}, v{dn[hh]}")
                    for i in range(4):
                        if i == 3: a("s_mov_b32 exec_hi, 0")
                        for hh in range(4):
                            n = nb[hh]; g0 = 7*hh + 2*i
                            for k in (0, 2): a(f"v_pk_mul_f32 {vr(n+4*i+k, 2)}, {vr(n+4*i+k, 2)}, {vr(dn[hh], 2)} op_sel_hi:[1,0]")
                            for k in range(2): a(f"v_cvt_pk_bf16_f32 v{n+4*i+k}, v{n+4*i+2*k}, v{n+4*i+2*k+1}")
                            a(f"ds_write_b64 v{vOWB if g0 & 1 else vOWA}, {vr(n+4*i, 2)} offset:{OOFF + (g0 >> 2)*1024 + ((g0 >> 1) & 1)*512 + (g0 & 1)*8}")
                    a("s_mov_b32 exec_hi, -1")
                else:
                    mm(0); mm(1); ep(0); mm(2); ep(1); mm(3); ep(2); ep(3)
                xchg(True)
                self.stamp("o")
            it.append(Code(ocalc2))
            for t in range(7):
                for s in range(14):
                    pre = [f"ds_read_b128 {vr(ACC[0]+4*s, 4)}, v{vFR} offset:{OOFF + s*1024}"] if t == 0 else []
                    it.append(Job(XF + 16*t, ACC[0]+4*s, gi[('wo', s >> 1, t)], s & 1, vOA, True, False, 1, pre, cfg.FF if t > cfg.FAST else 3))
                it.append(Flush())
                if t < 6: it.append(Fill(self.send(XF + 16*t, t)))
            self.run(it)
            self.finale(XF + 96, False)
        self.plan_loader()

def weight_srds(w, E):
    w.a(f"s_mul_i32 s49, s{sJ}, 56\ns_lshr_b32 s49, s49, 6\ns_lshl_b32 s49, s49, 7")
    if E:
        w.a(f"s_and_b32 s48, s{sJ}, 1\ns_mul_i32 s59, s48, {224*896}\ns_mul_i32 s48, s48, 384")
        srd(w, 44, pWO, 401408, 59)
    ffn_line0(w, 60)
    w.a("s_lshl_b32 s59, s60, 7"); srd(w, 36, pW1, 1605632, 59)
    w.a(f"s_mul_i32 s59, s60, {64*896}"); srd(w, 40, pW2, 1605632, 59)

class Pf:
    def __init__(s, w): s.w = w; s.n = 0; assert w.cfg.G == 16
    def new(s, rs):
        s.n += 1; v = 16 + s.n
        return v, f"buffer_load_dword v{48 + s.n}, v{v}, s[{rs}:{rs+3}], 0 offen"
    def cols(s, rs, sbase, off, stride, nl, lstep=None):
        v, ins = s.new(rs)
        line = f"v_min_u32 v9, {nl-1}, v9\nv_lshl_add_u32 v{v}, v9, 7, v{v}" if lstep is None else \
               f"v_and_b32 v10, 1, v9\nv_lshl_add_u32 v{v}, v10, 7, v{v}\nv_lshrrev_b32 v9, 1, v9\nv_mul_u32_u24 v9, {lstep}, v9\nv_add_u32 v{v}, v9, v{v}"
        s.w.a(f"""s_mul_i32 s60, s61, 14
v_and_b32 v{v}, 15, v0
v_min_u32 v{v}, 13, v{v}
v_add_u32 v{v}, s60, v{v}
v_mul_u32_u24 v{v}, {stride}, v{v}
v_lshrrev_b32 v9, 4, v0
{line}""")
        if off: s.w.a(f"v_add_u32 v{v}, {off}, v{v}")
        if sbase is not None: s.w.a(f"v_add_u32 v{v}, s{sbase}, v{v}")
        return ins
    def chunks(s, rs, nr, t0, t1):
        v, ins = s.new(rs)
        s.w.a(f"s_mul_i32 s60, s61, {nr}\nv_and_b32 v{v}, 7, v0\nv_min_u32 v{v}, {nr-1}, v{v}\nv_add_u32 v{v}, s60, v{v}\nv_mul_u32_u24 v{v}, 896, v{v}\nv_mov_b32 v9, s{50+t0}")
        for t in range(t0+1, t1): s.w.a(f"v_mov_b32 v10, s{50+t}\nv_cmp_le_u32 vcc, {8*(t-t0)}, v0\nv_cndmask_b32 v9, v9, v10, vcc")
        s.w.a(f"v_add_u32 v{v}, v9, v{v}")
        return ins

gA, gR, gY = 16, 64, 128
vGO, vGB, vGM, vGC, vGT, vGN, vLO, vHI, vXD, vTW, vTR, vOF = 36, 37, 39, 32, 33, 34, 35, 15, 38, 40, 41, 42
def gather_stage1(w, cfg):
    a = w.a
    srd(w, 32, pX, 1835008); srd(w, 36, pWS, WSZ)
    a(f"""s_mov_b64 s[0:1], s[{pB2}:{pB2+1}]
s_sub_u32 s57, s3, 4
s_cmp_gt_u32 s{sJ}, {cfg.JN}
s_subb_u32 s58, s{sJ}, 0
s_mul_i32 s61, s{sRB}, 7
s_add_u32 s61, s61, s58
s_lshl_b32 s60, s57, 8
s_add_u32 s60, s60, s61
s_lshl_b32 s60, s60, 7
s_add_u32 s60, s60, {XFL}
s_add_u32 s48, s{pWS}, s60
s_addc_u32 s49, s{pWS+1}, 0
s_waitcnt lgkmcnt(0)
s_mov_b32 s26, s{sNON}
s_load_dwordx16 s[8:23], s[48:49], 0 glc
s_lshl_b32 s61, s61, 5
s_add_u32 s61, s61, s57
s_lshl_b32 s61, s61, 11
s_add_u32 s61, s61, {XP}
s_lshl_b32 s58, s58, 7
s_and_b32 s60, s57, 1
s_lshl_b32 s60, s60, 6
s_add_u32 s58, s58, s60
s_lshr_b32 s27, s57, 1
s_lshl_b32 s60, s{sRB}, 1
s_add_u32 s60, s60, s27
s_mul_i32 s60, s60, {32*896}
s_add_u32 s60, s60, s58
v_lshrrev_b32 v{vTR}, 2, v0
v_and_b32 v{vGM}, 3, v0
v_mul_u32_u24 v{vGO}, 896, v{vTR}
v_lshl_add_u32 v{vGO}, v{vGM}, 4, v{vGO}
v_mul_u32_u24 v{vTR}, 80, v{vTR}
v_lshl_add_u32 v{vTR}, v{vGM}, 4, v{vTR}
v_and_b32 v{vGB}, 32, v0
v_and_b32 v{vGM}, 31, v0
v_lshl_add_u32 v{vXD}, v{vGM}, 6, v{vGB}
v_lshl_add_u32 v{vTW}, v{vGM}, 4, v{vXD}
v_lshlrev_b32 v{vGM}, 4, v0
s_mul_i32 s27, s27, {HALF}
s_and_b32 s57, s57, 1
s_lshl_b32 s57, s57, 11
s_add_u32 s27, s27, s57
s_add_u32 s57, s57, s27
s_add_u32 s57, s57, {STG + OOFF}
s_add_u32 s27, s27, {STG + OOFF + 8192}
v_add_u32 v{vGT}, s57, v{vGM}
v_add_u32 v{vTW}, s57, v{vTW}
v_add_u32 v{vTR}, s57, v{vTR}
v_add_u32 v{vXD}, s27, v{vXD}
v_mov_b32 v{vGN}, s26""")

def ready_mask(a):
    a("s_mov_b32 s57, 0")
    for i in range(7, -1, -1): a(f"s_cmp_eq_u32 s{9+2*i}, s26\ns_addc_u32 s57, s57, s57")
    a("s_and_b32 s57, s57, s56")
def cksum_total(a):
    a("s_bcnt1_i32_b32 s51, s30\ns_mul_i32 s51, s51, s26")
    for i in range(8): a(f"s_bitcmp1_b32 s30, {i}\ns_cselect_b32 s59, s{8+2*i}, 0\ns_sub_u32 s51, s51, s59")

def gather_stage2(w, cfg):
    a = w.a
    srd(w, 40, 0, 896); srd(w, 44, pOUT, 1835008)
    a(f"s_add_u32 s57, s60, {16*896}")
    for h in range(2):
        a(f"s_add_u32 m0, s27, {h*1024}\nbuffer_load_dwordx4 v{vGO}, s[32:35], s{57 if h else 60} offen lds")
        a(f"buffer_load_dwordx4 {vr(gY+8+4*h, 4)}, v{vGB}, s[40:43], s58 offen offset:{16*h}")
    a(f"s_load_dwordx16 s[8:23], s[48:49], 0 glc")
    for k in range(7): a(f"s_add_u32 s{50+k}, s61, {k*8192}")
    a(f"v_mov_b32 v{vLO}, 0x3f80\nv_mov_b32 v{vHI}, 1.0\nv_mov_b32 v{vGC}, 0")
    return 4

def build_gather(cfg, role):
    w = Wave("g" + role, cfg); E = role == 'E'; gS, gT = 144, 160
    a = lambda t: w.a(re.sub(r"\bg_", f"g{role}_", t))
    w.stamps = ["-"]*8
    POLL = "s_load_dwordx16 s[8:23], s[48:49], 0 glc"
    def addp(x):
        L = []
        for i in range(8):
            L += [f"v_lshlrev_b32 v{vLO}, 16, v{x+i}", f"v_and_b32 v{vHI}, s27, v{x+i}", f"v_add_f32 v{gA+2*i}, v{gA+2*i}, v{vLO}", f"v_add_f32 v{gA+2*i+1}, v{gA+2*i+1}, v{vHI}"]
        return L
    def addd(x):
        return [f"v_dot2c_f32_bf16 v{gA+k}, v{x+k//2}, v{vHI if k & 1 else vLO}" for k in range(16)]
    ld = lambda k: [f"buffer_load_dwordx4 {vr(gR+8*k+4*h, 4)}, v{vGM}, s[36:39], s{50+k} offen offset:{1024*h} sc1" for h in range(2)]
    def base(mid=None):
        for i in range(4): a(f"ds_read_b128 {vr(gT+4*i, 4)}, v{vGT} offset:{i*1024}")
        a("s_waitcnt lgkmcnt(0)")
        if mid: a(mid)
        for i in range(16): a(f"v_add_f32 v{gA+i}, v{gA+i}, v{gT+i}")
    def process(k):
        if k == 6: a("s_waitcnt vmcnt(0)"); w.stamp("gin")
        for q in range(0, 8, 2): a(f"v_add3_u32 v{vGC}, v{vGC}, v{gR+8*k+q}, v{gR+8*k+q+1}")
        L = addd(gR + 8*k)
        if k == 6:
            for x in w.wsum(vGC) + [f"v_readlane_b32 s59, v{vGC}, 63"]:
                a(L.pop(0)); a(L.pop(0)); a(x)
        for x in L: a(x)
    w.npre = 0
    w.stamp("gstart")
    a("g_top:\ns_mov_b32 s31, 1\ns_mov_b32 s27, 0xffff0000\ns_waitcnt vmcnt(0)")
    for h in range(2): a(f"ds_read_b128 {vr(gY+4*h, 4)}, v{vXD} offset:{16*h}")
    done = 0
    for k in range(7):
        a(f"s_cmp_lg_u32 s{9+2*k}, s26\ns_cbranch_scc1 g_wait{k}\ng_go{k}:")
        w.ool += re.sub(r"\bg_", f"g{role}_", f"""g_wait{k}:
s_waitcnt lgkmcnt(0)
s_cmp_eq_u32 s{9+2*k}, s26
s_cbranch_scc1 g_go{k}
s_sub_u32 s{sSPIN}, s{sSPIN}, 1
s_cmp_le_i32 s{sSPIN}, 0
s_cbranch_scc1 g_go{k}
s_call_b64 s[58:59], g_idle
s_branch g_wait{k}""").split("\n")
        if cfg.GK and k in (0, 2, 3, 4, 5): w.stamp(f"go{k}")
        for x in ld(k) if k >= cfg.X3 else []: a(x)
        if k == 0:
            a("s_waitcnt lgkmcnt(0)")
            if cfg.FP: a(POLL)
            for i in range(8): a(f"v_lshlrev_b32 v{gA+2*i}, 16, v{gY+i}\nv_and_b32 v{gA+2*i+1}, s27, v{gY+i}")
            a("s_mov_b32 s31, 0")
        if k == 2:
            for x in addd(gY+8): a(x)
        if cfg.LAG <= k < 6: process(done); done += 1
    w.stamp("gall")
    a("s_mul_i32 s30, s26, 7")
    for i in range(7): a(f"s_sub_u32 s30, s30, s{8+2*i}")
    a(f"""s_cmp_lg_u32 s31, 0
s_cbranch_scc1 g_sum
g_ownw:
ds_read_b32 v{gT}, v{vOF}
s_sub_u32 s{sSPIN}, s{sSPIN}, 1
s_cmp_le_i32 s{sSPIN}, 0
s_waitcnt lgkmcnt(0)
s_cbranch_scc1 g_redo
v_cmp_eq_u32 vcc, 0, v{gT}
s_cbranch_vccnz g_ownw
g_redo:""")
    base()
    a("g_sum:")
    for k in range(done, 7): process(k)
    a("s_add_u32 s59, s59, s30\ns_cmp_lg_u32 s59, 0\ns_cbranch_scc1 g_fail\ng_done:".replace("s_cmp_lg_u32 s59, 0", "s_cmp_lg_u32 s59, s59" if cfg.X3 or 'c' in cfg.X5 else "s_cmp_lg_u32 s59, 0"))
    a("s_waitcnt lgkmcnt(0)")
    for h in range(2):
        for i in range(4*h, 4*h+4): a(f"v_cvt_pk_bf16_f32 v{gA+i}, v{gA+2*i}, v{gA+2*i+1}")
        a(f"ds_write_b128 v{vTW}, {vr(gA+4*h, 4)} offset:{16*h}")
    for u in range(2): a(f"ds_read_b128 {vr(gA+8+4*u, 4)}, v{vTR} offset:{u*1280}")
    for u in range(2): a(f"buffer_store_dwordx4 {vr(gA+8+4*u, 4)}, v{vGO}, s[44:47], s{57 if u else 60} offen {cfg.OSC.replace('_', ' ')}")
    w.stamp("gst")
    a(f"""s_lshl_b32 s59, s{sRB}, 3
s_add_u32 s59, s59, s{sJ}
s_lshl_b32 s59, s59, 3
s_add_u32 s59, s59, s3
s_cmp_lg_u32 s59, {2*8 + 7}
s_cbranch_scc1 g_exit
s_mov_b64 exec, 1
buffer_store_dword v{vGN}, v{vGM}, s[36:39], 0 offen sc1
s_mov_b64 exec, -1
g_exit:""")
    if cfg.prof: a("s_waitcnt vmcnt(0)"); w.stamp("gend"); w.stamps.append("gF")
    w.end()
    if cfg.prof: w.stamps.pop()
    a(f"g_fail:\ns_sub_u32 s{sSPIN}, s{sSPIN}, {1000 if cfg.prof else 64}\ns_cmp_le_i32 s{sSPIN}, 0\ns_cbranch_scc1 g_done")
    a(f"""s_waitcnt lgkmcnt(0)
{POLL}
v_mov_b32 v{vGC}, 0
s_waitcnt lgkmcnt(0)
s_branch g_top
g_idle:
s_cmp_lg_u32 s31, 0
s_cbranch_scc1 g_idle2
ds_read_b32 v{gT}, v{vOF}
s_waitcnt lgkmcnt(0)
v_cmp_eq_u32 vcc, 0, v{gT}
s_cbranch_vccnz g_idle2
s_mov_b32 s31, 1""")
    w.stamp("gF")
    base(POLL)
    a(f"s_setpc_b64 s[58:59]\ng_idle2:\n{POLL}\ns_setpc_b64 s[58:59]")
    return w

def touch_flags(w, cfg):
    if cfg.TOUCH: w.a(f"""s_cmp_gt_u32 s{sJ}, {cfg.JN}
s_subb_u32 s60, s{sJ}, 0
s_mul_i32 s61, s{sRB}, 7
s_add_u32 s60, s60, s61
s_lshl_b32 s61, s3, 8
s_add_u32 s60, s60, s61
s_lshl_b32 s60, s60, 7
s_add_u32 s60, s60, {XFL - 131072}
s_load_dword s26, s[{pWS}:{pWS+1}], s60 glc""")

def to_gather(w, cfg, role):
    assert 3 <= cfg.JN <= 5
    if role == 'M': w.a(f"s_cmp_eq_u32 s{sJ}, {cfg.JN}\ns_cbranch_scc1 gM_exit")
    w.a(f"s_branch gather_{role}")

def build_loader(role, cfg, comp):
    w = Wave("l" + role, cfg); a = w.a; E = role == 'E'
    vo = {2688: 2, 3584: 3, 896: 4}
    weight_srds(w, E); chunk_order(w, cfg, 50, 128, E)
    a(f"""s_sub_u32 s30, s3, 4
s_lshl_b32 s31, s30, 11
s_lshl_b32 s59, s30, 4
v_bfe_u32 v12, v0, 2, 3
v_add_u32 v12, s59, v12
v_lshrrev_b32 v13, 5, v0
v_lshlrev_b32 v13, 6, v13
v_and_b32 v14, 3, v0
v_lshl_add_u32 v13, v14, 4, v13""")
    for st, r in vo.items(): a(f"v_mul_u32_u24 v{r}, {st}, v12\nv_add_u32 v{r}, v{r}, v13")
    pf = Pf(w); ev = comp.ev; late = {}; first = []
    def at(k, fn): late.setdefault(k, []).append(fn)
    a(f"s_lshl_b32 s61, s{sG}, 1\ns_add_u32 s61, s61, s30")
    if E:
        first.append(pf.cols(36, None, 0, 3584, 2))
        if cfg.QT < 0: first.append(pf.cols(32, 48, 0, 2688, 4))
        else: at(cfg.QT, lambda: pf.cols(32, 48, 0, 2688, 4))
        at(ev['hw'] - cfg.PE2, lambda: pf.chunks(40, 4, 0, 7))
        if cfg.WOA: at(ev['hw'] - cfg.PE2, lambda: pf.chunks(44, 7, 0, cfg.WOA))
        if cfg.WOA < 7: at(ev['kvb'] - cfg.WOT, lambda: pf.chunks(44, 7, cfg.WOA, 7))
    else:
        first += [pf.cols(32, 49, 896, 2688, 4, 896), pf.cols(36, None, 0, 3584, cfg.W1A)]
        if cfg.W1A < 4: at(ev['xdead'] - cfg.PKD, lambda: pf.cols(36, None, cfg.W1A*128, 3584, 4 - cfg.W1A))
        if cfg.PK: at(ev['xdead'] - cfg.PKD, lambda: pf.chunks(40, 8, 0, cfg.PK))
        if cfg.PL > cfg.PK: at(ev['l0'] + (cfg.L1D + cfg.PLD - 1 if role == 'M' else cfg.PLN), lambda: pf.chunks(40, 8, cfg.PK, cfg.PL))
        if cfg.PL < 7: at(ev['o'] - 1 - cfg.PHD, lambda: pf.chunks(40, 8, cfg.PL, 7))
    if cfg.BA: a("s_barrier")
    w.stamp("start")
    for x in first: a(x)
    a(f"s_waitcnt lgkmcnt(0)\ns_add_u32 s{sNON}, s{sNON}, 1")
    late = {k: [f() for f in v] for k, v in late.items()}
    touch_flags(w, cfg)
    if cfg.A2 >= 0: a("s_barrier")
    N = len(comp.groups); g = 0; ops = []
    for k, b in enumerate(comp.bars):
        while g < comp.iss[k]:
            m, kb, l = comp.groups[g]
            rs, st, base, lit = {'k': (32, 2688, 49, 896 + l*128), 'v': (32, 2688, 49, 1792 + l*128),
                                 'q': (32, 2688, 48, l*128), 'w1': (36, 3584, None, l*128),
                                 'w2': (40, 896, 50 + l, 0), 'wo': (44, 896, 50 + l, 0)}[m]
            for p in range(2):
                if cfg.X4 and g % cfg.X4 == cfg.X4 - 3 and g > 30: continue
                o = lit + (kb*32 + p*8)*st
                a(f"s_add_u32 m0, s31, {comp.addr[g] + p*1024}")
                a(f"s_mov_b32 s59, {o}" if base is None else f"s_add_u32 s59, s{base}, {o}")
                a(f"buffer_load_dwordx4 v{vo[st]}, s[{rs}:{rs+3}], s59 offen lds"); ops.append(g)
            g += 1
            if g in (comp.iss[0], 56, 112, N): w.stamp(f"iss{g}")
        for x in late.pop(k, []): a(x); ops.append(-1)
        assert cfg.G1 >= 1
        if k == comp.kN + 1 - cfg.G1: gather_stage1(w, cfg)
        a(f"s_waitcnt vmcnt({len(ops) - ops.index(max(x for x in ops if x < b['need'])) - 2})\ns_barrier")
        if k == comp.kN: ops += [-1]*gather_stage2(w, cfg); w.stamp("g0iss")
        if k == len(comp.bars) - 1 - cfg.LP and k > comp.kN + 1: a("s_load_dwordx16 s[8:23], s[48:49], 0 glc")
    assert not late
    assert comp.bars[-1]['need'] == N
    to_gather(w, cfg, role)
    return w

def build_proto(role, cfg, comp):
    w = Wave("p" + role, cfg); a = w.a; E = role == 'E'
    rWS_ = 52; NBAR = len(comp.bars)
    def tick_to(n):
        l = w.lab("tk"); a(f"{l}:\ns_cmp_ge_u32 s31, {n}\ns_cbranch_scc1 {l}x\ns_barrier\ns_add_u32 s31, s31, 1\ns_branch {l}\n{l}x:")
    def srd_w2():
        ffn_line0(w, 60); a(f"s_mul_i32 s60, s60, {64*896}"); srd(w, 40, pW2, 1605632, 60)
    def poll(start, lim, on):
        a(f"s_add_u32 s48, s{pWS}, s60\ns_addc_u32 s49, s{pWS+1}, 0\ns_and_b32 s50, s{sNON}, 0xff\ns_mul_i32 s50, s50, 0x01010101\ns_mov_b32 s51, s50")
        if cfg.TOUCH and on == 1:
            for i in range(4): a(f"s_load_dword s{sT}, s[48:49], {128*i} glc")
        tick_to(start)
        if on != 2: w.stamp("poll")
        if not on: return
        lp = w.lab("po"); a(f"s_waitcnt lgkmcnt(0)\n{lp}:")
        for i in range(4): a(f"s_load_dwordx4 s[{32+4*i}:{35+4*i}], s[48:49], {128*i} glc")
        l = w.lab("tw")
        a(f"{l}:\ns_cmp_ge_u32 s31, {lim}\ns_cbranch_scc1 {l}x\ns_barrier\ns_add_u32 s31, s31, 1\ns_getreg_b32 s{sT}, hwreg(HW_REG_IB_STS, 8, 4)\ns_cmp_lg_u32 s{sT}, 0\ns_cbranch_scc1 {l}\n{l}x:")
        a("s_waitcnt lgkmcnt(0)\ns_xor_b64 vcc, s[32:33], s[50:51]")
        for i in range(1, 8): a(f"s_xor_b64 s[32:33], s[{32+2*i}:{33+2*i}], s[50:51]\ns_or_b64 vcc, vcc, s[32:33]")
        w.retry(lp)
    def tick(lim):
        l = w.lab("tk"); a(f"s_cmp_ge_u32 s31, {lim}\ns_cbranch_scc1 {l}\ns_barrier\ns_add_u32 s31, s31, 1\n{l}:")
    a("s_sub_u32 s30, s3, 6\ns_mov_b32 s31, 0")
    if cfg.BA: a("s_barrier")
    srd(w, rWS_, pWS, WSZ)
    if cfg.TLB:
        l = w.lab("tlb")
        a(f"""s_cmp_lg_u32 s30, 0
s_cbranch_scc1 {l}
s_mul_i32 s59, s{sRB}, {7*65536}
s_add_u32 s59, s59, {XP + 7*8192}
s_add_u32 s60, s59, {6*65536}
v_mov_b32 v2, {OOB}
v_writelane_b32 v2, s59, 0
v_writelane_b32 v2, s60, 1
s_mov_b32 s59, {XFL + (1 << 19)}
v_writelane_b32 v2, s59, 2
s_mov_b32 s59, 4096
v_writelane_b32 v2, s59, 3
s_mov_b32 s59, {7 << 19}
v_writelane_b32 v2, s59, 4
s_mov_b32 s59, {9 << 19}
v_writelane_b32 v2, s59, 5
buffer_load_dword v43, v2, s[{rWS_}:{rWS_+3}], 0 offen
s_branch {l}x
{l}:""")
        srd(w, 36, pW2, 1605632); srd(w, 40, pWO, 401408); srd(w, 44, pOUT, 1835008)
        a(f"""v_mov_b32 v2, 0
s_mul_i32 s59, s{sRB}, 57344
s_cmp_gt_u32 s{sJ}, {cfg.JN}
s_subb_u32 s60, s{sJ}, 0
s_lshl_b32 s60, s60, 7
s_add_u32 s59, s59, s60
s_mov_b64 exec, 1
buffer_load_dword v43, v2, s[36:39], 0 offen
buffer_load_dword v44, v2, s[40:43], 0 offen
buffer_load_dword v45, v2, s[44:47], s59 offen
s_mov_b64 exec, -1
{l}x:""")
    a(f"s_waitcnt lgkmcnt(0)\ns_add_u32 s{sNON}, s{sNON}, 1")
    touch_flags(w, cfg)
    if cfg.A2 >= 0: a("s_barrier")
    if E:
        l = w.lab("seen")
        tick_to(1)
        a(f"""s_cmp_lg_u32 s30, 0
s_cbranch_scc1 {l}
s_and_b32 s59, s{sJ}, 1
s_lshl_b32 s59, s59, 5
s_add_u32 s59, s59, s{sRB}
s_lshr_b32 s60, s59, 4
s_mul_i32 s60, s60, 112
s_add_u32 s59, s59, s60
s_add_u32 s59, s59, {NT2}
v_mov_b32 v2, s{sNON}
s_mov_b64 exec, 1
buffer_store_byte v2, v0, s[{rWS_}:{rWS_+3}], s59 offen sc1
s_mov_b64 exec, -1
{l}:""")
        a(f"""s_and_b32 s59, s{sJ}, 1
s_lshl_b32 s59, s59, 1
s_add_u32 s59, s59, s30
s_lshl_b32 s60, s59, 9
s_and_b32 s61, s{sRB}, {cfg.NREP-1}
s_mul_i32 s61, s61, 2304
s_add_u32 s60, s60, s61
s_add_u32 s60, s60, {NT1}
s_lshl_b32 s59, s59, 13
s_add_u32 s59, s59, {KVF}
s_mul_i32 s61, s30, {HALF}
s_add_u32 s61, s61, {STG + KVB}
v_lshlrev_b32 v3, 4, v0""")
        lim = comp.ev["kvr"] - 1
        poll(comp.ev["kvr"] - cfg.L2T, lim, cfg.L2N)
        w.stamp("l2go")
        for h in range(2):
            a(f"s_add_u32 m0, s61, {h*4096}\ns_add_u32 s58, s59, {h*4096}")
            for i in range(4): a(f"buffer_load_dwordx4 v3, s[{rWS_}:{rWS_+3}], s58 offen offset:{i*1024} sc1 lds")
        tick_to(lim)
        a("s_waitcnt vmcnt(0)")
        w.stamp("l2in")
    elif role == 'M':
        fin2 = w.lab("fin")
        a(f"""s_sub_u32 s59, s{sJ}, 2
s_lshl_b32 s59, s59, 1
s_add_u32 s59, s59, s30
s_lshl_b32 s59, s59, 5
s_add_u32 s61, s59, s{sRB}
s_lshr_b32 s59, s61, 4
s_lshl_b32 s60, s59, 9
s_add_u32 s60, s60, {NT0}
s_mul_i32 s24, s59, 112
s_add_u32 s24, s24, s61
s_add_u32 s24, s24, {NT1}
s_lshl_b32 s59, s59, 17
s_and_b32 s58, s61, 15
s_lshl_b32 s58, s58, 7
s_add_u32 s59, s59, s58
s_add_u32 s59, s59, {KVP}
s_lshl_b32 s61, s61, 7
s_add_u32 s61, s61, {KVF}
v_lshrrev_b32 v20, 3, v0
v_lshlrev_b32 v20, 11, v20
v_and_b32 v33, 7, v0
v_lshl_add_u32 v20, v33, 4, v20
v_lshlrev_b32 v13, 4, v0
v_mul_u32_u24 v14, 2304, v0
s_and_b32 s58, s{sNON}, 0xffff
v_mov_b32 v12, s58
s_mov_b32 s58, 0xffff0000""".replace("s24", "s15"))
        for i in range(1, 8): a(f"v_add_u32 v{20+i}, 16384, v{19+i}")
        a("v_mov_b32 v104, 0x3f80\nv_mov_b32 v105, 1.0")
        poll(comp.ev["l0"] + cfg.L1D, NBAR, 0)
        w.stamp("l1go")
        lp = w.lab("l1_"); a(f"{lp}:")
        if cfg.X1: a("s_or_b32 s59, s59, 1024\ns_and_b32 s60, s61, 1024\ns_lshl_b32 s60, s60, 6\ns_add_u32 s59, s59, s60")
        for i in range(4 if cfg.X1 else 8): a(f"buffer_load_dwordx4 {vr(64+4*i, 4)}, v{20+i}, s[{rWS_}:{rWS_+3}], s59 offen sc1")
        tick(NBAR)
        if 'g' in cfg.X5:
            l = w.lab("nb")
            a(f"{l}:\ns_getreg_b32 s60, hwreg(HW_REG_IB_STS, 0, 4)\ns_cmp_eq_u32 s60, 0\ns_cbranch_scc1 {l}x\ns_cmp_ge_u32 s31, {NBAR}\ns_cbranch_scc1 {l}x\ns_barrier\ns_add_u32 s31, s31, 1\ns_branch {l}\n{l}x:")
        A = 96
        for k in range(3): a(f"v_lshlrev_b32 v{A+k}, 16, v{64+k}")
        for k in range(4): a(f"v_and_b32 v{A+4+k}, s58, v{64+k}")
        a(f"v_mov_b32 v{A+3}, 0\nv_xor_b32 v3, v67, v12")
        for i in range(1, 4 if cfg.X1 else 8):
            R = 64 + 4*i
            a(f"v_xor_b32 v10, v{R+3}, v12\nv_or_b32 v3, v3, v10")
            if cfg.LD:
                a(f"v_and_b32 v{R+3}, s58, v{R+3}\nv_add_f32 v{A+7}, v{A+7}, v{R+3}")
                for k in range(3): a(f"v_dot2c_f32_bf16 v{A+k}, v{R+k}, v104\nv_dot2c_f32_bf16 v{A+4+k}, v{R+k}, v105")
                continue
            for k in range(3): a(f"v_lshlrev_b32 v{104+k}, 16, v{R+k}")
            for k in range(4): a(f"v_and_b32 v{R+k}, s58, v{R+k}")
            for k in range(3): a(f"v_add_f32 v{A+k}, v{A+k}, v{104+k}")
            for k in range(4): a(f"v_add_f32 v{A+4+k}, v{A+4+k}, v{R+k}")
            if i in ((), (3,), (3, 7))[cfg.L1T]: tick(NBAR)
        a("v_and_b32 v3, 0xffff, v3\nv_cmp_ne_u32 vcc, 0, v3")
        for k in range(0, 8, 2): a(f"v_permlane16_swap_b32 v{A+k}, v{A+k+1}")
        w.retry(lp)
        w.stamp("l1ok")
        for k in range(0, 8, 2): a(f"v_add_f32 v{A+k}, v{A+k}, v{A+k+1}")
        for k in (0, 4): a(f"v_permlane32_swap_b32 v{A+k}, v{A+k+2}")
        for k in (0, 4): a(f"v_add_f32 v{A+k}, v{A+k}, v{A+k+2}")
        for k in (0, 4): a(f"v_add_f32_dpp v{A+k}, v{A+k}, v{A+k} row_ror:8 row_mask:0xf bank_mask:0xf")
        a(f"""v_cvt_pk_bf16_f32 v64, v{A}, v{A+4}
v_cvt_pk_bf16_f32 v65, v{A}, v{A+4}
v_permlane16_swap_b32 v64, v65
v_mov_b32 v66, v64
v_mov_b32 v67, v65
v_permlane32_swap_b32 v64, v66
v_permlane32_swap_b32 v65, v67
v_and_or_b32 v67, v67, s58, v12
s_mov_b64 exec, 0xff
buffer_store_dwordx4 v[64:67], v13, s[{rWS_}:{rWS_+3}], s61 offen sc1
s_mov_b32 exec_lo, {hex((1 << cfg.NREP)-1)}
{f"buffer_store_byte v12, v14, s[{rWS_}:{rWS_+3}], s15 offen sc1" if cfg.L2N else ""}
s_mov_b64 exec, -1""")
        w.stamp("l1st")
        a(f"s_lshl_b32 s59, s{sRB}, 3\ns_add_u32 s59, s59, s{sJ}\ns_lshl_b32 s59, s59, 1\ns_add_u32 s59, s59, s30\ns_cmp_lg_u32 s59, 5\ns_cbranch_scc1 {fin2}\ns_mov_b32 s60, {NT2}")
        poll(0, NBAR, 2)
        a(f"{fin2}:")
    mp = cfg.MPE if E else cfg.MP; kS = max(comp.kN, NBAR - cfg.MPX)
    if mp >= 0:
        a(f"s_cmp_eq_u32 s30, 0\ns_cselect_b32 s59, {comp.ev['o'] + mp}, {comp.kN + 1 - cfg.G1}")
        tick_to("s59")
    else: tick_to(comp.kN + 1 - cfg.G1)
    a("s_waitcnt vmcnt(0)")
    gather_stage1(w, cfg)
    if mp >= 0:
        l = w.lab("mp")
        a(f"""s_cmp_lg_u32 s30, 0
s_cbranch_scc1 {l}x
s_cmp_eq_u32 s{sJ}, {cfg.JN}
s_cselect_b32 s56, 0, 0x7f
s_sub_u32 s52, s61, 4096
v_lshlrev_b32 v2, 7, v0
{l}:
s_cmp_ge_u32 s31, {kS}
s_cbranch_scc1 {l}x
s_barrier
s_add_u32 s31, s31, 1""")
        ready_mask(a)
        a(f"""s_cbranch_scc0 {l}n
s_ff1_i32_b32 s59, s57
s_bitset0_b32 s56, s59
s_lshl_b32 s59, s59, 13
s_add_u32 s59, s59, s52
buffer_load_dword v3, v2, s[36:39], s59 offen sc1
{l}n:
s_getreg_b32 s59, hwreg(HW_REG_IB_STS, 8, 4)
s_cmp_gt_u32 s59, 0
s_cbranch_scc1 {l}
s_cmp_ge_u32 s31, {kS - 1}
s_cbranch_scc1 {l}
s_load_dwordx16 s[8:23], s[48:49], 0 glc
s_branch {l}
{l}x:""")
    tick_to(kS + 1)
    gather_stage2(w, cfg); w.stamp("g0iss")
    tick_to(NBAR)
    to_gather(w, cfg, role)
    return w

def build(cfg, verbose=False):
    G = cfg.G; ns = 32 // G; ncg = 8 // ns; lg = lambda n: n.bit_length() - 1
    e = Wave("e", cfg); a = e.a; nr = 448 // G
    a("s_cmp_ge_u32 s2, 256\ns_cbranch_scc1 kernel_exit")
    if cfg.DLY:
        a(f"s_and_b32 s4, s2, 7\ns_cbranch_scc1 nodly\ns_memrealtime s[4:5]\ndly:\ns_memrealtime s[6:7]\ns_waitcnt lgkmcnt(0)\ns_sub_u32 s6, s6, s4\ns_cmp_lt_u32 s6, {cfg.DLY}\ns_cbranch_scc1 dly\nnodly:")
    a("s_load_dwordx16 s[8:23], s[0:1], 0\ns_load_dwordx4 s[24:27], s[0:1], 64\ns_load_dwordx2 s[28:29], s[0:1], 80")
    if cfg.prof or cfg.amp >= 0: a(f"s_memrealtime s[64:65]\ns_mem{'real' if cfg.prof == 2 else ''}time s[100:101]")
    pm = "s_mov_b32 s62, s100\n" if cfg.prof else ""
    disp = lambda n: f"{pm}s_cmp_gt_u32 s46, 1\ns_cbranch_scc1 {n}_M\ns_cmp_eq_u32 s46, 0\ns_cbranch_scc1 {n}_E\ns_branch {n}_N"
    assert cfg.A2 >= 0
    if cfg.EPF:
        a(f"""s_getpc_b64 s[36:37]
entry_pc:
s_and_b32 s37, s37, 0xffff
s_mov_b32 s38, role_E_end-entry_pc+{cfg.PADB}
s_mov_b32 s39, 0x20000
v_lshlrev_b32 v2, 12, v0
s_lshl_b32 s59, s2, 4
s_and_b32 s59, s59, 0xf80
buffer_load_dword v{T8+7}, v2, s[36:39], s59 offen""")
    decode = f"""s_and_b32 s{sJ}, s2, {ncg-1}
s_lshl_b32 s{sJ}, s{sJ}, {lg(ns)}
s_bfe_u32 s{sT}, s2, {hex((lg(ns) << 16) + 3)}
s_add_u32 s{sJ}, s{sJ}, s{sT}
s_lshl_b32 s{sJ}, s{sJ}, 2
s_lshr_b32 s{sJ}, {hex(cfg.JMAP)}, s{sJ}
s_and_b32 s{sJ}, s{sJ}, 7
s_sub_u32 s46, 7, s{sJ}
s_min_u32 s46, s46, s{sJ}
s_mov_b32 s{sSPIN}, {cfg.spin}"""
    a(f"""v_lshrrev_b32 v1, 6, v0
v_and_b32 v0, 63, v0
v_readfirstlane_b32 s3, v1
s_lshr_b32 s{sG}, s2, {3 + lg(ns)}
s_and_b32 s{sRB}, s2, {8 - ncg}
s_lshl_b32 s{sRB}, s{sRB}, {lg(G) - lg(ncg)}
s_add_u32 s{sRB}, s{sRB}, s{sG}
s_cmp_ge_u32 s3, 4
s_cbranch_scc1 helpers
v_lshrrev_b32 v4, 3, v0
v_and_b32 v5, 7, v0
v_mul_u32_u24 v6, 896, v4
v_lshl_add_u32 v6, v5, 4, v6
s_lshl_b32 s59, s{sRB}, 2
s_add_u32 s59, s59, s3
s_mul_i32 s59, s59, {16*896}
s_mov_b32 s34, 1835008
s_mov_b32 s35, 0x20000
s_waitcnt lgkmcnt(0)
s_mov_b32 s32, s{pX}
s_and_b32 s33, s{pX+1}, 0xffff""")
    if cfg.ampl == 'karg' or cfg.GK == 2: e.stamp('karg')
    for i in range(7): a(f"buffer_load_dwordx4 {vr(ACC[0] + 4*i, 4)}, v6, s[{rX}:{rX+3}], s59 offen offset:{i*128}")
    a(f"s_load_dword s{sNON}, s[{pWS}:{pWS+1}], 0\ns_add_u32 s60, s59, {8*896}\ns_lshr_b32 s{sR}, s3, 1\ns_and_b32 s{sC}, s3, 1\n{decode}")
    common_setup(e)
    if cfg.ampl == 'pre1' or cfg.GK == 2: e.stamp('pre1')
    for i in range(7): a(f"buffer_load_dwordx4 {vr(ACC[0] + 28 + 4*i, 4)}, v6, s[{rX}:{rX+3}], s60 offen offset:{i*128}")
    if cfg.BA: a("s_barrier")
    layernorm(e)
    a(disp("comp"))
    xl = [x for x in e.ins if x.op == 'buffer_load_ushort']
    a(f"""helpers:
{decode}
s_lshl_b32 s59, s3, 8
s_sub_u32 s59, s59, 1024
v_lshl_add_u32 v{vOF}, v0, 2, s59
v_mov_b32 v2, 0
ds_write_b32 v{vOF}, v2
s_waitcnt lgkmcnt(0)
s_load_dword s{sNON}, s[{pWS}:{pWS+1}], 0""")
    if cfg.ampl == 'skew':
        srd(e, 36, pDBG, 32); a(f"v_mov_b32 v2, s64\ns_sub_u32 s59, s2, {cfg.ampb}\ns_and_b32 s59, s59, 255\ns_lshl_b32 s59, s59, 2\nv_mov_b32 v3, s59\nbuffer_store_dword v2, v3, s[36:39], 0 offen sc1")
    srd(e, 32, pQKV, 1204224)
    a("s_cmp_ge_u32 s3, 6\ns_cbranch_scc1 protos")
    a(disp("load") + "\nprotos:")
    a(f"""s_cmp_eq_u32 s3, 6
s_cselect_b32 s36, s{pB1}, s{pB2}
s_cselect_b32 s37, s{pB1+1}, s{pB2+1}
s_cselect_b32 s38, 28, 7
s_lshl_b32 s38, s38, 7
s_and_b32 s37, s37, 0xffff
s_mov_b32 s39, 0x20000
v_lshlrev_b32 v2, 11, v0
s_lshl_b32 s59, s{sG}, 7
buffer_load_dword v38, v2, s[36:39], s59 offen""")
    a(disp("proto"))
    info = {}; texts = {}
    for role in 'MNE':
        c = Compute(role, cfg); c.ins = list(xl); npre = len(c.ins); c.stamps = list(e.stamps)
        c.build()
        st = []; m, o = c.finish(st); texts['c' + role] = (m[npre:], o); info['c' + role] = c.stamps
        if verbose:
            print(role, "compute instrs", len(m), "nops", len(st), sum(p for p, _ in st), "barriers", len(c.bars), "est", int(sum(b['t'] for b in c.bars)), file=sys.stderr)
            if verbose > 1: print(" ".join(f"{int(b['t'])}:{b['need']}/{i}" for b, i in zip(c.bars, c.iss)), file=sys.stderr)
        gw = build_gather(cfg, role); m, o = gw.finish(); texts['g' + role] = (m[gw.npre:], o)
        for k, wv in (('l', build_loader(role, cfg, c)), ('p', build_proto(role, cfg, c))):
            texts[k + role] = wv.finish(); assert len(wv.stamps) <= 8
            info[k + role] = wv.stamps + ['-']*(8-len(wv.stamps)) + gw.stamps[8:] if cfg.prof else []
    out = e.finish()[0]
    lab = dict(c='comp', l='load', p='proto', g='gather')
    def sect(k): return [".p2align 6", f"{lab[k[0]]}_{k[1]}:"] + texts[k][0] + texts[k][1]
    out += ["kernel_exit:", "s_endpgm"]
    for r in 'MNE': out += [".p2align 7", f"role_{r}_start:"] + sect('p'+r) + sect('l'+r) + sect('c'+r) + sect('g'+r) + [f"role_{r}_end:"]
    out += ["s_endpgm"]*(cfg.PADB//4)
    head = f"""; fused LayerNorm + linear attention + squared-ReLU FFN, one launch of 256 workgroups x 8 waves (generated by my own script)
; @launch grid=(256,1,1) block=(512,1,1) lds=163840
.amdgcn_target "amdgcn-amd-amdhsa--gfx950"
.text
.globl {NAME}
.p2align 8
.type {NAME},@function
{NAME}:
"""
    tail = f"""
.section .rodata,"a"
.p2align 6
.amdhsa_kernel {NAME}
  .amdhsa_next_free_vgpr 256
  .amdhsa_next_free_sgpr 102
  .amdhsa_accum_offset 256
  .amdhsa_group_segment_fixed_size 0
  .amdhsa_kernarg_size 88
  .amdhsa_user_sgpr_count 2
  .amdhsa_user_sgpr_kernarg_segment_ptr 1
  .amdhsa_system_sgpr_workgroup_id_x 1
.end_amdhsa_kernel
"""
    return head + "\n".join(out) + tail, info

if __name__ == "__main__":
    import json
    kw = {}
    for x in sys.argv[2:]:
        k, v = x.split("="); kw[k] = int(v, 0) if v.lstrip("-")[0].isdigit() else v
    t, info = build(Cfg(**kw), 2)
    open(sys.argv[1], "w").write(t)
    json.dump(dict(info=info, G=Cfg(**kw).G, JMAP=Cfg(**kw).JMAP, spin=Cfg(**kw).spin), open(sys.argv[1] + ".json", "w"))
```

```python
import sys, struct, re
sys.path.insert(0, 'work')
from dsl import *
NAME = "parallel_sum__linear_attn_block__dense_activation_squared_relu__prompt_kernel"
f2h = lambda f: hex(struct.unpack("<I", struct.pack("<f", f))[0])
OOB = 0x80000000
STG, HALF, RING, NSLOT = 4096, 30720, 65536, 24
HOFF, OOFF = 0, 16384
KVP, KVF, NT0, XP, PROF, WSZ = 1 << 20, 5 << 20, (5 << 20) + 65536, 6 << 20, 32 << 20, 64 << 20
MSG = 2048
NT2 = NT0
NT1 = NT0 + 16384
XFL = 22 << 20
KVB = 8192
sNON = 14
sJ, sRB, sG, sT = 4, 5, 6, 7
pX, pQKV, pWO, pW1, pB1, pW2, pB2, pOUT, pDBG, pWS = 8, 10, 12, 16, 18, 20, 22, 24, 26, 28
sSPIN = 63
SPINMAX = 1 << 12

class Cfg:
    G = 16; JN = 3; BASE_N = 3; SP = 5; TAILE = 4; G1 = 1; MP = 2; MPE = 0; DTE = 800; XM = 0; XH = 4; HOLD = 0; HOLD0 = 1; FAST = 5; DTN = 0; GM = 1; JMAP = 0x74652130; W1A = 4; PK = 0; PL = 4; PLD = 1; PHD = 1; QT = 0; WOA = 0; WOT = 8; OSC = ''; FP = 1; KF = 3; TLB = 0; NPRE = 30; BA = 1; EPF = 1; X5 = ''; X16 = ''; PADB = 1024; GK = 0; A2E = 3; LB = 1; MPX = 4; LAG = 3; FF = 4; LP = 2; X1 = 0; X3 = 0; X4 = 0; PKD = 0; HWS = 11; NREP = 8; STM = 850; STE = 650; WOG = 1; FREE = 0; RCAP = 7; TAILM = 0; XS = 1; PE2 = 1; INITE = 11; L2T = 1; PSL = 0; XROT = 0; dbgst = 0; noL1 = 0; spin = 30000; D = 4; NB = 5; CH = 4; LA = 7; FILL = 2; prof = 0
    pf = 1; amp = -1; ampk = 10; ampl = ''; ampx = -1; ampb = 0; DLY = 0; L1E = 0; L1D = 8; L1T = 0; PLN = 2; LD = 1; OP = 1; L1N = 0; A2 = 3; L2N = 0; TOUCH = 1; GT = 73; INIT = 11; W2 = 1; QFILL = 4
    def __init__(self, **kw):
        for k, v in kw.items():
            assert hasattr(Cfg, k), k
            setattr(self, k, v)

def srd(w, d, p, nbytes, off=None):
    if off is None:
        w.a(f"s_mov_b32 s{d}, s{p}\ns_and_b32 s{d+1}, s{p+1}, 0xffff\ns_mov_b32 s{d+2}, {nbytes}")
    else:
        w.a(f"s_add_u32 s{d}, s{p}, s{off}\ns_addc_u32 s{d+1}, s{p+1}, 0\ns_and_b32 s{d+1}, s{d+1}, 0xffff\ns_sub_u32 s{d+2}, {nbytes}, s{off}")
    w.a(f"s_mov_b32 s{d+3}, 0x20000")

class Wave(W):
    def __init__(self, name, cfg):
        super().__init__(name); self.cfg = cfg; self.stamps = []
    def stamp(self, label):
        if self.cfg.amp >= 0 and label == self.cfg.ampl: self.a("s_memrealtime s[72:73]"); self.amped = True
        if self.cfg.prof in (1, 2) and len(self.stamps) < 17 and label not in ("hw", "setup") and not (self.cfg.GK and label in ("gin", "gst")):
            k = 66 + 2*len(self.stamps); self.stamps.append(label); self.a(f"s_mem{'real' if self.cfg.prof == 2 else ''}time s[{k}:{k+1}]")
    def retry(self, label):
        x = self.lab("giveup")
        self.a(f"s_cbranch_vccz {x}\ns_sub_u32 s{sSPIN}, s{sSPIN}, 1\ns_cmp_gt_i32 s{sSPIN}, 0\ns_cbranch_scc1 {label}\n{x}:")
    def ampcalc(self):
        if self.cfg.ampl == 'retry': return f"s_sub_u32 s68, {self.cfg.spin}, s{sSPIN}\ns_mul_i32 s68, s68, 100"
        if self.cfg.ampl != 'skew': return "s_sub_u32 s68, s72, s64"
        return "s_load_dwordx8 s[72:79], s[26:27], 0 glc\ns_waitcnt lgkmcnt(0)\ns_mov_b32 s68, s72\ns_mov_b32 s69, s72\n" + "\n".join(f"s_max_u32 s68, s68, s{72+i}\ns_min_u32 s69, s69, s{72+i}" for i in range(1, 8)) + f"\ns_sub_u32 s68, s{68 if self.cfg.ampx < 0 else 72 + self.cfg.ampx}, s69\ns_add_u32 s68, s68, 5"
    def wsum(self, v):
        L = [f"v_add_u32_dpp v{v}, v{v}, v{v} row_ror:{k} row_mask:0xf bank_mask:0xf" for k in (8, 4, 2, 1)]
        L += [f"v_add_u32_dpp v{v}, v{v}, v{v} row_bcast:15 row_mask:0xa bank_mask:0xf", f"v_add_u32_dpp v{v}, v{v}, v{v} row_bcast:31 row_mask:0xc bank_mask:0xf"]
        return L
    def end(self):
        if self.cfg.prof:
            self.a("s_memrealtime s[100:101]\ns_waitcnt vmcnt(0) lgkmcnt(0)")
            srd(self, 32, pWS, WSZ)
            self.a(f"s_lshl_b32 s{sT}, s2, 3\ns_add_u32 s{sT}, s{sT}, s3\ns_lshl_b32 s{sT}, s{sT}, 7\ns_add_u32 s{sT}, s{sT}, {PROF}")
            self.a("v_mov_b32 v1, 0\ns_mov_b64 exec, 1")
            vals = [64, 100, 62, sSPIN] + [66 + 2*i for i in range(len(self.stamps))] if self.cfg.prof < 3 else [64, 100]
            for i, s in enumerate(vals):
                self.a(f"v_mov_b32 v2, s{s}\nbuffer_store_dword v2, v1, s[32:35], s{sT} offen offset:{4*i}")
        if self.cfg.amp >= 0 and (getattr(self, 'amped', False) or (self.cfg.ampl in ('karg', 'pre1', 'x0', 'x1', 'skew', 'retry') and self.name[0] == 'c') or (self.cfg.ampl in ('l1go', 'l1ok', 'l1st') and self.name == 'gM')):
            x = self.lab("amp")
            self.a(f"""s_waitcnt vmcnt(0)
s_cmp_lg_u32 s2, {self.cfg.amp}
s_cbranch_scc1 {x}e
s_cmp_lt_u32 s3, {6 if self.cfg.ampl[:2] == 'l1' else 0}
s_cbranch_scc1 {x}e
s_memrealtime s[66:67]
s_waitcnt lgkmcnt(0)
{self.ampcalc()}
s_min_u32 s68, s68, 20000
s_mul_i32 s68, s68, {self.cfg.ampk}
{x}:
s_memrealtime s[70:71]
s_waitcnt lgkmcnt(0)
s_sub_u32 s69, s70, s66
s_cmp_lt_u32 s69, s68
s_cbranch_scc1 {x}
{x}e:""")
        self.a("s_endpgm")

def chunk_order(w, cfg, dst, mul, E):
    w.a(f"s_add_u32 s{sT}, s{sJ}, 1\ns_cmp_gt_u32 s{sJ}, {cfg.JN}\ns_cselect_b32 s{sT}, s{sJ}, s{sT}")
    w.a(f"s_cmp_eq_u32 s{sJ}, {cfg.JN}\ns_cselect_b32 s{sT}, {cfg.BASE_N}, s{sT}")
    if E:
        assert 1 <= cfg.JN <= 6
        w.a(f"s_cmp_eq_u32 s{sJ}, 0")
        for t in range(7): w.a(f"s_mov_b32 s{dst+t}, {t*mul}\ns_cselect_b32 s{dst+t}, {(6-t)*mul}, s{dst+t}")
        return
    for t in range(7):
        w.a(f"s_cmp_ge_u32 s{sT}, 7\ns_cselect_b32 s{sT}, 0, s{sT}\ns_mul_i32 s{dst+t}, s{sT}, {mul}")
        if t < 6: w.a(f"s_add_u32 s{sT}, s{sT}, 1")

def chunk_seq(cfg, j):
    if j == 0: return [6-t for t in range(7)]
    if j == 7: return list(range(7))
    b = cfg.BASE_N if j == cfg.JN else (j if j > cfg.JN else j+1)
    return [(b+t) % 7 for t in range(7)]
def slot_table(cfg):
    pos = [[7]*7 for _ in range(8)]
    for c in range(7):
        arr = []
        for j in range(8):
            t = chunk_seq(cfg, j).index(c)
            if t == 6 and j != cfg.JN: continue
            arr.append(((cfg.DTE + cfg.STE*(t+1)) if j in (0, 7) else cfg.STM*max(t, 0.5) + j + (cfg.DTN if j in (1, 6) else 0), j, t))
        assert len(arr) == 7
        for k, (_, j, t) in enumerate(sorted(arr)): pos[j][t] = k
    return pos

def ffn_line0(w, d):
    w.a(f"s_lshl_b32 s{d}, s{sJ}, 2\ns_sub_u32 s{d}, s{d}, 2\ns_max_i32 s{d}, s{d}, 0")

def make_groups(role):
    g = []
    if role != 'E':
        for m in 'kv': g += [(m, kb, l) for kb in range(14) for l in range(2)]
        for t in range(4): g += [('w1', kb, t) for kb in range(14)]
        g += [('w2', kb, 0) for kb in range(6)] + [('w2', kb, 1) for kb in range(6)]
        g += [('w2', kb, 0) for kb in (6, 7)] + [('w2', kb, 1) for kb in (6, 7)]
        for t in range(2, 7): g += [('w2', kb, t) for kb in range(8)]
    else:
        for t in range(2): g += [('w1', kb, t) for kb in range(14)]
        for kb in range(14): g += [('q', kb, l) for l in range(4)]
        for kb in range(4): g += [('w2', kb, t) for t in range(7)]
        for t in range(7): g += [('wo', kb, t) for kb in range(7)]
    return g

vLANE, vT0, vT1, vT2 = 0, 1, 2, 3
vBA, vBB = 4, 6
vXW, vXR, vFR, vFW = 8, 9, 10, 11
vKVA, vHA, vOA, vPA = 12, 14, 16, 18
vOWA, vOWB = 18, 19
vMSG, vFOFF, vCK, vNON, vXP, vEM, vTAG, vONES = 20, 21, 22, 23, 24, 25, 26, 27
vQA = 28; vB = 36; T8 = 56
XF = 64; ACC = [176 + 16*i for i in range(5)]
sR, sC, sMSG, sOWN, sL2E, sEPS, sMASK = 30, 31, 48, 55, 56, 57, 58
rX, rWS, rAUX = 32, 36, 40

class Job:
    def __init__(s, acc, act, g, sub, base, wfirst, first=False, span=1, pre=None, fill=None):
        s.acc, s.act, s.g, s.sub, s.base, s.wfirst, s.first, s.span, s.pre, s.fill = acc, act, g, sub, base, wfirst, first, span, pre or [], fill
class Code:
    def __init__(s, fn, fence=True): s.fn, s.fence = fn, fence
class Fill:
    def __init__(s, items, delay=2): s.items, s.delay = items, delay
class Flush: pass
SKIP = "SKIP"

def est_time(ins):
    t = 0; mf = 0; st = 0
    for x in ins:
        if x.kind in ('label', 'comment'): continue
        if x.kind == 'mfma': t = max(t, mf); mf = t + 34; t += 10
        elif x.kind == 'ds_w': t += 70 if '128' in x.op else 35
        elif x.kind == 'vm_s': t += 12; st += 31*4 if x.wide else 12
        elif x.kind == 'vm_l': t += 12; st += 18*4
        elif x.kind == 'ds_r': t += 7
        elif x.note == 'trans': t += 8
        else: t += 4.6
    return t, st

def tile_addr(w, dst, col):
    w.a(f"""v_lshrrev_b32 v{vT0}, 6, v{col}
v_lshl_add_u32 v{dst}, v{vT0}, 12, v{vT1}
v_bfe_u32 v{vT0}, v{col}, 5, 1
v_lshl_add_u32 v{dst}, v{vT0}, 9, v{dst}
v_and_b32 v{vT0}, 31, v{col}
v_lshl_add_u32 v{dst}, v{vT0}, 1, v{dst}
v_add_u32 v{dst+1}, 0x10000, v{dst}""")
def head_addr(w, dst):
    c = T8 + 4
    w.a(f"""v_add_u32 v{c}, s45, v{vT2}
v_cmp_le_u32 vcc, s44, v{c}
v_subrev_u32 v{c+1}, 32, v{c}
v_cndmask_b32 v{c}, v{c}, v{c+1}, vcc""")
    tile_addr(w, dst, c)
def common_setup(w):
    a = w.a; c = T8 + 4
    a(f"""s_mul_i32 s59, s{sR}, {HALF}
s_add_u32 s59, s59, {STG}
s_lshl_b32 s61, s{sC}, 8
s_add_u32 s61, s61, s59
v_mul_u32_u24 v{vXW}, 528, v5
v_lshl_add_u32 v{vXW}, v4, 4, v{vXW}
v_add_u32 v{vXW}, s61, v{vXW}
v_mov_b32 v{vONES}, 0x3f803f80
v_lshlrev_b32 v{vMSG}, 4, v{vLANE}
v_add_u32 v{vFR}, s59, v{vMSG}
s_lshl_b32 s61, s{sC}, 11
v_add_u32 v{vFW}, s61, v{vFR}
v_lshrrev_b32 v{vT0}, 5, v{vLANE}
v_lshl_add_u32 v{vXR}, v{vT0}, 4, v{vFR}
v_lshlrev_b32 v{vT1}, 10, v{vT0}
v_bfe_u32 v{vT0}, v{vLANE}, 2, 2
v_lshl_add_u32 v{vT1}, v{vT0}, 6, v{vT1}
v_add_u32 v{vT1}, {RING}, v{vT1}
v_bfe_u32 v{vT0}, v{vLANE}, 4, 1
v_and_b32 v{vT2}, 3, v{vLANE}
v_lshl_add_u32 v{vT2}, v{vT0}, 2, v{vT2}
v_lshlrev_b32 v{vT2}, 2, v{vT2}
s_lshl_b32 s59, s{sJ}, 2
s_lshr_b32 s45, 0x42345600, s59
s_and_b32 s45, s45, 15
s_lshl_b32 s45, s45, 3
s_min_u32 s59, s46, 2
s_lshr_b32 s59, 112, s59
s_mul_i32 s59, s59, s{sC}
s_add_u32 s45, s45, s59
s_cmp_eq_u32 s46, 0
s_cselect_b32 s44, 2, 1
s_lshl_b32 s44, s44, 7""")
    head_addr(w, vQA); a("s_add_u32 s45, s45, 28"); head_addr(w, vQA + 2)
    a(f"""s_lshl_b32 s59, s{sC}, 9
v_and_b32 v{c}, 2, v{vLANE}
v_lshl_add_u32 v{c}, v{c}, 2, v{vT1}
v_add_u32 v{c}, s59, v{c}
v_and_b32 v{c+1}, 1, v{vLANE}
v_and_b32 v{vT0}, 16, v{vLANE}
v_lshl_add_u32 v{vHA}, v{c+1}, 4, v{c}
v_lshl_add_u32 v{vHA}, v{vT0}, 1, v{vHA}
v_add_u32 v{vHA+1}, 0x10000, v{vHA}
v_lshl_add_u32 v{vOA}, v{c+1}, 5, v{c}
v_add_u32 v{vOA}, v{vT0}, v{vOA}
v_add_u32 v{vOA+1}, 0x10000, v{vOA}""")
    ffn_line0(w, 61); c = vB
    a(f"s_lshl_b32 s59, s61, 7\ns_lshl_b32 s61, s{sC}, 6\ns_add_u32 s59, s59, s61"); srd(w, rAUX, pB1, 3584, 59)
    a(f"""v_and_b32 v{c}, 19, v{vLANE}
v_bfe_u32 v{c+1}, v{vLANE}, 2, 1
v_lshl_add_u32 v{c}, v{c+1}, 3, v{c}
v_bfe_u32 v{c+1}, v{vLANE}, 3, 1
v_lshl_add_u32 v{c}, v{c+1}, 2, v{c}
v_lshrrev_b32 v{c+1}, 5, v{vLANE}
v_lshlrev_b32 v{c+1}, 31, v{c+1}
v_lshl_add_u32 v{c}, v{c}, 1, v{c+1}""")
def layernorm(w):
    a = w.a; T = ACC[0] + 56
    a(f"s_mov_b32 s{sMASK}, 0xffff0000")
    for grp in range(2):
        X = ACC[0] + 28*grp; s1, s2 = T, T+1
        a(f"v_mov_b32 v{s1}, 0\nv_mov_b32 v{s2}, 0")
        for i in range(28): a(f"v_dot2c_f32_bf16 v{s1}, v{X+i}, v{vONES}\nv_dot2c_f32_bf16 v{s2}, v{X+i}, v{X+i}")
        w.stamp(f"x{grp}")
        if grp == 1:
            for t in range(4): a(f"buffer_load_ushort v{T8+t}, v{vB}, s[{rAUX}:{rAUX+3}], 0 offen offset:{t*128}")
        else:
            a(f"s_waitcnt lgkmcnt(0)\ns_add_u32 s{sNON}, s{sNON}, 1\nv_mov_b32 v{vNON}, s{sNON}\nv_and_b32 v{vTAG}, 0xffff, v{vNON}")
        for m in ("quad_perm:[1,0,3,2]", "quad_perm:[2,3,0,1]", "row_half_mirror"):
            for s in (s1, s2): a(f"v_add_f32_dpp v{s}, v{s}, v{s} {m} row_mask:0xf bank_mask:0xf")
        a(f"""v_mul_f32 v{s1}, {f2h(1/448)}, v{s1}
v_mul_f32 v{s2}, {f2h(1/448)}, v{s2}
v_fma_f32 v{s2}, -v{s1}, v{s1}, v{s2}
v_max_f32 v{s2}, 0, v{s2}
v_add_f32 v{s2}, {f2h(1e-5)}, v{s2}
v_rsq_f32 v{T+2}, v{s2}
v_mul_f32 v{T+3}, -v{s1}, v{T+2}""")
        for i0 in range(0, 28, 4):
            t = T + 4
            for k in range(4): a(f"v_lshlrev_b32 v{t+2*k}, 16, v{X+i0+k}\nv_and_b32 v{t+2*k+1}, s{sMASK}, v{X+i0+k}")
            for k in range(4): a(f"v_pk_fma_f32 {vr(t+2*k,2)}, {vr(t+2*k,2)}, {vr(T+2,2)}, {vr(T+2,2)} op_sel:[0,0,1] op_sel_hi:[1,0,1]")
            for k in range(4): a(f"v_cvt_pk_bf16_f32 v{X+i0+k}, v{t+2*k}, v{t+2*k+1}")
            a(f"ds_write_b128 v{vXW}, {vr(X+i0, 4)} offset:{(i0//4)*4224 + grp*128}")
            if grp == 1 and i0//4 == w.cfg.A2: a("s_barrier")

class Compute(Wave):
    def __init__(self, role, cfg):
        super().__init__("c" + role, cfg); self.role = role; self.groups = make_groups(role)
        self.gi = {g: i for i, g in enumerate(self.groups)}
        self.bars = []; self.ev = {}; self.done = -1; self.acq = 0
        extra = {}
        if role == 'E' and cfg.XS:
            g0 = self.gi[('wo', 0, 0)] + NSLOT
            for i in range(8): extra[g0 + i] = (STG + (i & 1)*HALF + (i >> 1)*4096, "kvb" if i < 4 else "o")
        if role != 'E':
            g0 = self.gi[('w1', 0, 0)] + 20
            for i in range(cfg.XM): extra[g0 + i] = (STG + (i & 1)*HALF + OOFF + (i >> 1)*4096, "xdead")
            g1 = self.gi[('w2', 0, 3)]
            for i in range(cfg.XH): extra[g1 + i] = (STG + (i >> 1)*HALF + OOFF + (i & 1)*4096, "o")
        self.baseC = {vHA: vKVA, vOA: vKVA if role == 'E' else vQA + 4, vPA: vQA + 5}
        self.addr = []; self.avail = []; main = []
        for g in range(len(self.groups)):
            if g in extra: self.addr.append(extra[g][0]); self.avail.append(extra[g][1])
            else:
                self.addr.append(RING + (len(main) % NSLOT)*4096); self.avail.append(main[-NSLOT] if len(main) >= NSLOT else -1); main.append(g)
    def barrier(self, need=None, name=None, long=False):
        if need is not None: self.acq = need
        n = 0
        while n < len(self.groups) and self.lastuse[n] <= self.done: n += 1
        self.bars.append(dict(pos=len(self.ins), need=self.acq, nrel=n, long=long))
        self.a("s_barrier")
        if name: self.ev[name] = len(self.bars)
    def emit_fill(self, it):
        if callable(it): it()
        elif it != SKIP: self.a(it)
    def run(self, items):
        cfg = self.cfg; jobs = [x for x in items if isinstance(x, Job)]; N = len(self.groups)
        for n, j in enumerate(jobs): j.n = n
        self.lastuse = {}
        for j in jobs:
            for g in range(j.g, j.g + j.span): self.lastuse[g] = j.n
        lim = {}; cur = len(jobs); nxt = len(jobs)
        for x in reversed(items):
            if isinstance(x, Job): lim[x.n] = cur; nxt = x.n
            elif isinstance(x, Code) and x.fence: cur = nxt
        st = dict(rd=0); fq = []
        self.nextneed = lambda: min(N, max(self.acq, jobs[st['rd']].g + jobs[st['rd']].span - 1 + cfg.CH)) if st['rd'] < len(jobs) else N
        def reads(n):
            j = jobs[n]
            if j.g + j.span > self.acq:
                nd = max(j.g + j.span, self.acq + cfg.CH)
                self.barrier(N if nd > N - (cfg.TAILE if self.role == 'E' else cfg.TAILM) else nd)
            for p in j.pre: self.emit_fill(p)
            ad = self.addr[j.g]; base = (self.baseC.get(j.base), j.base, j.base + 1)[ad >> 16]; imm = (ad & 0xffff) + j.sub*2048
            b = vB + 4*(n % cfg.NB)
            self.a(f"ds_read_b64_tr_b16 {vr(b, 2)}, v{base} offset:{imm}\nds_read_b64_tr_b16 {vr(b+2, 2)}, v{base} offset:{imm+256}")
            st['rd'] = n + 1
        def operands(j): return vset(vB + 4*(j.n % cfg.NB), 4) | vset(j.act, 4)
        for x in items:
            if isinstance(x, Job):
                if st['rd'] <= x.n:
                    while st['rd'] < min(x.n + cfg.D, lim[x.n]): reads(st['rd'])
                b = vr(vB + 4*(x.n % cfg.NB), 4); act = vr(x.act, 4); acc = vr(x.acc, 16)
                A, B = (b, act) if x.wfirst else (act, b)
                x16 = self.role in cfg.X16 and not x.first
                m16 = lambda q: f"v_mfma_f32_16x16x32_bf16 {vr(x.acc + 8*x.sub + 4*q, 4)}, {(A, B)[q]}, {(B, A)[q]}, {vr(x.acc + 8*x.sub + 4*q, 4)}"
                self.a(m16(0) if x16 else f"v_mfma_f32_32x32x16_bf16 {acc}, {A}, {B}, {'0' if x.first else acc}")
                self.done = x.n
                if x16 and 'b' in cfg.X16: self.a(m16(1))
                if st['rd'] < min(x.n + 1 + cfg.D, lim[x.n]): reads(st['rd'])
                if x16 and 'b' not in cfg.X16: self.a(m16(1))
                if cfg.W2:
                    if x.n % 2 == 0:
                        s = set()
                        for k in (x.n+1, x.n+2):
                            if k < st['rd']: s |= operands(jobs[k])
                        self.need(s)
                elif x.n + 1 < st['rd']: self.need(operands(jobs[x.n + 1]))
                bud = x.fill or cfg.FILL
                while fq and bud > 0 and fq[0][0] <= x.n:
                    it = fq.pop(0)[1]; self.emit_fill(it)
                    if it == SKIP: break
                    bud -= 2 if (isinstance(it, str) and it.startswith(TRANS)) else 1
            elif isinstance(x, Fill): fq += [(self.done + x.delay, it) for it in x.items]
            elif isinstance(x, Flush):
                while fq: self.emit_fill(fq.pop(0)[1])
            else: x.fn()
        assert not fq
    def plan_loader(self):
        cfg = self.cfg; N = len(self.groups); iss = []; cur = 0; credit = 0.0
        for k, b in enumerate(self.bars):
            free = cur
            while free < N and (self.ev[self.avail[free]] <= k if isinstance(self.avail[free], str) else self.avail[free] < (self.bars[k-1]['nrel'] if k else 0)): free += 1
            t, st = est_time(self.ins[(self.bars[k-1]['pos'] if k else 0):b['pos']])
            b['t'] = t
            if self.role == 'E' and cfg.WOG and k >= self.ev['o']: st = 0
            credit += (t - st)/cfg.GT
            want = cur + int(credit) if not b['long'] else N
            if k == 0: want = cfg.INITE if self.role == 'E' else cfg.INIT
            la = cfg.LA
            if 'l0' in self.ev and 0 <= k - (self.ev['l0'] + cfg.L1D + cfg.HOLD0) < cfg.HOLD: want = cur; la = cfg.CH; credit = 0
            new = min(max(want, b['need'] + la, cur), free, N)
            assert new >= b['need'], (self.role, k, new, b)
            credit = min(max(credit - (new - cur), 0.0), 0.99)
            cur = new; iss.append(cur)
        self.iss = iss; self.kN = iss.index(N)

    def lazy_setup(self):
        w = W("tmp"); a = w.a; cfg = self.cfg; E = self.role == 'E'
        if E:
            for hh in (2, 3): a("s_add_u32 s45, s45, 28"); head_addr(w, vQA + 2*hh)
            a(f"""v_lshrrev_b32 v{vT0}, 5, v{vLANE}
s_mul_i32 s60, s{sC}, 7168
v_mul_u32_u24 v{vOWB}, 24, v{vT0}
v_sub_u32 v{vOWB}, v{vXR}, v{vOWB}
v_add_u32 v{vOWB}, s60, v{vOWB}
v_mul_u32_u24 v{vOWA}, 496, v{vT0}
v_sub_u32 v{vOWA}, v{vOWB}, v{vOWA}""")
        else:
            a(f"s_lshl_b32 s59, s{sC}, 12\ns_sub_u32 s60, 4096, s59")
            for k in range(2): a(f"v_add_u32 v{vPA+k}, s60, v{vOA+k}\nv_add_u32 v{vOA+k}, s59, v{vOA+k}")
            a(f"""s_lshr_b32 s60, s60, 1
v_add_u32 v{vFR}, s60, v{vFR}
v_and_b32 v{vEM}, 31, v{vLANE}
v_subrev_u32 v{vEM}, 28, v{vEM}
v_ashrrev_i32 v{vEM}, 31, v{vEM}""")
        a(f"s_mov_b32 s{sL2E}, 0x3fb8aa3b\ns_mov_b32 s{sEPS}, 0x358637bd")
        srd(w, rWS, pWS, WSZ)
        js = {'E': (0, 7), 'N': (1, 6), 'M': (2, 3, 4, 5)}[self.role]; pos = slot_table(cfg)
        tab = lambda j, m: sum((c*m + p) << (8*t) for t, (c, p) in enumerate(zip(chunk_seq(cfg, j), pos[j])))
        words = lambda j: [tab(j, 8) & 0xffffffff, tab(j, 8) >> 32, tab(j, 16) & 0xffffffff, tab(j, 16) >> 32]
        for k, x in enumerate(words(js[0])): a(f"s_mov_b32 s{40+k}, {x}")
        for jj in js[1:]:
            a(f"s_cmp_eq_u32 s{sJ}, {jj}")
            for k, x in enumerate(words(jj)): a(f"s_cselect_b32 s{40+k}, {x}, s{40+k}")
        for t in range(7):
            a(f"s_bfe_u32 s{sMSG+t}, s{40 + (t >> 2)}, {hex(0x80000 + 8*(t & 3))}\ns_lshl_b32 s{sMSG+t}, s{sMSG+t}, 13")
            a(f"s_bfe_u32 s{8+t}, s{42 + (t >> 2)}, {hex(0x80000 + 8*(t & 3))}\ns_lshl_b32 s{8+t}, s{8+t}, 3")
        a(f"""s_mul_i32 s59, s{sRB}, {7*32*MSG}
s_lshl_b32 s60, s3, 11
s_add_u32 s59, s59, s60
s_add_u32 s59, s59, {XP}
v_add_u32 v{vXP}, s59, v{vMSG}
s_mul_i32 s59, s{sRB}, 896
s_lshl_b32 s60, s3, 15
s_add_u32 s59, s59, s60
s_add_u32 s59, s59, {XFL}
v_subrev_u32 v{vFOFF}, 63, v{vLANE}
v_and_b32 v{vFOFF}, {OOB}, v{vFOFF}
v_or_b32 v{vFOFF}, s59, v{vFOFF}""")
        if self.role == 'M': a(f"s_lshl_b32 s59, s{sJ}, 1\ns_add_u32 s59, s59, s{sC}")
        if self.role == 'N': a(f"s_and_b32 s59, s{sJ}, 6\ns_add_u32 s59, s59, s{sC}\ns_lshl_b32 s59, s59, 1")
        if not E: a(f"""s_lshl_b32 s59, s59, 5
s_add_u32 s59, s59, s{sRB}
s_lshl_b32 s59, s59, 1
s_add_u32 s59, s59, s{sR}
s_lshl_b32 s59, s59, 11
s_add_u32 s59, s59, {KVP}
s_add_u32 s60, s59, 131072""")
        return [x.text for x in w.ins]
    def bias_init(self, acc, t):
        one = "1.0" if t & 1 else "0x3f80"
        return [f"v_mov_b32 v{vBB + (t >> 1)}, {one}", f"v_mov_b32 v{vBB + 1 - (t >> 1)}, 0", SKIP,
                f"v_mfma_f32_32x32x8bf16_1k {vr(acc, 16)}, {vr(vBA, 2)}, {vr(vBB, 2)}, 0"]
    def phi(self, acc, dst, tmp):
        L = []
        for i0 in range(0, 16, 4):
            r = [acc + i0 + k for k in range(4)]
            L += [f"v_mul_f32 v{tmp+k}, s{sL2E}, v{r[k]}" for k in range(4)]
            for k in range(4): L += [f"v_exp_f32 v{tmp+k}, v{tmp+k} clamp", f"v_max_f32 v{r[k]}, s{sEPS}, v{r[k]}"]
            L += [f"v_add_f32 v{r[k]}, v{r[k]}, v{tmp+k}" for k in range(4)]
            L += [f"v_cvt_pk_bf16_f32 v{dst + i0//2 + k}, v{r[2*k]}, v{r[2*k+1]}" for k in range(2)]
        return L
    def pack(self, acc, dst=None):
        dst = acc if dst is None else dst
        return [f"v_cvt_pk_bf16_f32 v{dst+i}, v{acc+2*i}, v{acc+2*i+1}" for i in range(8)]
    def h_epi(self, acc, dst):
        L = []
        for h in range(2):
            L += [f"v_mul_f32 v{acc+i}, v{acc+i}, abs(v{acc+i})" for i in range(8*h, 8*h+8)]
            L += self.pack(acc, dst)[4*h:4*h+4]
            L += [f"v_pk_max_i16 v{dst+i}, v{dst+i}, 0" for i in range(4*h, 4*h+4)]
        return L
    def h_write(self, src, t):
        for h in range(2): self.a(f"ds_write_b128 v{vFW}, {vr(src+4*h, 4)} offset:{HOFF + (4*t+h)*1024}")
    def send(self, acc, t):
        P = self.pack(acc); L = []
        st = lambda h: f"buffer_store_dwordx4 {vr(acc+4*h, 4)}, v{vXP}, s[{rWS}:{rWS+3}], s{sMSG+t} offen offset:{1024*h} sc1"
        L += P[:4] + [st(0)] + P[4:]
        L += [f"v_add3_u32 v{vCK}, v{acc}, v{acc+1}, v{acc+2}", f"v_add3_u32 v{vT0}, v{acc+3}, v{acc+4}, v{acc+5}",
              f"v_add3_u32 v{vCK}, v{vCK}, v{acc+6}, v{acc+7}", f"v_add_u32 v{vCK}, v{vCK}, v{vT0}"]
        ws = self.wsum(vCK); sp = self.cfg.SP if t < 5 else 0
        for k, x in enumerate(ws):
            if k == sp: L.append(st(1))
            L += [SKIP, x] if t < self.cfg.FAST or k % 2 == 0 else [x]
        if sp >= 6: L.append(st(1))
        L += [f"v_add_u32 v{vCK}, v{vCK}, v{vNON}",
              f"buffer_store_dwordx2 {vr(vCK, 2)}, v{vFOFF}, s[{rWS}:{rWS+3}], s{8+t} offen sc1"]
        if t == 5 and self.cfg.LB: L.append(lambda: self.barrier(len(self.groups)))
        if 'c' in self.cfg.X5: L = [x for x in L if callable(x) or not (x.startswith('v_add') or x == SKIP)]
        d = self.cfg.dbgst
        if d & 1: L = [x for x in L if not x.startswith("buffer_store_dwordx4")]
        if d & 2: L = [x for x in L if not x.startswith("buffer_store_dwordx2")]
        if d & 4: L = [x.replace(" sc1", "") for x in L]
        if d & 8: L = [x for x in L if x.startswith("buffer") or x == SKIP]
        return L
    def kv_epi(self, a):
        K, Dd = ACC[2*a], ACC[2*a+1]; V = K + 8
        L = self.phi(K, K, T8) + self.pack(Dd, V) + [f"v_bfi_b32 v{V+i}, v{vEM}, v{V+i}, v{vONES}" for i in range(8)]
        L += [f"v_mfma_f32_32x32x16_bf16 {vr(Dd,16)}, {vr(K+4*kk,4)}, {vr(V+4*kk,4)}, {vr(Dd,16) if kk else 0}" for kk in range(2)]
        L2 = self.pack(Dd) + [f"v_lshl_or_b32 v{Dd+8}, v{Dd+3}, 16, v{vTAG}", SKIP, f"v_permlane32_swap_b32 v{Dd+6}, v{Dd+7}",
                              f"v_and_or_b32 v{Dd+7}, v{Dd+3}, s{sMASK}, v{vTAG}", f"v_mov_b32 v{Dd+3}, v{Dd+8}"]
        L2 += [f"buffer_store_dwordx4 {vr(Dd+4*i, 4)}, v{vMSG}, s[{rWS}:{rWS+3}], s{59+a} offen offset:{i*1024} sc1" for i in ((1,) if self.cfg.X1 else (1, 0))]
        return L, L2
    def flag_offsets(self):
        L = []
        for t in range(7): L += [f"s_lshr_b32 s{8+t}, s{sMSG+t}, 13", f"s_and_b32 s{sT}, s{8+t}, -8", f"s_add_u32 s{8+t}, s{8+t}, s{sT}", f"s_lshl_b32 s{8+t}, s{8+t}, 3"]
        return L
    def bias_pack(self):
        return [f"v_lshl_or_b32 v{vBA}, v{T8+1}, 16, v{T8}", f"v_mov_b32 v{vBA+1}, 0" if self.role == 'E' else f"v_lshl_or_b32 v{vBA+1}, v{T8+3}, 16, v{T8+2}", SKIP]
    xread = lambda self, s: [f"ds_read_b128 {vr(XF+4*s, 4)}, v{vXR} offset:{s*1056}"]
    def kv_phase(self, items):
        na = 2 if self.role == 'N' else 1
        ep = [self.kv_epi(a) for a in range(na)]
        for wi, m in enumerate('kv'):
            for s in range(28):
                for a in range(na):
                    items.append(Job(ACC[2*a+wi], XF+4*s, self.gi[(m, s >> 1, 0)], s & 1, vQA + 2*a, False, s == 0, 2,
                                     None if a or wi else self.xread(s), (self.cfg.KF if na == 2 else 5) if wi else None))
                if wi == 0 and s == 20: items.append(Fill(self.bias_pack() + self.bias_init(ACC[4], 0), 0))
            items.append(Flush())
            if wi == 0: items.append(Fill(sum((e[0][:72] for e in ep[:1 if 'f' in self.cfg.X5 else 2]), [])))
        items.append(Code(lambda: self.stamp("kvmm"), False))
        def mark(): self.ev["l0"] = len(self.bars); self.stamp("l0st")
        e1, e2 = ep[0][0][72:], ep[0][1]
        if na == 2: e1 = e1 + ep[1][0][72:] + e2; e2 = ep[1][1]
        e1 = [lambda: self.barrier(name="xdead")] + e1
        e2 = e2 + [f"v_subrev_u32 v{c}, 0x10000, v{b}" for b, c in self.baseC.items()]
        items.append(Code(lambda: [self.emit_fill(x) for x in e1], False))
        items.append(Fill(e2 + [mark] + self.bias_init(ACC[2], 1), 3))
    def checksum(self, R, n, fl, cnt):
        a = self.a
        a(f"v_sub_u32 v{vCK}, 0, v{fl}")
        for i in range(0, n, 2): a(f"v_add3_u32 v{vCK}, v{vCK}, v{R+i}, v{R+i+1}")
        for s in self.wsum(vCK): a(s)
        a(f"v_mul_lo_u32 v{vT0}, v{vNON}, {cnt}\nv_add_u32 v{vCK}, v{vCK}, v{vT0}\nv_readlane_b32 s{sT}, v{vCK}, 63")
        a(f"s_cmp_lg_u32 s{sT}, 0\ns_cselect_b64 vcc, -1, 0")
    def finale(self, acc, can_non):
        self.stamp("mmend")
        a = self.a
        a(f"s_lshl_b32 s59, s{sC}, 11\ns_add_u32 s59, s59, {OOFF}\nv_add_u32 v{vT1}, s59, v{vFW}")
        a(f"s_lshl_b32 s59, s3, 8\nv_lshl_add_u32 v{vT2}, v{vLANE}, 2, s59")
        if can_non:
            own, fin = self.lab("own"), self.lab("fin")
            a(f"s_cmp_lg_u32 s{sJ}, {self.cfg.JN}\ns_nop 7\ns_cbranch_scc1 {own}")
            for x in self.send(acc, 6): self.emit_fill(x)
            a(f"s_branch {fin}\n{own}:")
        for i in range(4): a(f"ds_write_b128 v{vT1}, {vr(acc+4*i, 4)} offset:{i*1024}")
        a(f"ds_write_b32 v{vT2}, v{vONES}")
        if can_non: a(f"{fin}:")
        if self.cfg.prof: a("s_waitcnt vmcnt(0)"); self.stamp("end")
        self.end()

    def build(self):
        a = self.a; cfg = self.cfg; gi = self.gi; it = []
        lazy = self.lazy_setup()
        def xbar():
            self.stamp("role")
            for x in lazy[:cfg.NPRE]: a(x)
            a("s_waitcnt lgkmcnt(0)"); self.stamp("ln"); self.barrier(cfg.CH, long=True); self.stamp("b0")
        it.append(Code(xbar)); it.append(Fill(lazy[cfg.NPRE:], 2))
        def xchg(long=False):
            a("s_waitcnt lgkmcnt(0)"); self.barrier(self.nextneed(), long=long, name="o")
        if self.role != 'E':
            self.kv_phase(it)
            buf = [ACC[4], ACC[2], ACC[4], ACC[2]]; HK = [ACC[0], ACC[0]+8, ACC[1], ACC[1]+8]
            for t in range(4):
                it += [Job(buf[t], XF+4*s, gi[('w1', s >> 1, t)], s & 1, vHA, True, fill=(4 if t == 0 and s < 10 else None)) for s in range(28)]
                it.append(Flush())
                it.append(Fill(self.h_epi(buf[t], HK[t]) + (self.bias_init(buf[t], t+2) if t < 2 else [])))
            it.append(Code(lambda: self.stamp("ffn1"), False))
            ob = lambda t: (ACC[4], ACC[3], ACC[2])[t % 3]
            def J(t, h, kk, own, first=False, pre=None, fill=None):
                return Job(ob(t), (HK[h] if own else XF + 8*h) + 4*kk, gi[('w2', 2*h, t)], kk, vOA if own else vPA, True, first, 2, pre, fill)
            for t in range(2): it += [J(t, h, kk, True, h + kk == 0, fill=3) for h in range(3) for kk in range(2)]
            it.append(Flush())
            def hw():
                self.stamp("hw")
                for t in range(4 if 'e' not in cfg.X5 else 1): self.h_write(HK[t], t)
            it.append(Code(hw, False))
            for t in range(2): it += [J(t, 3, kk, True) for kk in range(2)]
            it.append(Code(xchg)); it.append(Code(lambda: self.stamp("hx"), False))
            rd = lambda h, kk: [f"ds_read_b128 {vr(XF+8*h+4*kk, 4)}, v{vFR} offset:{HOFF + (4*h+kk)*1024}"]
            it += [J(0, h, kk, False, pre=rd(h, kk)) for h in range(4) for kk in range(2)] + [Fill(self.send(ob(0), 0))]
            it += [J(1, h, kk, False, fill=3) for h in range(4) for kk in range(2)] + [Fill(self.send(ob(1), 1))]
            for t in range(2, 7):
                it += [J(t, h, kk, own, h + kk == 0 and own, fill=cfg.FF if t > cfg.FAST else 3 if t == 2 else None) for h in range(4) for own in (True, False) for kk in range(2)] + [Flush()]
                if t < 6: it.append(Fill(self.send(ob(t), t)))
            self.run(it)
            self.finale(ob(6), self.role == 'M')
        else:
            buf = [ACC[2], ACC[4]]
            for s in range(28):
                it.append(Job(buf[0], XF+4*s, gi[('w1', s >> 1, 0)], s & 1, vHA, True, s == 0, 1, self.xread(s)))
                if s == 14: it.append(Fill(self.bias_pack() + self.bias_init(buf[1], 1), 0))
                if s == 21: it.append(Flush())
            b0 = self.bias_init(buf[0], 0); b0[-1] = b0[-1][:-1] + vr(buf[0], 16)
            it.append(Fill(b0 + [SKIP]*6 + self.h_epi(buf[0], T8), 3))
            it += [Job(buf[1], XF+4*s, gi[('w1', s >> 1, 1)], s & 1, vHA, True) for s in range(28)] + [Flush()]
            it.append(Fill(self.h_epi(buf[1], buf[1])))
            it.append(Code(lambda: self.stamp("ffn1"), False))
            for s in range(28):
                it += [Job(ACC[hh], XF+4*s, gi[('q', s >> 1, 0)], s & 1, vQA + 2*hh, True, s == 0, 4, fill=1) for hh in range(4)]
                if s == cfg.HWS: it += [Flush(), Code(lambda: (self.ev.update(hw=len(self.bars)), self.h_write(T8, 0), self.h_write(buf[1], 1)), False)]
            it.append(Code(lambda: self.stamp("q"), False))
            f = []
            for hh in range(4):
                d = ACC[0] + 8*hh
                f += self.phi(ACC[hh], d, T8) if 'a' not in cfg.X5 else self.pack(ACC[hh], d)
            it.append(Fill(f))
            for s, t in ([(2*kb + u, t) for kb in range(4) for t in range(7) for u in range(2)] if cfg.GM else [(s, t) for s in range(8) for t in range(7)]):
                hb = ACC[4] + 4*(s & 3)
                if 1:
                    pre = [f"ds_read_b128 {vr(hb, 4)}, v{vFR} offset:{HOFF + s*1024}"] if t == 0 else []
                    it.append(Job(XF + 16*t, hb, gi[('w2', s >> 1, t)], s & 1, vOA, True, s == 0, 1, pre, cfg.QFILL))
            def ocalc():
                self.barrier(name="kvb")
                self.stamp("ffn2a")
            it.append(Code(ocalc)); it.append(Flush())
            def ocalc2():
                KB = ACC[2]
                a(f"""s_and_b32 s59, s{sJ}, 1
s_lshl_b32 s59, s59, 1
s_add_u32 s59, s59, s{sC}
s_lshl_b32 s59, s59, 13
s_add_u32 s59, s59, {KVF}
s_add_u32 s60, s59, 4096
v_subrev_u32 v{vKVA}, 0x10000, v{vOA}
s_mul_i32 s61, s{sC}, {HALF}
s_add_u32 s61, s61, {STG + KVB}
v_add_u32 v{vXW}, s61, v{vMSG}
s_mov_b32 s61, 0x07060302""")
                self.stamp("phi")
                self.barrier(name="kvr", long=True)
                self.stamp("kvr")
                for i in range(8): a(f"ds_read_b128 {vr(KB+4*i, 4)}, v{vXW} offset:{i*1024}")
                lp, ck = self.lab("l2_"), self.lab("l2c")
                a(f"{ck}:\nv_mov_b32 v{vT0}, 0")
                for hh in range(4):
                    a(f"v_xor_b32 v{vT1}, v{KB+8*hh+3}, v{vTAG}\nv_xor_b32 v{vT2}, v{KB+8*hh+7}, v{vTAG}\nv_or3_b32 v{vT0}, v{vT0}, v{vT1}, v{vT2}")
                    a(f"v_perm_b32 v{KB+8*hh+3}, v{KB+8*hh+7}, v{KB+8*hh+3}, s61\nv_mov_b32 v{KB+8*hh+7}, 0")
                a(f"v_and_b32 v{vT0}, 0xffff, v{vT0}\nv_cmp_ne_u32 vcc, 0, v{vT0}")
                for hh in range(4): a(f"v_permlane32_swap_b32 v{KB+8*hh+6}, v{KB+8*hh+7}")
                self.retry(lp)
                self.ool += [f"{lp}:"]
                self.ool += [f"buffer_load_dwordx4 {vr(KB+4*i, 4)}, v{vMSG}, s[{rWS}:{rWS+3}], s{59 + (i >> 2)} offen offset:{(i & 3)*1024} sc1" for i in range(8)]
                self.ool += ["s_waitcnt vmcnt(0)", f"s_branch {ck}"]
                self.stamp("kvok")
                nb = [ACC[4], vB, ACC[4], vB]
                def mm(hh):
                    for kk in range(2):
                        a(f"v_mfma_f32_32x32x16_bf16 {vr(nb[hh],16)}, {vr(KB+8*hh+4*kk,4)}, {vr(ACC[0]+8*hh+4*kk,4)}, {vr(nb[hh],16) if kk else 0}")
                def ep(hh):
                    n = nb[hh]
                    a(f"v_mov_b32 v{vT0}, v{n+12}\nv_mov_b32 v{vCK}, v{n+12}\nv_permlane32_swap_b32 v{vT0}, v{vCK}")
                    a(f"v_add_f32 v{vCK}, s{sEPS}, v{vCK}\nv_rcp_f32 v{vCK}, v{vCK}")
                    for i in range(4):
                        for k in range(4): a(f"v_mul_f32 v{n+4*i+k}, v{n+4*i+k}, v{vCK}")
                        for k in range(2): a(self.pack(n)[2*i+k])
                        g0 = 7*hh + 2*i
                        off = OOFF + (g0 >> 2)*1024 + ((g0 >> 1) & 1)*512 + (g0 & 1)*8
                        if i == 3: a("s_mov_b32 exec_hi, 0")
                        a(f"ds_write_b64 v{vOWB if g0 & 1 else vOWA}, {vr(n+2*i, 2)} offset:{off}")
                        if i == 3: a("s_mov_b32 exec_hi, -1")
                if cfg.OP:
                    nb = [ACC[4], vB, ACC[2], ACC[0]]; dn = [T8 + 2*hh for hh in range(4)]
                    for hh in range(4): mm(hh)
                    for hh in range(4): a(f"v_mov_b32 v{dn[hh]}, v{nb[hh]+12}\nv_mov_b32 v{dn[hh]+1}, v{nb[hh]+12}")
                    for hh in range(4): a(f"v_permlane32_swap_b32 v{dn[hh]+1}, v{dn[hh]}")
                    for hh in range(4): a(f"v_add_f32 v{dn[hh]}, s{sEPS}, v{dn[hh]}")
                    for hh in range(4): a(f"v_rcp_f32 v{dn[hh]}, v{dn[hh]}")
                    for i in range(4):
                        if i == 3: a("s_mov_b32 exec_hi, 0")
                        for hh in range(4):
                            n = nb[hh]; g0 = 7*hh + 2*i
                            for k in (0, 2): a(f"v_pk_mul_f32 {vr(n+4*i+k, 2)}, {vr(n+4*i+k, 2)}, {vr(dn[hh], 2)} op_sel_hi:[1,0]")
                            for k in range(2): a(f"v_cvt_pk_bf16_f32 v{n+4*i+k}, v{n+4*i+2*k}, v{n+4*i+2*k+1}")
                            a(f"ds_write_b64 v{vOWB if g0 & 1 else vOWA}, {vr(n+4*i, 2)} offset:{OOFF + (g0 >> 2)*1024 + ((g0 >> 1) & 1)*512 + (g0 & 1)*8}")
                    a("s_mov_b32 exec_hi, -1")
                else:
                    mm(0); mm(1); ep(0); mm(2); ep(1); mm(3); ep(2); ep(3)
                xchg(True)
                self.stamp("o")
            it.append(Code(ocalc2))
            for t in range(7):
                for s in range(14):
                    pre = [f"ds_read_b128 {vr(ACC[0]+4*s, 4)}, v{vFR} offset:{OOFF + s*1024}"] if t == 0 else []
                    it.append(Job(XF + 16*t, ACC[0]+4*s, gi[('wo', s >> 1, t)], s & 1, vOA, True, False, 1, pre, cfg.FF if t > cfg.FAST else 3))
                it.append(Flush())
                if t < 6: it.append(Fill(self.send(XF + 16*t, t)))
            self.run(it)
            self.finale(XF + 96, False)
        self.plan_loader()

def weight_srds(w, E):
    w.a(f"s_mul_i32 s49, s{sJ}, 56\ns_lshr_b32 s49, s49, 6\ns_lshl_b32 s49, s49, 7")
    if E:
        w.a(f"s_and_b32 s48, s{sJ}, 1\ns_mul_i32 s59, s48, {224*896}\ns_mul_i32 s48, s48, 384")
        srd(w, 44, pWO, 401408, 59)
    ffn_line0(w, 60)
    w.a("s_lshl_b32 s59, s60, 7"); srd(w, 36, pW1, 1605632, 59)
    w.a(f"s_mul_i32 s59, s60, {64*896}"); srd(w, 40, pW2, 1605632, 59)

class Pf:
    def __init__(s, w): s.w = w; s.n = 0; assert w.cfg.G == 16
    def new(s, rs):
        s.n += 1; v = 16 + s.n
        return v, f"buffer_load_dword v{48 + s.n}, v{v}, s[{rs}:{rs+3}], 0 offen"
    def cols(s, rs, sbase, off, stride, nl, lstep=None):
        v, ins = s.new(rs)
        line = f"v_min_u32 v9, {nl-1}, v9\nv_lshl_add_u32 v{v}, v9, 7, v{v}" if lstep is None else \
               f"v_and_b32 v10, 1, v9\nv_lshl_add_u32 v{v}, v10, 7, v{v}\nv_lshrrev_b32 v9, 1, v9\nv_mul_u32_u24 v9, {lstep}, v9\nv_add_u32 v{v}, v9, v{v}"
        s.w.a(f"""s_mul_i32 s60, s61, 14
v_and_b32 v{v}, 15, v0
v_min_u32 v{v}, 13, v{v}
v_add_u32 v{v}, s60, v{v}
v_mul_u32_u24 v{v}, {stride}, v{v}
v_lshrrev_b32 v9, 4, v0
{line}""")
        if off: s.w.a(f"v_add_u32 v{v}, {off}, v{v}")
        if sbase is not None: s.w.a(f"v_add_u32 v{v}, s{sbase}, v{v}")
        return ins
    def chunks(s, rs, nr, t0, t1):
        v, ins = s.new(rs)
        s.w.a(f"s_mul_i32 s60, s61, {nr}\nv_and_b32 v{v}, 7, v0\nv_min_u32 v{v}, {nr-1}, v{v}\nv_add_u32 v{v}, s60, v{v}\nv_mul_u32_u24 v{v}, 896, v{v}\nv_mov_b32 v9, s{50+t0}")
        for t in range(t0+1, t1): s.w.a(f"v_mov_b32 v10, s{50+t}\nv_cmp_le_u32 vcc, {8*(t-t0)}, v0\nv_cndmask_b32 v9, v9, v10, vcc")
        s.w.a(f"v_add_u32 v{v}, v9, v{v}")
        return ins

gA, gR, gY = 16, 64, 128
vGO, vGB, vGM, vGC, vGT, vGN, vLO, vHI, vXD, vTW, vTR, vOF = 36, 37, 39, 32, 33, 34, 35, 15, 38, 40, 41, 42
def gather_stage1(w, cfg):
    a = w.a
    srd(w, 32, pX, 1835008); srd(w, 36, pWS, WSZ)
    a(f"""s_mov_b64 s[0:1], s[{pB2}:{pB2+1}]
s_sub_u32 s57, s3, 4
s_cmp_gt_u32 s{sJ}, {cfg.JN}
s_subb_u32 s58, s{sJ}, 0
s_mul_i32 s61, s{sRB}, 7
s_add_u32 s61, s61, s58
s_lshl_b32 s60, s57, 8
s_add_u32 s60, s60, s61
s_lshl_b32 s60, s60, 7
s_add_u32 s60, s60, {XFL}
s_add_u32 s48, s{pWS}, s60
s_addc_u32 s49, s{pWS+1}, 0
s_waitcnt lgkmcnt(0)
s_mov_b32 s26, s{sNON}
s_load_dwordx16 s[8:23], s[48:49], 0 glc
s_lshl_b32 s61, s61, 5
s_add_u32 s61, s61, s57
s_lshl_b32 s61, s61, 11
s_add_u32 s61, s61, {XP}
s_lshl_b32 s58, s58, 7
s_and_b32 s60, s57, 1
s_lshl_b32 s60, s60, 6
s_add_u32 s58, s58, s60
s_lshr_b32 s27, s57, 1
s_lshl_b32 s60, s{sRB}, 1
s_add_u32 s60, s60, s27
s_mul_i32 s60, s60, {32*896}
s_add_u32 s60, s60, s58
v_lshrrev_b32 v{vTR}, 2, v0
v_and_b32 v{vGM}, 3, v0
v_mul_u32_u24 v{vGO}, 896, v{vTR}
v_lshl_add_u32 v{vGO}, v{vGM}, 4, v{vGO}
v_mul_u32_u24 v{vTR}, 80, v{vTR}
v_lshl_add_u32 v{vTR}, v{vGM}, 4, v{vTR}
v_and_b32 v{vGB}, 32, v0
v_and_b32 v{vGM}, 31, v0
v_lshl_add_u32 v{vXD}, v{vGM}, 6, v{vGB}
v_lshl_add_u32 v{vTW}, v{vGM}, 4, v{vXD}
v_lshlrev_b32 v{vGM}, 4, v0
s_mul_i32 s27, s27, {HALF}
s_and_b32 s57, s57, 1
s_lshl_b32 s57, s57, 11
s_add_u32 s27, s27, s57
s_add_u32 s57, s57, s27
s_add_u32 s57, s57, {STG + OOFF}
s_add_u32 s27, s27, {STG + OOFF + 8192}
v_add_u32 v{vGT}, s57, v{vGM}
v_add_u32 v{vTW}, s57, v{vTW}
v_add_u32 v{vTR}, s57, v{vTR}
v_add_u32 v{vXD}, s27, v{vXD}
v_mov_b32 v{vGN}, s26""")

def ready_mask(a):
    a("s_mov_b32 s57, 0")
    for i in range(7, -1, -1): a(f"s_cmp_eq_u32 s{9+2*i}, s26\ns_addc_u32 s57, s57, s57")
    a("s_and_b32 s57, s57, s56")
def cksum_total(a):
    a("s_bcnt1_i32_b32 s51, s30\ns_mul_i32 s51, s51, s26")
    for i in range(8): a(f"s_bitcmp1_b32 s30, {i}\ns_cselect_b32 s59, s{8+2*i}, 0\ns_sub_u32 s51, s51, s59")

def gather_stage2(w, cfg):
    a = w.a
    srd(w, 40, 0, 896); srd(w, 44, pOUT, 1835008)
    a(f"s_add_u32 s57, s60, {16*896}")
    for h in range(2):
        a(f"s_add_u32 m0, s27, {h*1024}\nbuffer_load_dwordx4 v{vGO}, s[32:35], s{57 if h else 60} offen lds")
        a(f"buffer_load_dwordx4 {vr(gY+8+4*h, 4)}, v{vGB}, s[40:43], s58 offen offset:{16*h}")
    a(f"s_load_dwordx16 s[8:23], s[48:49], 0 glc")
    for k in range(7): a(f"s_add_u32 s{50+k}, s61, {k*8192}")
    a(f"v_mov_b32 v{vLO}, 0x3f80\nv_mov_b32 v{vHI}, 1.0\nv_mov_b32 v{vGC}, 0")
    return 4

def build_gather(cfg, role):
    w = Wave("g" + role, cfg); E = role == 'E'; gS, gT = 144, 160
    a = lambda t: w.a(re.sub(r"\bg_", f"g{role}_", t))
    w.stamps = ["-"]*8
    POLL = "s_load_dwordx16 s[8:23], s[48:49], 0 glc"
    def addp(x):
        L = []
        for i in range(8):
            L += [f"v_lshlrev_b32 v{vLO}, 16, v{x+i}", f"v_and_b32 v{vHI}, s27, v{x+i}", f"v_add_f32 v{gA+2*i}, v{gA+2*i}, v{vLO}", f"v_add_f32 v{gA+2*i+1}, v{gA+2*i+1}, v{vHI}"]
        return L
    def addd(x):
        return [f"v_dot2c_f32_bf16 v{gA+k}, v{x+k//2}, v{vHI if k & 1 else vLO}" for k in range(16)]
    ld = lambda k: [f"buffer_load_dwordx4 {vr(gR+8*k+4*h, 4)}, v{vGM}, s[36:39], s{50+k} offen offset:{1024*h} sc1" for h in range(2)]
    def base(mid=None):
        for i in range(4): a(f"ds_read_b128 {vr(gT+4*i, 4)}, v{vGT} offset:{i*1024}")
        a("s_waitcnt lgkmcnt(0)")
        if mid: a(mid)
        for i in range(16): a(f"v_add_f32 v{gA+i}, v{gA+i}, v{gT+i}")
    def process(k):
        if k == 6: a("s_waitcnt vmcnt(0)"); w.stamp("gin")
        for q in range(0, 8, 2): a(f"v_add3_u32 v{vGC}, v{vGC}, v{gR+8*k+q}, v{gR+8*k+q+1}")
        L = addd(gR + 8*k)
        if k == 6:
            for x in w.wsum(vGC) + [f"v_readlane_b32 s59, v{vGC}, 63"]:
                a(L.pop(0)); a(L.pop(0)); a(x)
        for x in L: a(x)
    w.npre = 0
    w.stamp("gstart")
    a("g_top:\ns_mov_b32 s31, 1\ns_mov_b32 s27, 0xffff0000\ns_waitcnt vmcnt(0)")
    for h in range(2): a(f"ds_read_b128 {vr(gY+4*h, 4)}, v{vXD} offset:{16*h}")
    done = 0
    for k in range(7):
        a(f"s_cmp_lg_u32 s{9+2*k}, s26\ns_cbranch_scc1 g_wait{k}\ng_go{k}:")
        w.ool += re.sub(r"\bg_", f"g{role}_", f"""g_wait{k}:
s_waitcnt lgkmcnt(0)
s_cmp_eq_u32 s{9+2*k}, s26
s_cbranch_scc1 g_go{k}
s_sub_u32 s{sSPIN}, s{sSPIN}, 1
s_cmp_le_i32 s{sSPIN}, 0
s_cbranch_scc1 g_go{k}
s_call_b64 s[58:59], g_idle
s_branch g_wait{k}""").split("\n")
        if cfg.GK and k in (0, 2, 3, 4, 5): w.stamp(f"go{k}")
        for x in ld(k) if k >= cfg.X3 else []: a(x)
        if k == 0:
            a("s_waitcnt lgkmcnt(0)")
            if cfg.FP: a(POLL)
            for i in range(8): a(f"v_lshlrev_b32 v{gA+2*i}, 16, v{gY+i}\nv_and_b32 v{gA+2*i+1}, s27, v{gY+i}")
            a("s_mov_b32 s31, 0")
        if k == 2:
            for x in addd(gY+8): a(x)
        if cfg.LAG <= k < 6: process(done); done += 1
    w.stamp("gall")
    a("s_mul_i32 s30, s26, 7")
    for i in range(7): a(f"s_sub_u32 s30, s30, s{8+2*i}")
    a(f"""s_cmp_lg_u32 s31, 0
s_cbranch_scc1 g_sum
g_ownw:
ds_read_b32 v{gT}, v{vOF}
s_sub_u32 s{sSPIN}, s{sSPIN}, 1
s_cmp_le_i32 s{sSPIN}, 0
s_waitcnt lgkmcnt(0)
s_cbranch_scc1 g_redo
v_cmp_eq_u32 vcc, 0, v{gT}
s_cbranch_vccnz g_ownw
g_redo:""")
    base()
    a("g_sum:")
    for k in range(done, 7): process(k)
    a("s_add_u32 s59, s59, s30\ns_cmp_lg_u32 s59, 0\ns_cbranch_scc1 g_fail\ng_done:".replace("s_cmp_lg_u32 s59, 0", "s_cmp_lg_u32 s59, s59" if cfg.X3 or 'c' in cfg.X5 else "s_cmp_lg_u32 s59, 0"))
    a("s_waitcnt lgkmcnt(0)")
    for h in range(2):
        for i in range(4*h, 4*h+4): a(f"v_cvt_pk_bf16_f32 v{gA+i}, v{gA+2*i}, v{gA+2*i+1}")
        a(f"ds_write_b128 v{vTW}, {vr(gA+4*h, 4)} offset:{16*h}")
    for u in range(2): a(f"ds_read_b128 {vr(gA+8+4*u, 4)}, v{vTR} offset:{u*1280}")
    for u in range(2): a(f"buffer_store_dwordx4 {vr(gA+8+4*u, 4)}, v{vGO}, s[44:47], s{57 if u else 60} offen {cfg.OSC.replace('_', ' ')}")
    w.stamp("gst")
    a(f"""s_lshl_b32 s59, s{sRB}, 3
s_add_u32 s59, s59, s{sJ}
s_lshl_b32 s59, s59, 3
s_add_u32 s59, s59, s3
s_cmp_lg_u32 s59, {2*8 + 7}
s_cbranch_scc1 g_exit
s_mov_b64 exec, 1
buffer_store_dword v{vGN}, v{vGM}, s[36:39], 0 offen sc1
s_mov_b64 exec, -1
g_exit:""")
    if cfg.prof: a("s_waitcnt vmcnt(0)"); w.stamp("gend"); w.stamps.append("gF")
    w.end()
    if cfg.prof: w.stamps.pop()
    a(f"g_fail:\ns_sub_u32 s{sSPIN}, s{sSPIN}, {1000 if cfg.prof else 64}\ns_cmp_le_i32 s{sSPIN}, 0\ns_cbranch_scc1 g_done")
    a(f"""s_waitcnt lgkmcnt(0)
{POLL}
v_mov_b32 v{vGC}, 0
s_waitcnt lgkmcnt(0)
s_branch g_top
g_idle:
s_cmp_lg_u32 s31, 0
s_cbranch_scc1 g_idle2
ds_read_b32 v{gT}, v{vOF}
s_waitcnt lgkmcnt(0)
v_cmp_eq_u32 vcc, 0, v{gT}
s_cbranch_vccnz g_idle2
s_mov_b32 s31, 1""")
    w.stamp("gF")
    base(POLL)
    a(f"s_setpc_b64 s[58:59]\ng_idle2:\n{POLL}\ns_setpc_b64 s[58:59]")
    return w

def touch_flags(w, cfg):
    if cfg.TOUCH: w.a(f"""s_cmp_gt_u32 s{sJ}, {cfg.JN}
s_subb_u32 s60, s{sJ}, 0
s_mul_i32 s61, s{sRB}, 7
s_add_u32 s60, s60, s61
s_lshl_b32 s61, s3, 8
s_add_u32 s60, s60, s61
s_lshl_b32 s60, s60, 7
s_add_u32 s60, s60, {XFL - 131072}
s_load_dword s26, s[{pWS}:{pWS+1}], s60 glc""")

def to_gather(w, cfg, role):
    assert 3 <= cfg.JN <= 5
    if role == 'M': w.a(f"s_cmp_eq_u32 s{sJ}, {cfg.JN}\ns_cbranch_scc1 gM_exit")
    w.a(f"s_branch gather_{role}")

def build_loader(role, cfg, comp):
    w = Wave("l" + role, cfg); a = w.a; E = role == 'E'
    vo = {2688: 2, 3584: 3, 896: 4}
    weight_srds(w, E); chunk_order(w, cfg, 50, 128, E)
    a(f"""s_sub_u32 s30, s3, 4
s_lshl_b32 s31, s30, 11
s_lshl_b32 s59, s30, 4
v_bfe_u32 v12, v0, 2, 3
v_add_u32 v12, s59, v12
v_lshrrev_b32 v13, 5, v0
v_lshlrev_b32 v13, 6, v13
v_and_b32 v14, 3, v0
v_lshl_add_u32 v13, v14, 4, v13""")
    for st, r in vo.items(): a(f"v_mul_u32_u24 v{r}, {st}, v12\nv_add_u32 v{r}, v{r}, v13")
    pf = Pf(w); ev = comp.ev; late = {}; first = []
    def at(k, fn): late.setdefault(k, []).append(fn)
    a(f"s_lshl_b32 s61, s{sG}, 1\ns_add_u32 s61, s61, s30")
    if E:
        first.append(pf.cols(36, None, 0, 3584, 2))
        if cfg.QT < 0: first.append(pf.cols(32, 48, 0, 2688, 4))
        else: at(cfg.QT, lambda: pf.cols(32, 48, 0, 2688, 4))
        at(ev['hw'] - cfg.PE2, lambda: pf.chunks(40, 4, 0, 7))
        if cfg.WOA: at(ev['hw'] - cfg.PE2, lambda: pf.chunks(44, 7, 0, cfg.WOA))
        if cfg.WOA < 7: at(ev['kvb'] - cfg.WOT, lambda: pf.chunks(44, 7, cfg.WOA, 7))
    else:
        first += [pf.cols(32, 49, 896, 2688, 4, 896), pf.cols(36, None, 0, 3584, cfg.W1A)]
        if cfg.W1A < 4: at(ev['xdead'] - cfg.PKD, lambda: pf.cols(36, None, cfg.W1A*128, 3584, 4 - cfg.W1A))
        if cfg.PK: at(ev['xdead'] - cfg.PKD, lambda: pf.chunks(40, 8, 0, cfg.PK))
        if cfg.PL > cfg.PK: at(ev['l0'] + (cfg.L1D + cfg.PLD - 1 if role == 'M' else cfg.PLN), lambda: pf.chunks(40, 8, cfg.PK, cfg.PL))
        if cfg.PL < 7: at(ev['o'] - 1 - cfg.PHD, lambda: pf.chunks(40, 8, cfg.PL, 7))
    if cfg.BA: a("s_barrier")
    w.stamp("start")
    for x in first: a(x)
    a(f"s_waitcnt lgkmcnt(0)\ns_add_u32 s{sNON}, s{sNON}, 1")
    late = {k: [f() for f in v] for k, v in late.items()}
    touch_flags(w, cfg)
    if cfg.A2 >= 0: a("s_barrier")
    N = len(comp.groups); g = 0; ops = []
    for k, b in enumerate(comp.bars):
        while g < comp.iss[k]:
            m, kb, l = comp.groups[g]
            rs, st, base, lit = {'k': (32, 2688, 49, 896 + l*128), 'v': (32, 2688, 49, 1792 + l*128),
                                 'q': (32, 2688, 48, l*128), 'w1': (36, 3584, None, l*128),
                                 'w2': (40, 896, 50 + l, 0), 'wo': (44, 896, 50 + l, 0)}[m]
            for p in range(2):
                if cfg.X4 and g % cfg.X4 == cfg.X4 - 3 and g > 30: continue
                o = lit + (kb*32 + p*8)*st
                a(f"s_add_u32 m0, s31, {comp.addr[g] + p*1024}")
                a(f"s_mov_b32 s59, {o}" if base is None else f"s_add_u32 s59, s{base}, {o}")
                a(f"buffer_load_dwordx4 v{vo[st]}, s[{rs}:{rs+3}], s59 offen lds"); ops.append(g)
            g += 1
            if g in (comp.iss[0], 56, 112, N): w.stamp(f"iss{g}")
        for x in late.pop(k, []): a(x); ops.append(-1)
        assert cfg.G1 >= 1
        if k == comp.kN + 1 - cfg.G1: gather_stage1(w, cfg)
        a(f"s_waitcnt vmcnt({len(ops) - ops.index(max(x for x in ops if x < b['need'])) - 2})\ns_barrier")
        if k == comp.kN: ops += [-1]*gather_stage2(w, cfg); w.stamp("g0iss")
        if k == len(comp.bars) - 1 - cfg.LP and k > comp.kN + 1: a("s_load_dwordx16 s[8:23], s[48:49], 0 glc")
    assert not late
    assert comp.bars[-1]['need'] == N
    to_gather(w, cfg, role)
    return w

def build_proto(role, cfg, comp):
    w = Wave("p" + role, cfg); a = w.a; E = role == 'E'
    rWS_ = 52; NBAR = len(comp.bars)
    def tick_to(n):
        l = w.lab("tk"); a(f"{l}:\ns_cmp_ge_u32 s31, {n}\ns_cbranch_scc1 {l}x\ns_barrier\ns_add_u32 s31, s31, 1\ns_branch {l}\n{l}x:")
    def srd_w2():
        ffn_line0(w, 60); a(f"s_mul_i32 s60, s60, {64*896}"); srd(w, 40, pW2, 1605632, 60)
    def poll(start, lim, on):
        a(f"s_add_u32 s48, s{pWS}, s60\ns_addc_u32 s49, s{pWS+1}, 0\ns_and_b32 s50, s{sNON}, 0xff\ns_mul_i32 s50, s50, 0x01010101\ns_mov_b32 s51, s50")
        if cfg.TOUCH and on == 1:
            for i in range(4): a(f"s_load_dword s{sT}, s[48:49], {128*i} glc")
        tick_to(start)
        if on != 2: w.stamp("poll")
        if not on: return
        lp = w.lab("po"); a(f"s_waitcnt lgkmcnt(0)\n{lp}:")
        for i in range(4): a(f"s_load_dwordx4 s[{32+4*i}:{35+4*i}], s[48:49], {128*i} glc")
        l = w.lab("tw")
        a(f"{l}:\ns_cmp_ge_u32 s31, {lim}\ns_cbranch_scc1 {l}x\ns_barrier\ns_add_u32 s31, s31, 1\ns_getreg_b32 s{sT}, hwreg(HW_REG_IB_STS, 8, 4)\ns_cmp_lg_u32 s{sT}, 0\ns_cbranch_scc1 {l}\n{l}x:")
        a("s_waitcnt lgkmcnt(0)\ns_xor_b64 vcc, s[32:33], s[50:51]")
        for i in range(1, 8): a(f"s_xor_b64 s[32:33], s[{32+2*i}:{33+2*i}], s[50:51]\ns_or_b64 vcc, vcc, s[32:33]")
        w.retry(lp)
    def tick(lim):
        l = w.lab("tk"); a(f"s_cmp_ge_u32 s31, {lim}\ns_cbranch_scc1 {l}\ns_barrier\ns_add_u32 s31, s31, 1\n{l}:")
    a("s_sub_u32 s30, s3, 6\ns_mov_b32 s31, 0")
    if cfg.BA: a("s_barrier")
    srd(w, rWS_, pWS, WSZ)
    if cfg.TLB:
        l = w.lab("tlb")
        a(f"""s_cmp_lg_u32 s30, 0
s_cbranch_scc1 {l}
s_mul_i32 s59, s{sRB}, {7*65536}
s_add_u32 s59, s59, {XP + 7*8192}
s_add_u32 s60, s59, {6*65536}
v_mov_b32 v2, {OOB}
v_writelane_b32 v2, s59, 0
v_writelane_b32 v2, s60, 1
s_mov_b32 s59, {XFL + (1 << 19)}
v_writelane_b32 v2, s59, 2
s_mov_b32 s59, 4096
v_writelane_b32 v2, s59, 3
s_mov_b32 s59, {7 << 19}
v_writelane_b32 v2, s59, 4
s_mov_b32 s59, {9 << 19}
v_writelane_b32 v2, s59, 5
buffer_load_dword v43, v2, s[{rWS_}:{rWS_+3}], 0 offen
s_branch {l}x
{l}:""")
        srd(w, 36, pW2, 1605632); srd(w, 40, pWO, 401408); srd(w, 44, pOUT, 1835008)
        a(f"""v_mov_b32 v2, 0
s_mul_i32 s59, s{sRB}, 57344
s_cmp_gt_u32 s{sJ}, {cfg.JN}
s_subb_u32 s60, s{sJ}, 0
s_lshl_b32 s60, s60, 7
s_add_u32 s59, s59, s60
s_mov_b64 exec, 1
buffer_load_dword v43, v2, s[36:39], 0 offen
buffer_load_dword v44, v2, s[40:43], 0 offen
buffer_load_dword v45, v2, s[44:47], s59 offen
s_mov_b64 exec, -1
{l}x:""")
    a(f"s_waitcnt lgkmcnt(0)\ns_add_u32 s{sNON}, s{sNON}, 1")
    touch_flags(w, cfg)
    if cfg.A2 >= 0: a("s_barrier")
    if E:
        l = w.lab("seen")
        tick_to(1)
        a(f"""s_cmp_lg_u32 s30, 0
s_cbranch_scc1 {l}
s_and_b32 s59, s{sJ}, 1
s_lshl_b32 s59, s59, 5
s_add_u32 s59, s59, s{sRB}
s_lshr_b32 s60, s59, 4
s_mul_i32 s60, s60, 112
s_add_u32 s59, s59, s60
s_add_u32 s59, s59, {NT2}
v_mov_b32 v2, s{sNON}
s_mov_b64 exec, 1
buffer_store_byte v2, v0, s[{rWS_}:{rWS_+3}], s59 offen sc1
s_mov_b64 exec, -1
{l}:""")
        a(f"""s_and_b32 s59, s{sJ}, 1
s_lshl_b32 s59, s59, 1
s_add_u32 s59, s59, s30
s_lshl_b32 s60, s59, 9
s_and_b32 s61, s{sRB}, {cfg.NREP-1}
s_mul_i32 s61, s61, 2304
s_add_u32 s60, s60, s61
s_add_u32 s60, s60, {NT1}
s_lshl_b32 s59, s59, 13
s_add_u32 s59, s59, {KVF}
s_mul_i32 s61, s30, {HALF}
s_add_u32 s61, s61, {STG + KVB}
v_lshlrev_b32 v3, 4, v0""")
        lim = comp.ev["kvr"] - 1
        poll(comp.ev["kvr"] - cfg.L2T, lim, cfg.L2N)
        w.stamp("l2go")
        for h in range(2):
            a(f"s_add_u32 m0, s61, {h*4096}\ns_add_u32 s58, s59, {h*4096}")
            for i in range(4): a(f"buffer_load_dwordx4 v3, s[{rWS_}:{rWS_+3}], s58 offen offset:{i*1024} sc1 lds")
        tick_to(lim)
        a("s_waitcnt vmcnt(0)")
        w.stamp("l2in")
    elif role == 'M':
        fin2 = w.lab("fin")
        a(f"""s_sub_u32 s59, s{sJ}, 2
s_lshl_b32 s59, s59, 1
s_add_u32 s59, s59, s30
s_lshl_b32 s59, s59, 5
s_add_u32 s61, s59, s{sRB}
s_lshr_b32 s59, s61, 4
s_lshl_b32 s60, s59, 9
s_add_u32 s60, s60, {NT0}
s_mul_i32 s24, s59, 112
s_add_u32 s24, s24, s61
s_add_u32 s24, s24, {NT1}
s_lshl_b32 s59, s59, 17
s_and_b32 s58, s61, 15
s_lshl_b32 s58, s58, 7
s_add_u32 s59, s59, s58
s_add_u32 s59, s59, {KVP}
s_lshl_b32 s61, s61, 7
s_add_u32 s61, s61, {KVF}
v_lshrrev_b32 v20, 3, v0
v_lshlrev_b32 v20, 11, v20
v_and_b32 v33, 7, v0
v_lshl_add_u32 v20, v33, 4, v20
v_lshlrev_b32 v13, 4, v0
v_mul_u32_u24 v14, 2304, v0
s_and_b32 s58, s{sNON}, 0xffff
v_mov_b32 v12, s58
s_mov_b32 s58, 0xffff0000""".replace("s24", "s15"))
        for i in range(1, 8): a(f"v_add_u32 v{20+i}, 16384, v{19+i}")
        a("v_mov_b32 v104, 0x3f80\nv_mov_b32 v105, 1.0")
        a(f"s_and_b32 s56, s2, 7\ns_cselect_b32 s56, {comp.ev['l0'] + cfg.L1D}, {comp.ev['l0'] + cfg.L1D - cfg.L1E}")
        tick_to("s56")
        w.stamp("l1go")
        lp = w.lab("l1_"); a(f"{lp}:")
        if cfg.X1: a("s_or_b32 s59, s59, 1024\ns_and_b32 s60, s61, 1024\ns_lshl_b32 s60, s60, 6\ns_add_u32 s59, s59, s60")
        for i in range(4 if cfg.X1 else 8): a(f"buffer_load_dwordx4 {vr(64+4*i, 4)}, v{20+i}, s[{rWS_}:{rWS_+3}], s59 offen sc1")
        tick(NBAR)
        if 'g' in cfg.X5:
            l = w.lab("nb")
            a(f"{l}:\ns_getreg_b32 s60, hwreg(HW_REG_IB_STS, 0, 4)\ns_cmp_eq_u32 s60, 0\ns_cbranch_scc1 {l}x\ns_cmp_ge_u32 s31, {NBAR}\ns_cbranch_scc1 {l}x\ns_barrier\ns_add_u32 s31, s31, 1\ns_branch {l}\n{l}x:")
        A = 96
        for k in range(3): a(f"v_lshlrev_b32 v{A+k}, 16, v{64+k}")
        for k in range(4): a(f"v_and_b32 v{A+4+k}, s58, v{64+k}")
        a(f"v_mov_b32 v{A+3}, 0\nv_xor_b32 v3, v67, v12")
        for i in range(1, 4 if cfg.X1 else 8):
            R = 64 + 4*i
            a(f"v_xor_b32 v10, v{R+3}, v12\nv_or_b32 v3, v3, v10")
            if cfg.LD:
                a(f"v_and_b32 v{R+3}, s58, v{R+3}\nv_add_f32 v{A+7}, v{A+7}, v{R+3}")
                for k in range(3): a(f"v_dot2c_f32_bf16 v{A+k}, v{R+k}, v104\nv_dot2c_f32_bf16 v{A+4+k}, v{R+k}, v105")
                continue
            for k in range(3): a(f"v_lshlrev_b32 v{104+k}, 16, v{R+k}")
            for k in range(4): a(f"v_and_b32 v{R+k}, s58, v{R+k}")
            for k in range(3): a(f"v_add_f32 v{A+k}, v{A+k}, v{104+k}")
            for k in range(4): a(f"v_add_f32 v{A+4+k}, v{A+4+k}, v{R+k}")
            if i in ((), (3,), (3, 7))[cfg.L1T]: tick(NBAR)
        a("v_and_b32 v3, 0xffff, v3\nv_cmp_ne_u32 vcc, 0, v3")
        for k in range(0, 8, 2): a(f"v_permlane16_swap_b32 v{A+k}, v{A+k+1}")
        w.retry(lp)
        w.stamp("l1ok")
        for k in range(0, 8, 2): a(f"v_add_f32 v{A+k}, v{A+k}, v{A+k+1}")
        for k in (0, 4): a(f"v_permlane32_swap_b32 v{A+k}, v{A+k+2}")
        for k in (0, 4): a(f"v_add_f32 v{A+k}, v{A+k}, v{A+k+2}")
        for k in (0, 4): a(f"v_add_f32_dpp v{A+k}, v{A+k}, v{A+k} row_ror:8 row_mask:0xf bank_mask:0xf")
        a(f"""v_cvt_pk_bf16_f32 v64, v{A}, v{A+4}
v_cvt_pk_bf16_f32 v65, v{A}, v{A+4}
v_permlane16_swap_b32 v64, v65
v_mov_b32 v66, v64
v_mov_b32 v67, v65
v_permlane32_swap_b32 v64, v66
v_permlane32_swap_b32 v65, v67
v_and_or_b32 v67, v67, s58, v12
s_mov_b64 exec, 0xff
buffer_store_dwordx4 v[64:67], v13, s[{rWS_}:{rWS_+3}], s61 offen sc1
s_mov_b32 exec_lo, {hex((1 << cfg.NREP)-1)}
{f"buffer_store_byte v12, v14, s[{rWS_}:{rWS_+3}], s15 offen sc1" if cfg.L2N else ""}
s_mov_b64 exec, -1""")
        w.stamp("l1st")
        a(f"s_lshl_b32 s59, s{sRB}, 3\ns_add_u32 s59, s59, s{sJ}\ns_lshl_b32 s59, s59, 1\ns_add_u32 s59, s59, s30\ns_cmp_lg_u32 s59, 5\ns_cbranch_scc1 {fin2}\ns_mov_b32 s60, {NT2}")
        poll(0, NBAR, 2)
        a(f"{fin2}:")
    mp = cfg.MPE if E else cfg.MP; kS = max(comp.kN, NBAR - cfg.MPX)
    if mp >= 0:
        a(f"s_cmp_eq_u32 s30, 0\ns_cselect_b32 s59, {comp.ev['o'] + mp}, {comp.kN + 1 - cfg.G1}")
        tick_to("s59")
    else: tick_to(comp.kN + 1 - cfg.G1)
    a("s_waitcnt vmcnt(0)")
    gather_stage1(w, cfg)
    if mp >= 0:
        l = w.lab("mp")
        a(f"""s_cmp_lg_u32 s30, 0
s_cbranch_scc1 {l}x
s_cmp_eq_u32 s{sJ}, {cfg.JN}
s_cselect_b32 s56, 0, 0x7f
s_sub_u32 s52, s61, 4096
v_lshlrev_b32 v2, 7, v0
{l}:
s_cmp_ge_u32 s31, {kS}
s_cbranch_scc1 {l}x
s_barrier
s_add_u32 s31, s31, 1""")
        ready_mask(a)
        a(f"""s_cbranch_scc0 {l}n
s_ff1_i32_b32 s59, s57
s_bitset0_b32 s56, s59
s_lshl_b32 s59, s59, 13
s_add_u32 s59, s59, s52
buffer_load_dword v3, v2, s[36:39], s59 offen sc1
{l}n:
s_getreg_b32 s59, hwreg(HW_REG_IB_STS, 8, 4)
s_cmp_gt_u32 s59, 0
s_cbranch_scc1 {l}
s_cmp_ge_u32 s31, {kS - 1}
s_cbranch_scc1 {l}
s_load_dwordx16 s[8:23], s[48:49], 0 glc
s_branch {l}
{l}x:""")
    tick_to(kS + 1)
    gather_stage2(w, cfg); w.stamp("g0iss")
    tick_to(NBAR)
    to_gather(w, cfg, role)
    return w

def build(cfg, verbose=False):
    G = cfg.G; ns = 32 // G; ncg = 8 // ns; lg = lambda n: n.bit_length() - 1
    e = Wave("e", cfg); a = e.a; nr = 448 // G
    a("s_cmp_ge_u32 s2, 256\ns_cbranch_scc1 kernel_exit")
    if cfg.DLY:
        a(f"s_and_b32 s4, s2, 7\ns_cbranch_scc1 nodly\ns_memrealtime s[4:5]\ndly:\ns_memrealtime s[6:7]\ns_waitcnt lgkmcnt(0)\ns_sub_u32 s6, s6, s4\ns_cmp_lt_u32 s6, {cfg.DLY}\ns_cbranch_scc1 dly\nnodly:")
    a("s_load_dwordx16 s[8:23], s[0:1], 0\ns_load_dwordx4 s[24:27], s[0:1], 64\ns_load_dwordx2 s[28:29], s[0:1], 80")
    if cfg.prof or cfg.amp >= 0: a(f"s_memrealtime s[64:65]\ns_mem{'real' if cfg.prof == 2 else ''}time s[100:101]")
    pm = "s_mov_b32 s62, s100\n" if cfg.prof else ""
    disp = lambda n: f"{pm}s_cmp_gt_u32 s46, 1\ns_cbranch_scc1 {n}_M\ns_cmp_eq_u32 s46, 0\ns_cbranch_scc1 {n}_E\ns_branch {n}_N"
    assert cfg.A2 >= 0
    if cfg.EPF:
        a(f"""s_getpc_b64 s[36:37]
entry_pc:
s_and_b32 s37, s37, 0xffff
s_mov_b32 s38, role_E_end-entry_pc+{cfg.PADB}
s_mov_b32 s39, 0x20000
v_lshlrev_b32 v2, 12, v0
s_lshl_b32 s59, s2, 4
s_and_b32 s59, s59, 0xf80
buffer_load_dword v{T8+7}, v2, s[36:39], s59 offen""")
    decode = f"""s_and_b32 s{sJ}, s2, {ncg-1}
s_lshl_b32 s{sJ}, s{sJ}, {lg(ns)}
s_bfe_u32 s{sT}, s2, {hex((lg(ns) << 16) + 3)}
s_add_u32 s{sJ}, s{sJ}, s{sT}
s_lshl_b32 s{sJ}, s{sJ}, 2
s_lshr_b32 s{sJ}, {hex(cfg.JMAP)}, s{sJ}
s_and_b32 s{sJ}, s{sJ}, 7
s_sub_u32 s46, 7, s{sJ}
s_min_u32 s46, s46, s{sJ}
s_mov_b32 s{sSPIN}, {cfg.spin}"""
    a(f"""v_lshrrev_b32 v1, 6, v0
v_and_b32 v0, 63, v0
v_readfirstlane_b32 s3, v1
s_lshr_b32 s{sG}, s2, {3 + lg(ns)}
s_and_b32 s{sRB}, s2, {8 - ncg}
s_lshl_b32 s{sRB}, s{sRB}, {lg(G) - lg(ncg)}
s_add_u32 s{sRB}, s{sRB}, s{sG}
s_cmp_ge_u32 s3, 4
s_cbranch_scc1 helpers
v_lshrrev_b32 v4, 3, v0
v_and_b32 v5, 7, v0
v_mul_u32_u24 v6, 896, v4
v_lshl_add_u32 v6, v5, 4, v6
s_lshl_b32 s59, s{sRB}, 2
s_add_u32 s59, s59, s3
s_mul_i32 s59, s59, {16*896}
s_mov_b32 s34, 1835008
s_mov_b32 s35, 0x20000
s_waitcnt lgkmcnt(0)
s_mov_b32 s32, s{pX}
s_and_b32 s33, s{pX+1}, 0xffff""")
    if cfg.ampl == 'karg' or cfg.GK == 2: e.stamp('karg')
    for i in range(7): a(f"buffer_load_dwordx4 {vr(ACC[0] + 4*i, 4)}, v6, s[{rX}:{rX+3}], s59 offen offset:{i*128}")
    a(f"s_load_dword s{sNON}, s[{pWS}:{pWS+1}], 0\ns_add_u32 s60, s59, {8*896}\ns_lshr_b32 s{sR}, s3, 1\ns_and_b32 s{sC}, s3, 1\n{decode}")
    common_setup(e)
    if cfg.ampl == 'pre1' or cfg.GK == 2: e.stamp('pre1')
    for i in range(7): a(f"buffer_load_dwordx4 {vr(ACC[0] + 28 + 4*i, 4)}, v6, s[{rX}:{rX+3}], s60 offen offset:{i*128}")
    if cfg.BA: a("s_barrier")
    layernorm(e)
    a(disp("comp"))
    xl = [x for x in e.ins if x.op == 'buffer_load_ushort']
    a(f"""helpers:
{decode}
s_lshl_b32 s59, s3, 8
s_sub_u32 s59, s59, 1024
v_lshl_add_u32 v{vOF}, v0, 2, s59
v_mov_b32 v2, 0
ds_write_b32 v{vOF}, v2
s_waitcnt lgkmcnt(0)
s_load_dword s{sNON}, s[{pWS}:{pWS+1}], 0""")
    if cfg.ampl == 'skew':
        srd(e, 36, pDBG, 32); a(f"v_mov_b32 v2, s64\ns_sub_u32 s59, s2, {cfg.ampb}\ns_and_b32 s59, s59, 255\ns_lshl_b32 s59, s59, 2\nv_mov_b32 v3, s59\nbuffer_store_dword v2, v3, s[36:39], 0 offen sc1")
    srd(e, 32, pQKV, 1204224)
    a("s_cmp_ge_u32 s3, 6\ns_cbranch_scc1 protos")
    a(disp("load") + "\nprotos:")
    a(f"""s_cmp_eq_u32 s3, 6
s_cselect_b32 s36, s{pB1}, s{pB2}
s_cselect_b32 s37, s{pB1+1}, s{pB2+1}
s_cselect_b32 s38, 28, 7
s_lshl_b32 s38, s38, 7
s_and_b32 s37, s37, 0xffff
s_mov_b32 s39, 0x20000
v_lshlrev_b32 v2, 11, v0
s_lshl_b32 s59, s{sG}, 7
buffer_load_dword v38, v2, s[36:39], s59 offen""")
    a(disp("proto"))
    info = {}; texts = {}
    for role in 'MNE':
        c = Compute(role, cfg); c.ins = list(xl); npre = len(c.ins); c.stamps = list(e.stamps)
        c.build()
        st = []; m, o = c.finish(st); texts['c' + role] = (m[npre:], o); info['c' + role] = c.stamps
        if verbose:
            print(role, "compute instrs", len(m), "nops", len(st), sum(p for p, _ in st), "barriers", len(c.bars), "est", int(sum(b['t'] for b in c.bars)), file=sys.stderr)
            if verbose > 1: print(" ".join(f"{int(b['t'])}:{b['need']}/{i}" for b, i in zip(c.bars, c.iss)), file=sys.stderr)
        gw = build_gather(cfg, role); m, o = gw.finish(); texts['g' + role] = (m[gw.npre:], o)
        for k, wv in (('l', build_loader(role, cfg, c)), ('p', build_proto(role, cfg, c))):
            texts[k + role] = wv.finish(); assert len(wv.stamps) <= 8
            info[k + role] = wv.stamps + ['-']*(8-len(wv.stamps)) + gw.stamps[8:] if cfg.prof else []
    out = e.finish()[0]
    lab = dict(c='comp', l='load', p='proto', g='gather')
    def sect(k): return [".p2align 6", f"{lab[k[0]]}_{k[1]}:"] + texts[k][0] + texts[k][1]
    out += ["kernel_exit:", "s_endpgm"]
    for r in 'MNE': out += [".p2align 7", f"role_{r}_start:"] + sect('p'+r) + sect('l'+r) + sect('c'+r) + sect('g'+r) + [f"role_{r}_end:"]
    out += ["s_endpgm"]*(cfg.PADB//4)
    head = f"""; fused LayerNorm + linear attention + squared-ReLU FFN, one launch of 256 workgroups x 8 waves (generated by my own script)
; @launch grid=(256,1,1) block=(512,1,1) lds=163840
.amdgcn_target "amdgcn-amd-amdhsa--gfx950"
.text
.globl {NAME}
.p2align 8
.type {NAME},@function
{NAME}:
"""
    tail = f"""
.section .rodata,"a"
.p2align 6
.amdhsa_kernel {NAME}
  .amdhsa_next_free_vgpr 256
  .amdhsa_next_free_sgpr 102
  .amdhsa_accum_offset 256
  .amdhsa_group_segment_fixed_size 0
  .amdhsa_kernarg_size 88
  .amdhsa_user_sgpr_count 2
  .amdhsa_user_sgpr_kernarg_segment_ptr 1
  .amdhsa_system_sgpr_workgroup_id_x 1
.end_amdhsa_kernel
"""
    return head + "\n".join(out) + tail, info

if __name__ == "__main__":
    import json
    kw = {}
    for x in sys.argv[2:]:
        k, v = x.split("="); kw[k] = int(v, 0) if v.lstrip("-")[0].isdigit() else v
    t, info = build(Cfg(**kw), 2)
    open(sys.argv[1], "w").write(t)
    json.dump(dict(info=info, G=Cfg(**kw).G, JMAP=Cfg(**kw).JMAP, spin=Cfg(**kw).spin), open(sys.argv[1] + ".json", "w"))
```

```python
import sys, struct, re
sys.path.insert(0, 'work')
from dsl import *
NAME = "parallel_sum__linear_attn_block__dense_activation_squared_relu__prompt_kernel"
f2h = lambda f: hex(struct.unpack("<I", struct.pack("<f", f))[0])
OOB = 0x80000000
STG, HALF, RING, NSLOT = 4096, 30720, 65536, 24
HOFF, OOFF = 0, 16384
KVP, KVF, NT0, XP, PROF, WSZ = 1 << 20, 5 << 20, (5 << 20) + 65536, 6 << 20, 32 << 20, 64 << 20
MSG = 2048
NT2 = NT0
NT1 = NT0 + 16384
XFL = 22 << 20
KVB = 8192
sNON = 14
sJ, sRB, sG, sT = 4, 5, 6, 7
pX, pQKV, pWO, pW1, pB1, pW2, pB2, pOUT, pDBG, pWS = 8, 10, 12, 16, 18, 20, 22, 24, 26, 28
sSPIN = 63
SPINMAX = 1 << 12

class Cfg:
    G = 16; JN = 3; BASE_N = 3; SP = 5; TAILE = 4; G1 = 1; MP = 2; MPE = 0; DTE = 800; XM = 0; XH = 4; HOLD = 0; HOLD0 = 1; FAST = 5; DTN = 0; GM = 1; JMAP = 0x74652130; W1A = 4; PK = 0; PL = 4; PLD = 1; PHD = 1; QT = 0; WOA = 0; WOT = 8; OSC = ''; FP = 1; KF = 3; TLB = 0; NPRE = 30; BA = 1; EPF = 1; X5 = ''; X16 = ''; PADB = 1024; GK = 0; A2E = 3; LB = 1; MPX = 4; LAG = 3; FF = 4; LP = 2; X1 = 0; X3 = 0; X4 = 0; PKD = 0; HWS = 11; NREP = 8; STM = 850; STE = 650; WOG = 1; FREE = 0; RCAP = 7; TAILM = 0; XS = 1; PE2 = 1; INITE = 11; L2T = 2; PSL = 0; XROT = 1; PRC = 0; SB = 0; PRL = 0; dbgst = 0; noL1 = 0; spin = 30000; D = 4; NB = 5; CH = 4; LA = 7; FILL = 2; prof = 0
    pf = 1; amp = -1; ampk = 10; ampl = ''; ampx = -1; ampb = 0; DLY = 0; L1E = 0; L1M = 2; L1DE = 21; L1D = 6; L1T = 0; PLN = 2; LD = 1; OP = 1; L1N = 0; A2 = 3; L2N = 0; TOUCH = 1; GT = 73; INIT = 11; W2 = 1; QFILL = 4
    def __init__(self, **kw):
        for k, v in kw.items():
            assert hasattr(Cfg, k), k
            setattr(self, k, v)

def srd(w, d, p, nbytes, off=None):
    if off is None:
        w.a(f"s_mov_b32 s{d}, s{p}\ns_and_b32 s{d+1}, s{p+1}, 0xffff\ns_mov_b32 s{d+2}, {nbytes}")
    else:
        w.a(f"s_add_u32 s{d}, s{p}, s{off}\ns_addc_u32 s{d+1}, s{p+1}, 0\ns_and_b32 s{d+1}, s{d+1}, 0xffff\ns_sub_u32 s{d+2}, {nbytes}, s{off}")
    w.a(f"s_mov_b32 s{d+3}, 0x20000")

class Wave(W):
    def __init__(self, name, cfg):
        super().__init__(name); self.cfg = cfg; self.stamps = []
    def stamp(self, label):
        if self.cfg.amp >= 0 and label == self.cfg.ampl: self.a("s_memrealtime s[72:73]"); self.amped = True
        if self.cfg.prof in (1, 2) and len(self.stamps) < 17 and label not in ("hw", "setup") and not (self.cfg.GK and label in ("gin", "gst")):
            k = 66 + 2*len(self.stamps); self.stamps.append(label); self.a(f"s_mem{'real' if self.cfg.prof == 2 else ''}time s[{k}:{k+1}]")
    def retry(self, label):
        x = self.lab("giveup")
        self.a(f"s_cbranch_vccz {x}\ns_sub_u32 s{sSPIN}, s{sSPIN}, 1\ns_cmp_gt_i32 s{sSPIN}, 0\ns_cbranch_scc1 {label}\n{x}:")
    def ampcalc(self):
        if self.cfg.ampl == 'retry': return f"s_sub_u32 s68, {self.cfg.spin}, s{sSPIN}\ns_mul_i32 s68, s68, 100"
        if self.cfg.ampl != 'skew': return "s_sub_u32 s68, s72, s64"
        return "s_load_dwordx8 s[72:79], s[26:27], 0 glc\ns_waitcnt lgkmcnt(0)\ns_mov_b32 s68, s72\ns_mov_b32 s69, s72\n" + "\n".join(f"s_max_u32 s68, s68, s{72+i}\ns_min_u32 s69, s69, s{72+i}" for i in range(1, 8)) + f"\ns_sub_u32 s68, s{68 if self.cfg.ampx < 0 else 72 + self.cfg.ampx}, s69\ns_add_u32 s68, s68, 5"
    def wsum(self, v):
        L = [f"v_add_u32_dpp v{v}, v{v}, v{v} row_ror:{k} row_mask:0xf bank_mask:0xf" for k in (8, 4, 2, 1)]
        L += [f"v_add_u32_dpp v{v}, v{v}, v{v} row_bcast:15 row_mask:0xa bank_mask:0xf", f"v_add_u32_dpp v{v}, v{v}, v{v} row_bcast:31 row_mask:0xc bank_mask:0xf"]
        return L
    def end(self):
        if self.cfg.prof:
            self.a("s_memrealtime s[100:101]\ns_waitcnt vmcnt(0) lgkmcnt(0)")
            srd(self, 32, pWS, WSZ)
            self.a(f"s_lshl_b32 s{sT}, s2, 3\ns_add_u32 s{sT}, s{sT}, s3\ns_lshl_b32 s{sT}, s{sT}, 7\ns_add_u32 s{sT}, s{sT}, {PROF}")
            self.a("v_mov_b32 v1, 0\ns_mov_b64 exec, 1")
            vals = [64, 100, 62, sSPIN] + [66 + 2*i for i in range(len(self.stamps))] if self.cfg.prof < 3 else [64, 100]
            for i, s in enumerate(vals):
                self.a(f"v_mov_b32 v2, s{s}\nbuffer_store_dword v2, v1, s[32:35], s{sT} offen offset:{4*i}")
        if self.cfg.amp >= 0 and (getattr(self, 'amped', False) or (self.cfg.ampl in ('karg', 'pre1', 'x0', 'x1', 'skew', 'retry') and self.name[0] == 'c') or (self.cfg.ampl in ('l1go', 'l1ok', 'l1st') and self.name == 'gM')):
            x = self.lab("amp")
            self.a(f"""s_waitcnt vmcnt(0)
s_cmp_lg_u32 s2, {self.cfg.amp}
s_cbranch_scc1 {x}e
s_cmp_lt_u32 s3, {6 if self.cfg.ampl[:2] == 'l1' else 0}
s_cbranch_scc1 {x}e
s_memrealtime s[66:67]
s_waitcnt lgkmcnt(0)
{self.ampcalc()}
s_min_u32 s68, s68, 20000
s_mul_i32 s68, s68, {self.cfg.ampk}
{x}:
s_memrealtime s[70:71]
s_waitcnt lgkmcnt(0)
s_sub_u32 s69, s70, s66
s_cmp_lt_u32 s69, s68
s_cbranch_scc1 {x}
{x}e:""")
        self.a("s_endpgm")

def chunk_order(w, cfg, dst, mul, E):
    w.a(f"s_add_u32 s{sT}, s{sJ}, 1\ns_cmp_gt_u32 s{sJ}, {cfg.JN}\ns_cselect_b32 s{sT}, s{sJ}, s{sT}")
    w.a(f"s_cmp_eq_u32 s{sJ}, {cfg.JN}\ns_cselect_b32 s{sT}, {cfg.BASE_N}, s{sT}")
    if E:
        assert 1 <= cfg.JN <= 6
        w.a(f"s_cmp_eq_u32 s{sJ}, 0")
        for t in range(7): w.a(f"s_mov_b32 s{dst+t}, {t*mul}\ns_cselect_b32 s{dst+t}, {(6-t)*mul}, s{dst+t}")
        return
    for t in range(7):
        w.a(f"s_cmp_ge_u32 s{sT}, 7\ns_cselect_b32 s{sT}, 0, s{sT}\ns_mul_i32 s{dst+t}, s{sT}, {mul}")
        if t < 6: w.a(f"s_add_u32 s{sT}, s{sT}, 1")

def chunk_seq(cfg, j):
    if j == 0: return [6-t for t in range(7)]
    if j == 7: return list(range(7))
    b = cfg.BASE_N if j == cfg.JN else (j if j > cfg.JN else j+1)
    return [(b+t) % 7 for t in range(7)]
def slot_table(cfg):
    pos = [[7]*7 for _ in range(8)]
    for c in range(7):
        arr = []
        for j in range(8):
            t = chunk_seq(cfg, j).index(c)
            if t == 6 and j != cfg.JN: continue
            arr.append(((cfg.DTE + cfg.STE*(t+1)) if j in (0, 7) else cfg.STM*max(t, 0.5) + j + (cfg.DTN if j in (1, 6) else 0), j, t))
        assert len(arr) == 7
        for k, (_, j, t) in enumerate(sorted(arr)): pos[j][t] = k
    return pos

def ffn_line0(w, d):
    w.a(f"s_lshl_b32 s{d}, s{sJ}, 2\ns_sub_u32 s{d}, s{d}, 2\ns_max_i32 s{d}, s{d}, 0")

def make_groups(role):
    g = []
    if role != 'E':
        for m in 'kv': g += [(m, kb, l) for kb in range(14) for l in range(2)]
        for t in range(4): g += [('w1', kb, t) for kb in range(14)]
        g += [('w2', kb, 0) for kb in range(6)] + [('w2', kb, 1) for kb in range(6)]
        g += [('w2', kb, 0) for kb in (6, 7)] + [('w2', kb, 1) for kb in (6, 7)]
        for t in range(2, 7): g += [('w2', kb, t) for kb in range(8)]
    else:
        for t in range(2): g += [('w1', kb, t) for kb in range(14)]
        for kb in range(14): g += [('q', kb, l) for l in range(4)]
        for kb in range(4): g += [('w2', kb, t) for t in range(7)]
        for t in range(7): g += [('wo', kb, t) for kb in range(7)]
    return g

vLANE, vT0, vT1, vT2 = 0, 1, 2, 3
vBA, vBB = 4, 6
vXW, vXR, vFR, vFW = 8, 9, 10, 11
vKVA, vHA, vOA, vPA = 12, 14, 16, 18
vOWA, vOWB = 18, 19
vMSG, vFOFF, vCK, vNON, vXP, vEM, vTAG, vONES = 20, 21, 22, 23, 24, 25, 26, 27
vQA = 28; vB = 36; T8 = 56
XF = 64; ACC = [176 + 16*i for i in range(5)]
sR, sC, sMSG, sOWN, sL2E, sEPS, sMASK = 30, 31, 48, 55, 56, 57, 58
rX, rWS, rAUX = 32, 36, 40

class Job:
    def __init__(s, acc, act, g, sub, base, wfirst, first=False, span=1, pre=None, fill=None):
        s.acc, s.act, s.g, s.sub, s.base, s.wfirst, s.first, s.span, s.pre, s.fill = acc, act, g, sub, base, wfirst, first, span, pre or [], fill
class Code:
    def __init__(s, fn, fence=True): s.fn, s.fence = fn, fence
class Fill:
    def __init__(s, items, delay=2): s.items, s.delay = items, delay
class Flush: pass
SKIP = "SKIP"

def est_time(ins):
    t = 0; mf = 0; st = 0
    for x in ins:
        if x.kind in ('label', 'comment'): continue
        if x.kind == 'mfma': t = max(t, mf); mf = t + 34; t += 10
        elif x.kind == 'ds_w': t += 70 if '128' in x.op else 35
        elif x.kind == 'vm_s': t += 12; st += 31*4 if x.wide else 12
        elif x.kind == 'vm_l': t += 12; st += 18*4
        elif x.kind == 'ds_r': t += 7
        elif x.note == 'trans': t += 8
        else: t += 4.6
    return t, st

def tile_addr(w, dst, col):
    w.a(f"""v_lshrrev_b32 v{vT0}, 6, v{col}
v_lshl_add_u32 v{dst}, v{vT0}, 12, v{vT1}
v_bfe_u32 v{vT0}, v{col}, 5, 1
v_lshl_add_u32 v{dst}, v{vT0}, 9, v{dst}
v_and_b32 v{vT0}, 31, v{col}
v_lshl_add_u32 v{dst}, v{vT0}, 1, v{dst}
v_add_u32 v{dst+1}, 0x10000, v{dst}""")
def head_addr(w, dst):
    c = T8 + 4
    w.a(f"""v_add_u32 v{c}, s45, v{vT2}
v_cmp_le_u32 vcc, s44, v{c}
v_subrev_u32 v{c+1}, 32, v{c}
v_cndmask_b32 v{c}, v{c}, v{c+1}, vcc""")
    tile_addr(w, dst, c)
def common_setup(w):
    a = w.a; c = T8 + 4
    a(f"""s_mul_i32 s59, s{sR}, {HALF}
s_add_u32 s59, s59, {STG}
s_lshl1_add_u32 s61, s{sC}, s47
s_lshl_b32 s61, s61, 7
s_add_u32 s61, s61, s59
s_lshl_b32 s47, s47, 8
s_sub_u32 s47, 128, s47
v_mul_u32_u24 v{vXW}, 528, v5
v_lshl_add_u32 v{vXW}, v4, 4, v{vXW}
v_add_u32 v{vXW}, s61, v{vXW}
v_mov_b32 v{vONES}, 0x3f803f80
v_lshlrev_b32 v{vMSG}, 4, v{vLANE}
v_add_u32 v{vFR}, s59, v{vMSG}
s_lshl_b32 s61, s{sC}, 11
v_add_u32 v{vFW}, s61, v{vFR}
v_lshrrev_b32 v{vT0}, 5, v{vLANE}
v_lshl_add_u32 v{vXR}, v{vT0}, 4, v{vFR}
v_lshlrev_b32 v{vT1}, 10, v{vT0}
v_bfe_u32 v{vT0}, v{vLANE}, 2, 2
v_lshl_add_u32 v{vT1}, v{vT0}, 6, v{vT1}
v_add_u32 v{vT1}, {RING}, v{vT1}
v_bfe_u32 v{vT0}, v{vLANE}, 4, 1
v_and_b32 v{vT2}, 3, v{vLANE}
v_lshl_add_u32 v{vT2}, v{vT0}, 2, v{vT2}
v_lshlrev_b32 v{vT2}, 2, v{vT2}
s_lshl_b32 s59, s{sJ}, 2
s_lshr_b32 s45, 0x42345600, s59
s_and_b32 s45, s45, 15
s_lshl_b32 s45, s45, 3
s_min_u32 s59, s46, 2
s_lshr_b32 s59, 112, s59
s_mul_i32 s59, s59, s{sC}
s_add_u32 s45, s45, s59
s_cmp_eq_u32 s46, 0
s_cselect_b32 s44, 2, 1
s_lshl_b32 s44, s44, 7""")
    head_addr(w, vQA); a("s_add_u32 s45, s45, 28"); head_addr(w, vQA + 2)
    a(f"""s_lshl_b32 s59, s{sC}, 9
v_and_b32 v{c}, 2, v{vLANE}
v_lshl_add_u32 v{c}, v{c}, 2, v{vT1}
v_add_u32 v{c}, s59, v{c}
v_and_b32 v{c+1}, 1, v{vLANE}
v_and_b32 v{vT0}, 16, v{vLANE}
v_lshl_add_u32 v{vHA}, v{c+1}, 4, v{c}
v_lshl_add_u32 v{vHA}, v{vT0}, 1, v{vHA}
v_add_u32 v{vHA+1}, 0x10000, v{vHA}
v_lshl_add_u32 v{vOA}, v{c+1}, 5, v{c}
v_add_u32 v{vOA}, v{vT0}, v{vOA}
v_add_u32 v{vOA+1}, 0x10000, v{vOA}""")
    ffn_line0(w, 61); c = vB
    a(f"s_lshl_b32 s59, s61, 7\ns_lshl_b32 s61, s{sC}, 6\ns_add_u32 s59, s59, s61"); srd(w, rAUX, pB1, 3584, 59)
    a(f"""v_and_b32 v{c}, 19, v{vLANE}
v_bfe_u32 v{c+1}, v{vLANE}, 2, 1
v_lshl_add_u32 v{c}, v{c+1}, 3, v{c}
v_bfe_u32 v{c+1}, v{vLANE}, 3, 1
v_lshl_add_u32 v{c}, v{c+1}, 2, v{c}
v_lshrrev_b32 v{c+1}, 5, v{vLANE}
v_lshlrev_b32 v{c+1}, 31, v{c+1}
v_lshl_add_u32 v{c}, v{c}, 1, v{c+1}""")
def layernorm(w):
    a = w.a; T = ACC[0] + 56
    a(f"s_mov_b32 s{sMASK}, 0xffff0000")
    for grp in range(2):
        X = ACC[0] + 28*grp; s1, s2 = T, T+1
        a(f"v_mov_b32 v{s1}, 0\nv_mov_b32 v{s2}, 0")
        for i in range(28): a(f"v_dot2c_f32_bf16 v{s1}, v{X+i}, v{vONES}\nv_dot2c_f32_bf16 v{s2}, v{X+i}, v{X+i}")
        w.stamp(f"x{grp}")
        if grp == 1:
            a(f"v_add_u32 v{vXW}, s47, v{vXW}")
            for t in range(4): a(f"buffer_load_ushort v{T8+t}, v{vB}, s[{rAUX}:{rAUX+3}], 0 offen offset:{t*128}")
        else:
            a(f"s_waitcnt lgkmcnt(0)\ns_add_u32 s{sNON}, s{sNON}, 1\nv_mov_b32 v{vNON}, s{sNON}\nv_and_b32 v{vTAG}, 0xffff, v{vNON}")
        for m in ("quad_perm:[1,0,3,2]", "quad_perm:[2,3,0,1]", "row_half_mirror"):
            for s in (s1, s2): a(f"v_add_f32_dpp v{s}, v{s}, v{s} {m} row_mask:0xf bank_mask:0xf")
        a(f"""v_mul_f32 v{s1}, {f2h(1/448)}, v{s1}
v_mul_f32 v{s2}, {f2h(1/448)}, v{s2}
v_fma_f32 v{s2}, -v{s1}, v{s1}, v{s2}
v_max_f32 v{s2}, 0, v{s2}
v_add_f32 v{s2}, {f2h(1e-5)}, v{s2}
v_rsq_f32 v{T+2}, v{s2}
v_mul_f32 v{T+3}, -v{s1}, v{T+2}""")
        for i0 in range(0, 28, 4):
            t = T + 4
            for k in range(4 if 'd' not in w.cfg.X5 or i0 == 0 or grp else 0): a(f"v_lshlrev_b32 v{t+2*k}, 16, v{X+i0+k}\nv_and_b32 v{t+2*k+1}, s{sMASK}, v{X+i0+k}")
            for k in range(4 if 'd' not in w.cfg.X5 or i0 == 0 or grp else 0): a(f"v_pk_fma_f32 {vr(t+2*k,2)}, {vr(t+2*k,2)}, {vr(T+2,2)}, {vr(T+2,2)} op_sel:[0,0,1] op_sel_hi:[1,0,1]")
            for k in range(4): a(f"v_cvt_pk_bf16_f32 v{X+i0+k}, v{t+2*k}, v{t+2*k+1}")
            a(f"ds_write_b128 v{vXW}, {vr(X+i0, 4)} offset:{(i0//4)*4224}")
            if grp == 1 and i0//4 == w.cfg.A2: a("s_barrier")

class Compute(Wave):
    def __init__(self, role, cfg):
        super().__init__("c" + role, cfg); self.role = role; self.groups = make_groups(role)
        self.gi = {g: i for i, g in enumerate(self.groups)}
        self.bars = []; self.ev = {}; self.done = -1; self.acq = 0
        extra = {}
        if role == 'E' and cfg.XS:
            g0 = self.gi[('wo', 0, 0)] + NSLOT
            for i in range(8): extra[g0 + i] = (STG + (i & 1)*HALF + (i >> 1)*4096, "kvb" if i < 4 else "o")
        if role != 'E':
            g0 = self.gi[('w1', 0, 0)] + 20
            for i in range(cfg.XM): extra[g0 + i] = (STG + (i & 1)*HALF + OOFF + (i >> 1)*4096, "xdead")
            g1 = self.gi[('w2', 0, 3)]
            for i in range(cfg.XH): extra[g1 + i] = (STG + (i >> 1)*HALF + OOFF + (i & 1)*4096, "o")
        self.baseC = {vHA: vKVA, vOA: vKVA if role == 'E' else vQA + 4, vPA: vQA + 5}
        self.addr = []; self.avail = []; main = []
        for g in range(len(self.groups)):
            if g in extra: self.addr.append(extra[g][0]); self.avail.append(extra[g][1])
            else:
                self.addr.append(RING + (len(main) % NSLOT)*4096); self.avail.append(main[-NSLOT] if len(main) >= NSLOT else -1); main.append(g)
    def barrier(self, need=None, name=None, long=False):
        if need is not None: self.acq = need
        n = 0
        while n < len(self.groups) and self.lastuse[n] <= self.done: n += 1
        self.bars.append(dict(pos=len(self.ins), need=self.acq, nrel=n, long=long))
        self.a("s_barrier")
        if name: self.ev[name] = len(self.bars)
    def emit_fill(self, it):
        if callable(it): it()
        elif it != SKIP: self.a(it)
    def run(self, items):
        cfg = self.cfg; jobs = [x for x in items if isinstance(x, Job)]; N = len(self.groups)
        for n, j in enumerate(jobs): j.n = n
        self.lastuse = {}
        for j in jobs:
            for g in range(j.g, j.g + j.span): self.lastuse[g] = j.n
        lim = {}; cur = len(jobs); nxt = len(jobs)
        for x in reversed(items):
            if isinstance(x, Job): lim[x.n] = cur; nxt = x.n
            elif isinstance(x, Code) and x.fence: cur = nxt
        st = dict(rd=0); fq = []
        self.nextneed = lambda: min(N, max(self.acq, jobs[st['rd']].g + jobs[st['rd']].span - 1 + cfg.CH)) if st['rd'] < len(jobs) else N
        def reads(n):
            j = jobs[n]
            if j.g + j.span > self.acq:
                nd = max(j.g + j.span, self.acq + cfg.CH)
                self.barrier(N if nd > N - (cfg.TAILE if self.role == 'E' else cfg.TAILM) else nd)
            for p in j.pre: self.emit_fill(p)
            ad = self.addr[j.g]; base = (self.baseC.get(j.base), j.base, j.base + 1)[ad >> 16]; imm = (ad & 0xffff) + j.sub*2048
            b = vB + 4*(n % cfg.NB)
            self.a(f"ds_read_b64_tr_b16 {vr(b, 2)}, v{base} offset:{imm}\nds_read_b64_tr_b16 {vr(b+2, 2)}, v{base} offset:{imm+256}")
            st['rd'] = n + 1
        def operands(j): return vset(vB + 4*(j.n % cfg.NB), 4) | vset(j.act, 4)
        for x in items:
            if isinstance(x, Job):
                if st['rd'] <= x.n:
                    while st['rd'] < min(x.n + cfg.D, lim[x.n]): reads(st['rd'])
                b = vr(vB + 4*(x.n % cfg.NB), 4); act = vr(x.act, 4); acc = vr(x.acc, 16)
                A, B = (b, act) if x.wfirst else (act, b)
                x16 = self.role in cfg.X16 and not x.first
                m16 = lambda q: f"v_mfma_f32_16x16x32_bf16 {vr(x.acc + 8*x.sub + 4*q, 4)}, {(A, B)[q]}, {(B, A)[q]}, {vr(x.acc + 8*x.sub + 4*q, 4)}"
                self.a(m16(0) if x16 else f"v_mfma_f32_32x32x16_bf16 {acc}, {A}, {B}, {'0' if x.first else acc}")
                self.done = x.n
                if x16 and 'b' in cfg.X16: self.a(m16(1))
                if st['rd'] < min(x.n + 1 + cfg.D, lim[x.n]): reads(st['rd'])
                if x16 and 'b' not in cfg.X16: self.a(m16(1))
                if cfg.W2:
                    if x.n % 2 == 0:
                        s = set()
                        for k in (x.n+1, x.n+2):
                            if k < st['rd']: s |= operands(jobs[k])
                        self.need(s)
                elif x.n + 1 < st['rd']: self.need(operands(jobs[x.n + 1]))
                bud = x.fill or cfg.FILL
                while fq and bud > 0 and fq[0][0] <= x.n:
                    it = fq.pop(0)[1]; self.emit_fill(it)
                    if it == SKIP: break
                    bud -= 2 if (isinstance(it, str) and it.startswith(TRANS)) else 1
            elif isinstance(x, Fill): fq += [(self.done + x.delay, it) for it in x.items]
            elif isinstance(x, Flush):
                while fq: self.emit_fill(fq.pop(0)[1])
            else: x.fn()
        assert not fq
    def plan_loader(self):
        cfg = self.cfg; N = len(self.groups); iss = []; cur = 0; credit = 0.0
        for k, b in enumerate(self.bars):
            free = cur
            while free < N and (self.ev[self.avail[free]] <= k if isinstance(self.avail[free], str) else self.avail[free] < (self.bars[k-1]['nrel'] if k else 0)): free += 1
            t, st = est_time(self.ins[(self.bars[k-1]['pos'] if k else 0):b['pos']])
            b['t'] = t
            if self.role == 'E' and cfg.WOG and k >= self.ev['o']: st = 0
            credit += (t - st)/cfg.GT
            want = cur + int(credit) if not b['long'] else N
            if k == 0: want = cfg.INITE if self.role == 'E' else cfg.INIT
            la = cfg.LA
            if 'l0' in self.ev and 0 <= k - (self.ev['l0'] + cfg.L1D + cfg.HOLD0) < cfg.HOLD: want = cur; la = cfg.CH; credit = 0
            new = min(max(want, b['need'] + la, cur), free, N)
            assert new >= b['need'], (self.role, k, new, b)
            credit = min(max(credit - (new - cur), 0.0), 0.99)
            cur = new; iss.append(cur)
        self.iss = iss; self.kN = iss.index(N)

    def lazy_setup(self):
        w = W("tmp"); a = w.a; cfg = self.cfg; E = self.role == 'E'
        if E:
            for hh in (2, 3): a("s_add_u32 s45, s45, 28"); head_addr(w, vQA + 2*hh)
            a(f"""v_lshrrev_b32 v{vT0}, 5, v{vLANE}
s_mul_i32 s60, s{sC}, 7168
v_mul_u32_u24 v{vOWB}, 24, v{vT0}
v_sub_u32 v{vOWB}, v{vXR}, v{vOWB}
v_add_u32 v{vOWB}, s60, v{vOWB}
v_mul_u32_u24 v{vOWA}, 496, v{vT0}
v_sub_u32 v{vOWA}, v{vOWB}, v{vOWA}""")
        else:
            a(f"s_lshl_b32 s59, s{sC}, 12\ns_sub_u32 s60, 4096, s59")
            for k in range(2): a(f"v_add_u32 v{vPA+k}, s60, v{vOA+k}\nv_add_u32 v{vOA+k}, s59, v{vOA+k}")
            a(f"""s_lshr_b32 s60, s60, 1
v_add_u32 v{vFR}, s60, v{vFR}
v_and_b32 v{vEM}, 31, v{vLANE}
v_subrev_u32 v{vEM}, 28, v{vEM}
v_ashrrev_i32 v{vEM}, 31, v{vEM}""")
        a(f"s_mov_b32 s{sL2E}, 0x3fb8aa3b\ns_mov_b32 s{sEPS}, 0x358637bd")
        srd(w, rWS, pWS, WSZ)
        js = {'E': (0, 7), 'N': (1, 6), 'M': (2, 3, 4, 5)}[self.role]; pos = slot_table(cfg)
        tab = lambda j, m: sum((c*m + p) << (8*t) for t, (c, p) in enumerate(zip(chunk_seq(cfg, j), pos[j])))
        words = lambda j: [tab(j, 8) & 0xffffffff, tab(j, 8) >> 32, tab(j, 16) & 0xffffffff, tab(j, 16) >> 32]
        for k, x in enumerate(words(js[0])): a(f"s_mov_b32 s{40+k}, {x}")
        for jj in js[1:]:
            a(f"s_cmp_eq_u32 s{sJ}, {jj}")
            for k, x in enumerate(words(jj)): a(f"s_cselect_b32 s{40+k}, {x}, s{40+k}")
        for t in range(7):
            a(f"s_bfe_u32 s{sMSG+t}, s{40 + (t >> 2)}, {hex(0x80000 + 8*(t & 3))}\ns_lshl_b32 s{sMSG+t}, s{sMSG+t}, 13")
            a(f"s_bfe_u32 s{8+t}, s{42 + (t >> 2)}, {hex(0x80000 + 8*(t & 3))}\ns_lshl_b32 s{8+t}, s{8+t}, 3")
        a(f"""s_mul_i32 s59, s{sRB}, {7*32*MSG}
s_lshl_b32 s60, s3, 11
s_add_u32 s59, s59, s60
s_add_u32 s59, s59, {XP}
v_add_u32 v{vXP}, s59, v{vMSG}
s_mul_i32 s59, s{sRB}, 896
s_lshl_b32 s60, s3, 15
s_add_u32 s59, s59, s60
s_add_u32 s59, s59, {XFL}
v_subrev_u32 v{vFOFF}, 63, v{vLANE}
v_and_b32 v{vFOFF}, {OOB}, v{vFOFF}
v_or_b32 v{vFOFF}, s59, v{vFOFF}""")
        if self.role == 'M': a(f"s_lshl_b32 s59, s{sJ}, 1\ns_add_u32 s59, s59, s{sC}")
        if self.role == 'N': a(f"s_and_b32 s59, s{sJ}, 6\ns_add_u32 s59, s59, s{sC}\ns_lshl_b32 s59, s59, 1")
        if not E: a(f"""s_lshl_b32 s59, s59, 5
s_add_u32 s59, s59, s{sRB}
s_lshl_b32 s59, s59, 1
s_add_u32 s59, s59, s{sR}
s_lshl_b32 s59, s59, 11
s_add_u32 s59, s59, {KVP}
s_add_u32 s60, s59, 131072""")
        return [x.text for x in w.ins]
    def bias_init(self, acc, t):
        one = "1.0" if t & 1 else "0x3f80"
        return [f"v_mov_b32 v{vBB + (t >> 1)}, {one}", f"v_mov_b32 v{vBB + 1 - (t >> 1)}, 0", SKIP,
                f"v_mfma_f32_32x32x8bf16_1k {vr(acc, 16)}, {vr(vBA, 2)}, {vr(vBB, 2)}, 0"]
    def phi(self, acc, dst, tmp):
        L = []
        for i0 in range(0, 16, 4):
            r = [acc + i0 + k for k in range(4)]
            L += [f"v_mul_f32 v{tmp+k}, s{sL2E}, v{r[k]}" for k in range(4)]
            for k in range(4): L += [f"v_exp_f32 v{tmp+k}, v{tmp+k} clamp", f"v_max_f32 v{r[k]}, s{sEPS}, v{r[k]}"]
            L += [f"v_add_f32 v{r[k]}, v{r[k]}, v{tmp+k}" for k in range(4)]
            L += [f"v_cvt_pk_bf16_f32 v{dst + i0//2 + k}, v{r[2*k]}, v{r[2*k+1]}" for k in range(2)]
        return L
    def pack(self, acc, dst=None):
        dst = acc if dst is None else dst
        return [f"v_cvt_pk_bf16_f32 v{dst+i}, v{acc+2*i}, v{acc+2*i+1}" for i in range(8)]
    def h_epi(self, acc, dst):
        L = []
        for h in range(2):
            L += [f"v_mul_f32 v{acc+i}, v{acc+i}, abs(v{acc+i})" for i in range(8*h, 8*h+8)]
            L += self.pack(acc, dst)[4*h:4*h+4]
            L += [f"v_pk_max_i16 v{dst+i}, v{dst+i}, 0" for i in range(4*h, 4*h+4)]
        return L
    def h_write(self, src, t):
        for h in range(2): self.a(f"ds_write_b128 v{vFW}, {vr(src+4*h, 4)} offset:{HOFF + (4*t+h)*1024}")
    def send(self, acc, t):
        P = self.pack(acc); L = []
        st = lambda h: f"buffer_store_dwordx4 {vr(acc+4*h, 4)}, v{vXP}, s[{rWS}:{rWS+3}], s{sMSG+t} offen offset:{1024*h} sc1"
        L += P[:4] + [st(0)] + P[4:]
        L += [f"v_add3_u32 v{vCK}, v{acc}, v{acc+1}, v{acc+2}", f"v_add3_u32 v{vT0}, v{acc+3}, v{acc+4}, v{acc+5}",
              f"v_add3_u32 v{vCK}, v{vCK}, v{acc+6}, v{acc+7}", f"v_add_u32 v{vCK}, v{vCK}, v{vT0}"]
        ws = self.wsum(vCK); sp = self.cfg.SP if t < 5 else 0
        for k, x in enumerate(ws):
            if k == sp: L.append(st(1))
            L += [SKIP, x] if t < self.cfg.FAST or k % 2 == 0 else [x]
        if sp >= 6: L.append(st(1))
        L += [f"v_add_u32 v{vCK}, v{vCK}, v{vNON}",
              f"buffer_store_dwordx2 {vr(vCK, 2)}, v{vFOFF}, s[{rWS}:{rWS+3}], s{8+t} offen sc1"]
        if t == 5 and self.cfg.LB: L.append(lambda: self.barrier(len(self.groups)))
        if 'c' in self.cfg.X5: L = [x for x in L if callable(x) or not (x.startswith('v_add') or x == SKIP)]
        d = self.cfg.dbgst
        if d & 1: L = [x for x in L if not x.startswith("buffer_store_dwordx4")]
        if d & 2: L = [x for x in L if not x.startswith("buffer_store_dwordx2")]
        if d & 4: L = [x.replace(" sc1", "") for x in L]
        if d & 8: L = [x for x in L if x.startswith("buffer") or x == SKIP]
        return L
    def kv_epi(self, a):
        K, Dd = ACC[2*a], ACC[2*a+1]; V = K + 8
        L = self.phi(K, K, T8) + self.pack(Dd, V) + [f"v_bfi_b32 v{V+i}, v{vEM}, v{V+i}, v{vONES}" for i in range(8)]
        L += [f"v_mfma_f32_32x32x16_bf16 {vr(Dd,16)}, {vr(K+4*kk,4)}, {vr(V+4*kk,4)}, {vr(Dd,16) if kk else 0}" for kk in range(2)]
        L2 = self.pack(Dd) + [f"v_lshl_or_b32 v{Dd+8}, v{Dd+3}, 16, v{vTAG}", SKIP, f"v_permlane32_swap_b32 v{Dd+6}, v{Dd+7}",
                              f"v_and_or_b32 v{Dd+7}, v{Dd+3}, s{sMASK}, v{vTAG}", f"v_mov_b32 v{Dd+3}, v{Dd+8}"]
        L2 += [f"buffer_store_dwordx4 {vr(Dd+4*i, 4)}, v{vMSG}, s[{rWS}:{rWS+3}], s{59+a} offen offset:{i*1024} sc1" for i in ((1,) if self.cfg.X1 else (1, 0))]
        return L, L2
    def flag_offsets(self):
        L = []
        for t in range(7): L += [f"s_lshr_b32 s{8+t}, s{sMSG+t}, 13", f"s_and_b32 s{sT}, s{8+t}, -8", f"s_add_u32 s{8+t}, s{8+t}, s{sT}", f"s_lshl_b32 s{8+t}, s{8+t}, 3"]
        return L
    def bias_pack(self):
        return [f"v_lshl_or_b32 v{vBA}, v{T8+1}, 16, v{T8}", f"v_mov_b32 v{vBA+1}, 0" if self.role == 'E' else f"v_lshl_or_b32 v{vBA+1}, v{T8+3}, 16, v{T8+2}", SKIP]
    xread = lambda self, s: [f"ds_read_b128 {vr(XF+4*s, 4)}, v{vXR} offset:{s*1056}"]
    def kv_phase(self, items):
        na = 2 if self.role == 'N' else 1
        ep = [self.kv_epi(a) for a in range(na)]
        for wi, m in enumerate('kv'):
            for s in range(28):
                for a in range(na):
                    items.append(Job(ACC[2*a+wi], XF+4*s, self.gi[(m, s >> 1, 0)], s & 1, vQA + 2*a, False, s == 0, 2,
                                     None if a or wi else self.xread(s), (self.cfg.KF if na == 2 else 5) if wi else None))
                if wi == 0 and s == 20: items.append(Fill(self.bias_pack() + self.bias_init(ACC[4], 0), 0))
            items.append(Flush())
            if wi == 0: items.append(Fill(sum((e[0][:72] for e in ep[:1 if 'f' in self.cfg.X5 else 2]), [])))
        items.append(Code(lambda: self.stamp("kvmm"), False))
        def mark(): self.ev["l0"] = len(self.bars); self.stamp("l0st")
        e1, e2 = ep[0][0][72:], ep[0][1]
        if na == 2: e1 = e1 + ep[1][0][72:] + e2; e2 = ep[1][1]
        e1 = [lambda: self.barrier(name="xdead")] + e1
        e2 = e2 + [f"v_subrev_u32 v{c}, 0x10000, v{b}" for b, c in self.baseC.items()]
        items.append(Code(lambda: [self.emit_fill(x) for x in e1], False))
        items.append(Fill(e2 + [mark] + self.bias_init(ACC[2], 1), 3))
    def checksum(self, R, n, fl, cnt):
        a = self.a
        a(f"v_sub_u32 v{vCK}, 0, v{fl}")
        for i in range(0, n, 2): a(f"v_add3_u32 v{vCK}, v{vCK}, v{R+i}, v{R+i+1}")
        for s in self.wsum(vCK): a(s)
        a(f"v_mul_lo_u32 v{vT0}, v{vNON}, {cnt}\nv_add_u32 v{vCK}, v{vCK}, v{vT0}\nv_readlane_b32 s{sT}, v{vCK}, 63")
        a(f"s_cmp_lg_u32 s{sT}, 0\ns_cselect_b64 vcc, -1, 0")
    def finale(self, acc, can_non):
        self.stamp("mmend")
        a = self.a
        a(f"s_lshl_b32 s59, s{sC}, 11\ns_add_u32 s59, s59, {OOFF}\nv_add_u32 v{vT1}, s59, v{vFW}")
        a(f"s_lshl_b32 s59, s3, 8\nv_lshl_add_u32 v{vT2}, v{vLANE}, 2, s59")
        if can_non:
            own, fin = self.lab("own"), self.lab("fin")
            a(f"s_cmp_lg_u32 s{sJ}, {self.cfg.JN}\ns_nop 7\ns_cbranch_scc1 {own}")
            for x in self.send(acc, 6): self.emit_fill(x)
            a(f"s_branch {fin}\n{own}:")
        for i in range(4): a(f"ds_write_b128 v{vT1}, {vr(acc+4*i, 4)} offset:{i*1024}")
        a(f"ds_write_b32 v{vT2}, v{vONES}")
        if can_non: a(f"{fin}:")
        if self.cfg.prof: a("s_waitcnt vmcnt(0)"); self.stamp("end")
        self.end()

    def build(self):
        a = self.a; cfg = self.cfg; gi = self.gi; it = []
        lazy = self.lazy_setup()
        def xbar():
            self.stamp("role")
            if cfg.PRC: a(f"s_setprio {cfg.PRC}")
            for x in lazy[:cfg.NPRE]: a(x)
            a("s_waitcnt lgkmcnt(0)"); self.stamp("ln"); self.barrier(cfg.CH, long=True); self.stamp("b0")
        it.append(Code(xbar)); it.append(Fill(lazy[cfg.NPRE:], 2))
        def xchg(long=False):
            a("s_waitcnt lgkmcnt(0)"); self.barrier(self.nextneed(), long=long, name="o")
        if self.role != 'E':
            self.kv_phase(it)
            buf = [ACC[4], ACC[2], ACC[4], ACC[2]]; HK = [ACC[0], ACC[0]+8, ACC[1], ACC[1]+8]
            for t in range(4):
                it += [Job(buf[t], XF+4*s, gi[('w1', s >> 1, t)], s & 1, vHA, True, fill=(4 if t == 0 and s < 10 else None)) for s in range(28)]
                it.append(Flush())
                it.append(Fill(self.h_epi(buf[t], HK[t]) + (self.bias_init(buf[t], t+2) if t < 2 else [])))
            it.append(Code(lambda: self.stamp("ffn1"), False))
            ob = lambda t: (ACC[4], ACC[3], ACC[2])[t % 3]
            def J(t, h, kk, own, first=False, pre=None, fill=None):
                return Job(ob(t), (HK[h] if own else XF + 8*h) + 4*kk, gi[('w2', 2*h, t)], kk, vOA if own else vPA, True, first, 2, pre, fill)
            for t in range(2): it += [J(t, h, kk, True, h + kk == 0, fill=3) for h in range(3) for kk in range(2)]
            it.append(Flush())
            def hw():
                self.stamp("hw")
                for t in range(4 if 'e' not in cfg.X5 else 1): self.h_write(HK[t], t)
            it.append(Code(hw, False))
            for t in range(2): it += [J(t, 3, kk, True) for kk in range(2)]
            it.append(Code(xchg)); it.append(Code(lambda: self.stamp("hx"), False))
            rd = lambda h, kk: [f"ds_read_b128 {vr(XF+8*h+4*kk, 4)}, v{vFR} offset:{HOFF + (4*h+kk)*1024}"]
            it += [J(0, h, kk, False, pre=rd(h, kk)) for h in range(4) for kk in range(2)] + [Fill(self.send(ob(0), 0))]
            it += [J(1, h, kk, False, fill=3) for h in range(4) for kk in range(2)] + [Fill(self.send(ob(1), 1))]
            for t in range(2, 7):
                it += [J(t, h, kk, own, h + kk == 0 and own, fill=cfg.FF if t > cfg.FAST else 3 if t == 2 else None) for h in range(4) for own in (True, False) for kk in range(2)] + [Flush()]
                if t < 6: it.append(Fill(self.send(ob(t), t)))
            self.run(it)
            self.finale(ob(6), self.role == 'M')
        else:
            buf = [ACC[2], ACC[4]]
            for s in range(28):
                it.append(Job(buf[0], XF+4*s, gi[('w1', s >> 1, 0)], s & 1, vHA, True, s == 0, 1, self.xread(s)))
                if s == 14: it.append(Fill(self.bias_pack() + self.bias_init(buf[1], 1), 0))
                if s == 21: it.append(Flush())
            b0 = self.bias_init(buf[0], 0); b0[-1] = b0[-1][:-1] + vr(buf[0], 16)
            it.append(Fill(b0 + [SKIP]*6 + self.h_epi(buf[0], T8), 3))
            it += [Job(buf[1], XF+4*s, gi[('w1', s >> 1, 1)], s & 1, vHA, True) for s in range(28)] + [Flush()]
            it.append(Fill(self.h_epi(buf[1], buf[1])))
            it.append(Code(lambda: self.stamp("ffn1"), False))
            for s in range(28):
                it += [Job(ACC[hh], XF+4*s, gi[('q', s >> 1, 0)], s & 1, vQA + 2*hh, True, s == 0, 4, fill=1) for hh in range(4)]
                if s == cfg.HWS: it += [Flush(), Code(lambda: (self.ev.update(hw=len(self.bars)), self.h_write(T8, 0), self.h_write(buf[1], 1)), False)]
            it.append(Code(lambda: self.stamp("q"), False))
            f = []
            for hh in range(4):
                d = ACC[0] + 8*hh
                f += self.phi(ACC[hh], d, T8) if 'a' not in cfg.X5 else self.pack(ACC[hh], d)
            it.append(Fill(f))
            for s, t in ([(2*kb + u, t) for kb in range(4) for t in range(7) for u in range(2)] if cfg.GM else [(s, t) for s in range(8) for t in range(7)]):
                hb = ACC[4] + 4*(s & 3)
                if 1:
                    pre = [f"ds_read_b128 {vr(hb, 4)}, v{vFR} offset:{HOFF + s*1024}"] if t == 0 else []
                    it.append(Job(XF + 16*t, hb, gi[('w2', s >> 1, t)], s & 1, vOA, True, s == 0, 1, pre, cfg.QFILL))
            def ocalc():
                self.barrier(name="kvb")
                self.stamp("ffn2a")
            it.append(Code(ocalc)); it.append(Flush())
            def ocalc2():
                KB = ACC[2]
                a(f"""s_and_b32 s59, s{sJ}, 1
s_lshl_b32 s59, s59, 1
s_add_u32 s59, s59, s{sC}
s_lshl_b32 s59, s59, 13
s_add_u32 s59, s59, {KVF}
s_add_u32 s60, s59, 4096
v_subrev_u32 v{vKVA}, 0x10000, v{vOA}
s_mul_i32 s61, s{sC}, {HALF}
s_add_u32 s61, s61, {STG + KVB}
v_add_u32 v{vXW}, s61, v{vMSG}
s_mov_b32 s61, 0x07060302""")
                self.stamp("phi")
                self.barrier(name="kvr", long=True)
                self.stamp("kvr")
                for i in range(8): a(f"ds_read_b128 {vr(KB+4*i, 4)}, v{vXW} offset:{i*1024}")
                lp, ck = self.lab("l2_"), self.lab("l2c")
                a(f"{ck}:\nv_mov_b32 v{vT0}, 0")
                for hh in range(4):
                    a(f"v_xor_b32 v{vT1}, v{KB+8*hh+3}, v{vTAG}\nv_xor_b32 v{vT2}, v{KB+8*hh+7}, v{vTAG}\nv_or3_b32 v{vT0}, v{vT0}, v{vT1}, v{vT2}")
                    a(f"v_perm_b32 v{KB+8*hh+3}, v{KB+8*hh+7}, v{KB+8*hh+3}, s61\nv_mov_b32 v{KB+8*hh+7}, 0")
                a(f"v_and_b32 v{vT0}, 0xffff, v{vT0}\nv_cmp_ne_u32 vcc, 0, v{vT0}")
                for hh in range(4): a(f"v_permlane32_swap_b32 v{KB+8*hh+6}, v{KB+8*hh+7}")
                self.retry(lp)
                self.ool += [f"{lp}:"]
                self.ool += [f"buffer_load_dwordx4 {vr(KB+4*i, 4)}, v{vMSG}, s[{rWS}:{rWS+3}], s{59 + (i >> 2)} offen offset:{(i & 3)*1024} sc1" for i in range(8)]
                self.ool += ["s_waitcnt vmcnt(0)", f"s_branch {ck}"]
                self.stamp("kvok")
                nb = [ACC[4], vB, ACC[4], vB]
                def mm(hh):
                    for kk in range(2):
                        a(f"v_mfma_f32_32x32x16_bf16 {vr(nb[hh],16)}, {vr(KB+8*hh+4*kk,4)}, {vr(ACC[0]+8*hh+4*kk,4)}, {vr(nb[hh],16) if kk else 0}")
                def ep(hh):
                    n = nb[hh]
                    a(f"v_mov_b32 v{vT0}, v{n+12}\nv_mov_b32 v{vCK}, v{n+12}\nv_permlane32_swap_b32 v{vT0}, v{vCK}")
                    a(f"v_add_f32 v{vCK}, s{sEPS}, v{vCK}\nv_rcp_f32 v{vCK}, v{vCK}")
                    for i in range(4):
                        for k in range(4): a(f"v_mul_f32 v{n+4*i+k}, v{n+4*i+k}, v{vCK}")
                        for k in range(2): a(self.pack(n)[2*i+k])
                        g0 = 7*hh + 2*i
                        off = OOFF + (g0 >> 2)*1024 + ((g0 >> 1) & 1)*512 + (g0 & 1)*8
                        if i == 3: a("s_mov_b32 exec_hi, 0")
                        a(f"ds_write_b64 v{vOWB if g0 & 1 else vOWA}, {vr(n+2*i, 2)} offset:{off}")
                        if i == 3: a("s_mov_b32 exec_hi, -1")
                if cfg.OP:
                    nb = [ACC[4], vB, ACC[2], ACC[0]]; dn = [T8 + 2*hh for hh in range(4)]
                    for hh in range(4): mm(hh)
                    for hh in range(4): a(f"v_mov_b32 v{dn[hh]}, v{nb[hh]+12}\nv_mov_b32 v{dn[hh]+1}, v{nb[hh]+12}")
                    for hh in range(4): a(f"v_permlane32_swap_b32 v{dn[hh]+1}, v{dn[hh]}")
                    for hh in range(4): a(f"v_add_f32 v{dn[hh]}, s{sEPS}, v{dn[hh]}")
                    for hh in range(4): a(f"v_rcp_f32 v{dn[hh]}, v{dn[hh]}")
                    for i in range(4):
                        if i == 3: a("s_mov_b32 exec_hi, 0")
                        for hh in range(4):
                            n = nb[hh]; g0 = 7*hh + 2*i
                            for k in (0, 2): a(f"v_pk_mul_f32 {vr(n+4*i+k, 2)}, {vr(n+4*i+k, 2)}, {vr(dn[hh], 2)} op_sel_hi:[1,0]")
                            for k in range(2): a(f"v_cvt_pk_bf16_f32 v{n+4*i+k}, v{n+4*i+2*k}, v{n+4*i+2*k+1}")
                            a(f"ds_write_b64 v{vOWB if g0 & 1 else vOWA}, {vr(n+4*i, 2)} offset:{OOFF + (g0 >> 2)*1024 + ((g0 >> 1) & 1)*512 + (g0 & 1)*8}")
                    a("s_mov_b32 exec_hi, -1")
                else:
                    mm(0); mm(1); ep(0); mm(2); ep(1); mm(3); ep(2); ep(3)
                xchg(True)
                self.stamp("o")
            it.append(Code(ocalc2))
            for t in range(7):
                for s in range(14):
                    pre = [f"ds_read_b128 {vr(ACC[0]+4*s, 4)}, v{vFR} offset:{OOFF + s*1024}"] if t == 0 else []
                    it.append(Job(XF + 16*t, ACC[0]+4*s, gi[('wo', s >> 1, t)], s & 1, vOA, True, False, 1, pre, cfg.FF if t > cfg.FAST else 3))
                it.append(Flush())
                if t < 6: it.append(Fill(self.send(XF + 16*t, t)))
            self.run(it)
            self.finale(XF + 96, False)
        self.plan_loader()

def weight_srds(w, E):
    w.a(f"s_mul_i32 s49, s{sJ}, 56\ns_lshr_b32 s49, s49, 6\ns_lshl_b32 s49, s49, 7")
    if E:
        w.a(f"s_and_b32 s48, s{sJ}, 1\ns_mul_i32 s59, s48, {224*896}\ns_mul_i32 s48, s48, 384")
        srd(w, 44, pWO, 401408, 59)
    ffn_line0(w, 60)
    w.a("s_lshl_b32 s59, s60, 7"); srd(w, 36, pW1, 1605632, 59)
    w.a(f"s_mul_i32 s59, s60, {64*896}"); srd(w, 40, pW2, 1605632, 59)

class Pf:
    def __init__(s, w): s.w = w; s.n = 0; assert w.cfg.G == 16
    def new(s, rs):
        s.n += 1; v = 16 + s.n
        return v, f"buffer_load_dword v{48 + s.n}, v{v}, s[{rs}:{rs+3}], 0 offen"
    def cols(s, rs, sbase, off, stride, nl, lstep=None):
        v, ins = s.new(rs)
        line = f"v_min_u32 v9, {nl-1}, v9\nv_lshl_add_u32 v{v}, v9, 7, v{v}" if lstep is None else \
               f"v_and_b32 v10, 1, v9\nv_lshl_add_u32 v{v}, v10, 7, v{v}\nv_lshrrev_b32 v9, 1, v9\nv_mul_u32_u24 v9, {lstep}, v9\nv_add_u32 v{v}, v9, v{v}"
        s.w.a(f"""s_mul_i32 s60, s61, 14
v_and_b32 v{v}, 15, v0
v_min_u32 v{v}, 13, v{v}
v_add_u32 v{v}, s60, v{v}
v_mul_u32_u24 v{v}, {stride}, v{v}
v_lshrrev_b32 v9, 4, v0
{line}""")
        if off: s.w.a(f"v_add_u32 v{v}, {off}, v{v}")
        if sbase is not None: s.w.a(f"v_add_u32 v{v}, s{sbase}, v{v}")
        return ins
    def chunks(s, rs, nr, t0, t1):
        v, ins = s.new(rs)
        s.w.a(f"s_mul_i32 s60, s61, {nr}\nv_and_b32 v{v}, 7, v0\nv_min_u32 v{v}, {nr-1}, v{v}\nv_add_u32 v{v}, s60, v{v}\nv_mul_u32_u24 v{v}, 896, v{v}\nv_mov_b32 v9, s{50+t0}")
        for t in range(t0+1, t1): s.w.a(f"v_mov_b32 v10, s{50+t}\nv_cmp_le_u32 vcc, {8*(t-t0)}, v0\nv_cndmask_b32 v9, v9, v10, vcc")
        s.w.a(f"v_add_u32 v{v}, v9, v{v}")
        return ins

gA, gR, gY = 16, 64, 128
vGO, vGB, vGM, vGC, vGT, vGN, vLO, vHI, vXD, vTW, vTR, vOF = 36, 37, 39, 32, 33, 34, 35, 15, 38, 40, 41, 42
def gather_stage1(w, cfg):
    a = w.a
    srd(w, 32, pX, 1835008); srd(w, 36, pWS, WSZ)
    a(f"""s_mov_b64 s[0:1], s[{pB2}:{pB2+1}]
s_sub_u32 s57, s3, 4
s_cmp_gt_u32 s{sJ}, {cfg.JN}
s_subb_u32 s58, s{sJ}, 0
s_mul_i32 s61, s{sRB}, 7
s_add_u32 s61, s61, s58
s_lshl_b32 s60, s57, 8
s_add_u32 s60, s60, s61
s_lshl_b32 s60, s60, 7
s_add_u32 s60, s60, {XFL}
s_add_u32 s48, s{pWS}, s60
s_addc_u32 s49, s{pWS+1}, 0
s_waitcnt lgkmcnt(0)
s_mov_b32 s26, s{sNON}
s_load_dwordx16 s[8:23], s[48:49], 0 glc
s_lshl_b32 s61, s61, 5
s_add_u32 s61, s61, s57
s_lshl_b32 s61, s61, 11
s_add_u32 s61, s61, {XP}
s_lshl_b32 s58, s58, 7
s_and_b32 s60, s57, 1
s_lshl_b32 s60, s60, 6
s_add_u32 s58, s58, s60
s_lshr_b32 s27, s57, 1
s_lshl_b32 s60, s{sRB}, 1
s_add_u32 s60, s60, s27
s_mul_i32 s60, s60, {32*896}
s_add_u32 s60, s60, s58
v_lshrrev_b32 v{vTR}, 2, v0
v_and_b32 v{vGM}, 3, v0
v_mul_u32_u24 v{vGO}, 896, v{vTR}
v_lshl_add_u32 v{vGO}, v{vGM}, 4, v{vGO}
v_mul_u32_u24 v{vTR}, 80, v{vTR}
v_lshl_add_u32 v{vTR}, v{vGM}, 4, v{vTR}
v_and_b32 v{vGB}, 32, v0
v_and_b32 v{vGM}, 31, v0
v_lshl_add_u32 v{vXD}, v{vGM}, 6, v{vGB}
v_lshl_add_u32 v{vTW}, v{vGM}, 4, v{vXD}
v_lshlrev_b32 v{vGM}, 4, v0
s_mul_i32 s27, s27, {HALF}
s_and_b32 s57, s57, 1
s_lshl_b32 s57, s57, 11
s_add_u32 s27, s27, s57
s_add_u32 s57, s57, s27
s_add_u32 s57, s57, {STG + OOFF}
s_add_u32 s27, s27, {STG + OOFF + 8192}
v_add_u32 v{vGT}, s57, v{vGM}
v_add_u32 v{vTW}, s57, v{vTW}
v_add_u32 v{vTR}, s57, v{vTR}
v_add_u32 v{vXD}, s27, v{vXD}
v_mov_b32 v{vGN}, s26""")

def ready_mask(a):
    a("s_mov_b32 s57, 0")
    for i in range(7, -1, -1): a(f"s_cmp_eq_u32 s{9+2*i}, s26\ns_addc_u32 s57, s57, s57")
    a("s_and_b32 s57, s57, s56")
def cksum_total(a):
    a("s_bcnt1_i32_b32 s51, s30\ns_mul_i32 s51, s51, s26")
    for i in range(8): a(f"s_bitcmp1_b32 s30, {i}\ns_cselect_b32 s59, s{8+2*i}, 0\ns_sub_u32 s51, s51, s59")

def gather_stage2(w, cfg):
    a = w.a
    srd(w, 40, 0, 896); srd(w, 44, pOUT, 1835008)
    a(f"s_add_u32 s57, s60, {16*896}")
    for h in range(2):
        a(f"s_add_u32 m0, s27, {h*1024}\nbuffer_load_dwordx4 v{vGO}, s[32:35], s{57 if h else 60} offen lds")
        a(f"buffer_load_dwordx4 {vr(gY+8+4*h, 4)}, v{vGB}, s[40:43], s58 offen offset:{16*h}")
    a(f"s_load_dwordx16 s[8:23], s[48:49], 0 glc")
    for k in range(7): a(f"s_add_u32 s{50+k}, s61, {k*8192}")
    a(f"v_mov_b32 v{vLO}, 0x3f80\nv_mov_b32 v{vHI}, 1.0\nv_mov_b32 v{vGC}, 0")
    return 4

def build_gather(cfg, role):
    w = Wave("g" + role, cfg); E = role == 'E'; gS, gT = 144, 160
    a = lambda t: w.a(re.sub(r"\bg_", f"g{role}_", t))
    w.stamps = ["-"]*8
    POLL = "s_load_dwordx16 s[8:23], s[48:49], 0 glc"
    def addp(x):
        L = []
        for i in range(8):
            L += [f"v_lshlrev_b32 v{vLO}, 16, v{x+i}", f"v_and_b32 v{vHI}, s27, v{x+i}", f"v_add_f32 v{gA+2*i}, v{gA+2*i}, v{vLO}", f"v_add_f32 v{gA+2*i+1}, v{gA+2*i+1}, v{vHI}"]
        return L
    def addd(x):
        return [f"v_dot2c_f32_bf16 v{gA+k}, v{x+k//2}, v{vHI if k & 1 else vLO}" for k in range(16)]
    ld = lambda k: [f"buffer_load_dwordx4 {vr(gR+8*k+4*h, 4)}, v{vGM}, s[36:39], s{50+k} offen offset:{1024*h} sc1" for h in range(2)]
    def base(mid=None):
        for i in range(4): a(f"ds_read_b128 {vr(gT+4*i, 4)}, v{vGT} offset:{i*1024}")
        a("s_waitcnt lgkmcnt(0)")
        if mid: a(mid)
        for i in range(16): a(f"v_add_f32 v{gA+i}, v{gA+i}, v{gT+i}")
    def process(k):
        if k == 6: a("s_waitcnt vmcnt(0)"); w.stamp("gin")
        for q in range(0, 8, 2): a(f"v_add3_u32 v{vGC}, v{vGC}, v{gR+8*k+q}, v{gR+8*k+q+1}")
        L = addd(gR + 8*k)
        if k == 6:
            for x in w.wsum(vGC) + [f"v_readlane_b32 s59, v{vGC}, 63"]:
                a(L.pop(0)); a(L.pop(0)); a(x)
        for x in L: a(x)
    w.npre = 0
    w.stamp("gstart")
    a("g_top:\ns_mov_b32 s31, 1\ns_mov_b32 s27, 0xffff0000\ns_waitcnt vmcnt(0)")
    for h in range(2): a(f"ds_read_b128 {vr(gY+4*h, 4)}, v{vXD} offset:{16*h}")
    done = 0
    for k in range(7):
        a(f"s_cmp_lg_u32 s{9+2*k}, s26\ns_cbranch_scc1 g_wait{k}\ng_go{k}:")
        w.ool += re.sub(r"\bg_", f"g{role}_", f"""g_wait{k}:
s_waitcnt lgkmcnt(0)
s_cmp_eq_u32 s{9+2*k}, s26
s_cbranch_scc1 g_go{k}
s_sub_u32 s{sSPIN}, s{sSPIN}, 1
s_cmp_le_i32 s{sSPIN}, 0
s_cbranch_scc1 g_go{k}
s_call_b64 s[58:59], g_idle
s_branch g_wait{k}""").split("\n")
        if cfg.GK and k in (0, 2, 3, 4, 5): w.stamp(f"go{k}")
        for x in ld(k) if k >= cfg.X3 else []: a(x)
        if k == 0:
            a("s_waitcnt lgkmcnt(0)")
            if cfg.FP: a(POLL)
            for i in range(8): a(f"v_lshlrev_b32 v{gA+2*i}, 16, v{gY+i}\nv_and_b32 v{gA+2*i+1}, s27, v{gY+i}")
            a("s_mov_b32 s31, 0")
        if k == 2:
            for x in addd(gY+8): a(x)
        if cfg.LAG <= k < 6: process(done); done += 1
    w.stamp("gall")
    a("s_mul_i32 s30, s26, 7")
    for i in range(7): a(f"s_sub_u32 s30, s30, s{8+2*i}")
    a(f"""s_cmp_lg_u32 s31, 0
s_cbranch_scc1 g_sum
g_ownw:
ds_read_b32 v{gT}, v{vOF}
s_sub_u32 s{sSPIN}, s{sSPIN}, 1
s_cmp_le_i32 s{sSPIN}, 0
s_waitcnt lgkmcnt(0)
s_cbranch_scc1 g_redo
v_cmp_eq_u32 vcc, 0, v{gT}
s_cbranch_vccnz g_ownw
g_redo:""")
    base()
    a("g_sum:")
    for k in range(done, 7): process(k)
    a("s_add_u32 s59, s59, s30\ns_cmp_lg_u32 s59, 0\ns_cbranch_scc1 g_fail\ng_done:".replace("s_cmp_lg_u32 s59, 0", "s_cmp_lg_u32 s59, s59" if cfg.X3 or 'c' in cfg.X5 else "s_cmp_lg_u32 s59, 0"))
    a("s_waitcnt lgkmcnt(0)")
    for h in range(2):
        for i in range(4*h, 4*h+4): a(f"v_cvt_pk_bf16_f32 v{gA+i}, v{gA+2*i}, v{gA+2*i+1}")
        a(f"ds_write_b128 v{vTW}, {vr(gA+4*h, 4)} offset:{16*h}")
    for u in range(2): a(f"ds_read_b128 {vr(gA+8+4*u, 4)}, v{vTR} offset:{u*1280}")
    for u in range(2): a(f"buffer_store_dwordx4 {vr(gA+8+4*u, 4)}, v{vGO}, s[44:47], s{57 if u else 60} offen {cfg.OSC.replace('_', ' ')}")
    w.stamp("gst")
    a(f"""s_lshl_b32 s59, s{sRB}, 3
s_add_u32 s59, s59, s{sJ}
s_lshl_b32 s59, s59, 3
s_add_u32 s59, s59, s3
s_cmp_lg_u32 s59, {2*8 + 7}
s_cbranch_scc1 g_exit
s_mov_b64 exec, 1
buffer_store_dword v{vGN}, v{vGM}, s[36:39], 0 offen sc1
s_mov_b64 exec, -1
g_exit:""")
    if cfg.prof: a("s_waitcnt vmcnt(0)"); w.stamp("gend"); w.stamps.append("gF")
    w.end()
    if cfg.prof: w.stamps.pop()
    a(f"g_fail:\ns_sub_u32 s{sSPIN}, s{sSPIN}, {1000 if cfg.prof else 64}\ns_cmp_le_i32 s{sSPIN}, 0\ns_cbranch_scc1 g_done")
    a(f"""s_waitcnt lgkmcnt(0)
{POLL}
v_mov_b32 v{vGC}, 0
s_waitcnt lgkmcnt(0)
s_branch g_top
g_idle:
s_cmp_lg_u32 s31, 0
s_cbranch_scc1 g_idle2
ds_read_b32 v{gT}, v{vOF}
s_waitcnt lgkmcnt(0)
v_cmp_eq_u32 vcc, 0, v{gT}
s_cbranch_vccnz g_idle2
s_mov_b32 s31, 1""")
    w.stamp("gF")
    base(POLL)
    a(f"s_setpc_b64 s[58:59]\ng_idle2:\n{POLL}\ns_setpc_b64 s[58:59]")
    return w

def touch_flags(w, cfg):
    if cfg.TOUCH: w.a(f"""s_cmp_gt_u32 s{sJ}, {cfg.JN}
s_subb_u32 s60, s{sJ}, 0
s_mul_i32 s61, s{sRB}, 7
s_add_u32 s60, s60, s61
s_lshl_b32 s61, s3, 8
s_add_u32 s60, s60, s61
s_lshl_b32 s60, s60, 7
s_add_u32 s60, s60, {XFL - 131072}
s_load_dword s26, s[{pWS}:{pWS+1}], s60 glc""")

def to_gather(w, cfg, role):
    assert 3 <= cfg.JN <= 5
    if role == 'M': w.a(f"s_cmp_eq_u32 s{sJ}, {cfg.JN}\ns_cbranch_scc1 gM_exit")
    w.a(f"s_branch gather_{role}")

def build_loader(role, cfg, comp):
    w = Wave("l" + role, cfg); a = w.a; E = role == 'E'
    vo = {2688: 2, 3584: 3, 896: 4}
    if cfg.PRL: a(f"s_setprio {cfg.PRL}")
    weight_srds(w, E); chunk_order(w, cfg, 50, 128, E)
    a(f"""s_sub_u32 s30, s3, 4
s_lshl_b32 s31, s30, 11
s_lshl_b32 s59, s30, 4
v_bfe_u32 v12, v0, 2, 3
v_add_u32 v12, s59, v12
v_lshrrev_b32 v13, 5, v0
v_lshlrev_b32 v13, 6, v13
v_and_b32 v14, 3, v0
v_lshl_add_u32 v13, v14, 4, v13""")
    for st, r in vo.items(): a(f"v_mul_u32_u24 v{r}, {st}, v12\nv_add_u32 v{r}, v{r}, v13")
    pf = Pf(w); ev = comp.ev; late = {}; first = []
    def at(k, fn): late.setdefault(k, []).append(fn)
    a(f"s_lshl_b32 s61, s{sG}, 1\ns_add_u32 s61, s61, s30")
    if E:
        first.append(pf.cols(36, None, 0, 3584, 2))
        if cfg.QT < 0: first.append(pf.cols(32, 48, 0, 2688, 4))
        else: at(cfg.QT, lambda: pf.cols(32, 48, 0, 2688, 4))
        at(ev['hw'] - cfg.PE2, lambda: pf.chunks(40, 4, 0, 7))
        if cfg.WOA: at(ev['hw'] - cfg.PE2, lambda: pf.chunks(44, 7, 0, cfg.WOA))
        if cfg.WOA < 7: at(ev['kvb'] - cfg.WOT, lambda: pf.chunks(44, 7, cfg.WOA, 7))
    else:
        first += [pf.cols(32, 49, 896, 2688, 4, 896), pf.cols(36, None, 0, 3584, cfg.W1A)]
        if cfg.W1A < 4: at(ev['xdead'] - cfg.PKD, lambda: pf.cols(36, None, cfg.W1A*128, 3584, 4 - cfg.W1A))
        if cfg.PK: at(ev['xdead'] - cfg.PKD, lambda: pf.chunks(40, 8, 0, cfg.PK))
        if cfg.PL > cfg.PK: at(ev['l0'] + (cfg.L1D + cfg.PLD - 1 if role == 'M' else cfg.PLN), lambda: pf.chunks(40, 8, cfg.PK, cfg.PL))
        if cfg.PL < 7: at(ev['o'] - 1 - cfg.PHD, lambda: pf.chunks(40, 8, cfg.PL, 7))
    if cfg.BA: a("s_barrier")
    w.stamp("start")
    for x in first: a(x)
    a(f"s_waitcnt lgkmcnt(0)\ns_add_u32 s{sNON}, s{sNON}, 1")
    late = {k: [f() for f in v] for k, v in late.items()}
    touch_flags(w, cfg)
    if cfg.A2 >= 0: a("s_barrier")
    N = len(comp.groups); g = 0; ops = []
    for k, b in enumerate(comp.bars):
        while g < comp.iss[k]:
            m, kb, l = comp.groups[g]
            rs, st, base, lit = {'k': (32, 2688, 49, 896 + l*128), 'v': (32, 2688, 49, 1792 + l*128),
                                 'q': (32, 2688, 48, l*128), 'w1': (36, 3584, None, l*128),
                                 'w2': (40, 896, 50 + l, 0), 'wo': (44, 896, 50 + l, 0)}[m]
            for p in range(2):
                if cfg.X4 and g % cfg.X4 == cfg.X4 - 3 and g > 30: continue
                o = lit + (kb*32 + p*8)*st
                a(f"s_add_u32 m0, s31, {comp.addr[g] + p*1024}")
                a(f"s_mov_b32 s59, {o}" if base is None else f"s_add_u32 s59, s{base}, {o}")
                a(f"buffer_load_dwordx4 v{vo[st]}, s[{rs}:{rs+3}], s59 offen lds"); ops.append(g)
            g += 1
            if g in (comp.iss[0], 56, 112, N): w.stamp(f"iss{g}")
        for x in late.pop(k, []): a(x); ops.append(-1)
        assert cfg.G1 >= 1
        if k == comp.kN + 1 - cfg.G1: gather_stage1(w, cfg)
        a(f"s_waitcnt vmcnt({len(ops) - ops.index(max(x for x in ops if x < b['need'])) - 2})\ns_barrier")
        if k == comp.kN: ops += [-1]*gather_stage2(w, cfg); w.stamp("g0iss")
        if k == len(comp.bars) - 1 - cfg.LP and k > comp.kN + 1: a("s_load_dwordx16 s[8:23], s[48:49], 0 glc")
    assert not late
    assert comp.bars[-1]['need'] == N
    to_gather(w, cfg, role)
    return w

def build_proto(role, cfg, comp):
    w = Wave("p" + role, cfg); a = w.a; E = role == 'E'
    rWS_ = 52; NBAR = len(comp.bars)
    def tick_to(n):
        l = w.lab("tk"); a(f"{l}:\ns_cmp_ge_u32 s31, {n}\ns_cbranch_scc1 {l}x\ns_barrier\ns_add_u32 s31, s31, 1\ns_branch {l}\n{l}x:")
    def srd_w2():
        ffn_line0(w, 60); a(f"s_mul_i32 s60, s60, {64*896}"); srd(w, 40, pW2, 1605632, 60)
    def poll(start, lim, on):
        a(f"s_add_u32 s48, s{pWS}, s60\ns_addc_u32 s49, s{pWS+1}, 0\ns_and_b32 s50, s{sNON}, 0xff\ns_mul_i32 s50, s50, 0x01010101\ns_mov_b32 s51, s50")
        if cfg.TOUCH and on == 1:
            for i in range(4): a(f"s_load_dword s{sT}, s[48:49], {128*i} glc")
        tick_to(start)
        if on != 2: w.stamp("poll")
        if not on: return
        lp = w.lab("po"); a(f"s_waitcnt lgkmcnt(0)\n{lp}:")
        for i in range(4): a(f"s_load_dwordx4 s[{32+4*i}:{35+4*i}], s[48:49], {128*i} glc")
        l = w.lab("tw")
        a(f"{l}:\ns_cmp_ge_u32 s31, {lim}\ns_cbranch_scc1 {l}x\ns_barrier\ns_add_u32 s31, s31, 1\ns_getreg_b32 s{sT}, hwreg(HW_REG_IB_STS, 8, 4)\ns_cmp_lg_u32 s{sT}, 0\ns_cbranch_scc1 {l}\n{l}x:")
        a("s_waitcnt lgkmcnt(0)\ns_xor_b64 vcc, s[32:33], s[50:51]")
        for i in range(1, 8): a(f"s_xor_b64 s[32:33], s[{32+2*i}:{33+2*i}], s[50:51]\ns_or_b64 vcc, vcc, s[32:33]")
        w.retry(lp)
    def tick(lim):
        l = w.lab("tk"); a(f"s_cmp_ge_u32 s31, {lim}\ns_cbranch_scc1 {l}\ns_barrier\ns_add_u32 s31, s31, 1\n{l}:")
    def level1(start, lim):
        assert not cfg.L2N
        two = cfg.L1M == 1; nld = 16 if two else 8; lg = 4 if two else 3; A = 128; skip = w.lab("nol1")
        if cfg.L1M == 0: a(f"s_sub_u32 s59, s{sJ}, 2")
        else:
            if not E: a(f"s_sub_u32 s59, s{sJ}, 3\ns_cmp_gt_u32 s59, 1\ns_cbranch_scc1 {skip}")
            if not two: a(f"s_lshr_b32 s59, s{sJ}, 1")
        a(f"""s_lshl_b32 s59, s59, 1
s_add_u32 s59, s59, s30
s_lshl_b32 s59, s59, 5
s_add_u32 s61, s59, s{sRB}
s_lshl_b32 s61, s61, {lg + 4}
s_lshr_b32 s59, s61, 11
s_lshl_b32 s59, s59, 17
s_and_b32 s58, s61, 2047
s_add_u32 s59, s59, s58
s_add_u32 s59, s59, {KVP}
s_add_u32 s60, s59, 65536
s_add_u32 s61, s61, {KVF}
v_lshrrev_b32 v20, {lg}, v0
v_lshlrev_b32 v20, 11, v20
v_and_b32 v33, {(1 << lg)-1}, v0
v_lshl_add_u32 v20, v33, 4, v20
v_lshlrev_b32 v13, 4, v0
s_and_b32 s58, s{sNON}, 0xffff
v_mov_b32 v12, s58
s_mov_b32 s58, 0xffff0000
v_mov_b32 v28, 0x3f80
v_mov_b32 v29, 1.0""")
        for i in range(1, 8): a(f"v_add_u32 v{20+i}, {131072 // nld}, v{19+i}")
        tick_to(start)
        w.stamp("l1go")
        lp = w.lab("l1_"); a(f"{lp}:")
        for i in range(nld): a(f"buffer_load_dwordx4 {vr(64+4*i, 4)}, v{20 + (i & 7)}, s[{rWS_}:{rWS_+3}], s{59 + (i >> 3)} offen sc1")
        tick(lim)
        for k in range(3): a(f"v_lshlrev_b32 v{A+k}, 16, v{64+k}")
        for k in range(4): a(f"v_and_b32 v{A+4+k}, s58, v{64+k}")
        a(f"v_mov_b32 v{A+3}, 0\nv_xor_b32 v3, v67, v12")
        for i in range(1, nld):
            R = 64 + 4*i
            a(f"v_xor_b32 v10, v{R+3}, v12\nv_or_b32 v3, v3, v10\nv_and_b32 v{R+3}, s58, v{R+3}\nv_add_f32 v{A+7}, v{A+7}, v{R+3}")
            for k in range(3): a(f"v_dot2c_f32_bf16 v{A+k}, v{R+k}, v28\nv_dot2c_f32_bf16 v{A+4+k}, v{R+k}, v29")
        a("v_and_b32 v3, 0xffff, v3\nv_cmp_ne_u32 vcc, 0, v3")
        for k in range(0, 8, 2): a(f"v_permlane16_swap_b32 v{A+k}, v{A+k+1}")
        w.retry(lp)
        w.stamp("l1ok")
        for k in range(0, 8, 2): a(f"v_add_f32 v{A+k}, v{A+k}, v{A+k+1}")
        for k in (0, 4): a(f"v_permlane32_swap_b32 v{A+k}, v{A+k+2}")
        for k in (0, 4): a(f"v_add_f32 v{A+k}, v{A+k}, v{A+k+2}")
        if not two:
            for k in (0, 4): a(f"v_add_f32_dpp v{A+k}, v{A+k}, v{A+k} row_ror:8 row_mask:0xf bank_mask:0xf")
        a(f"""v_cvt_pk_bf16_f32 v64, v{A}, v{A+4}
v_cvt_pk_bf16_f32 v65, v{A}, v{A+4}
v_permlane16_swap_b32 v64, v65
v_mov_b32 v66, v64
v_mov_b32 v67, v65
v_permlane32_swap_b32 v64, v66
v_permlane32_swap_b32 v65, v67
v_and_or_b32 v67, v67, s58, v12
s_mov_b64 exec, {hex((1 << (1 << lg)) - 1)}
buffer_store_dwordx4 v[64:67], v13, s[{rWS_}:{rWS_+3}], s61 offen sc1
s_mov_b64 exec, -1""")
        w.stamp("l1st")
        a(f"{skip}:")
    a("s_sub_u32 s30, s3, 6\ns_mov_b32 s31, 0")
    if cfg.BA: a("s_barrier")
    srd(w, rWS_, pWS, WSZ)
    if cfg.TLB:
        l = w.lab("tlb")
        a(f"""s_cmp_lg_u32 s30, 0
s_cbranch_scc1 {l}
s_mul_i32 s59, s{sRB}, {7*65536}
s_add_u32 s59, s59, {XP + 7*8192}
s_add_u32 s60, s59, {6*65536}
v_mov_b32 v2, {OOB}
v_writelane_b32 v2, s59, 0
v_writelane_b32 v2, s60, 1
s_mov_b32 s59, {XFL + (1 << 19)}
v_writelane_b32 v2, s59, 2
s_mov_b32 s59, 4096
v_writelane_b32 v2, s59, 3
s_mov_b32 s59, {7 << 19}
v_writelane_b32 v2, s59, 4
s_mov_b32 s59, {9 << 19}
v_writelane_b32 v2, s59, 5
buffer_load_dword v43, v2, s[{rWS_}:{rWS_+3}], 0 offen
s_branch {l}x
{l}:""")
        srd(w, 36, pW2, 1605632); srd(w, 40, pWO, 401408); srd(w, 44, pOUT, 1835008)
        a(f"""v_mov_b32 v2, 0
s_mul_i32 s59, s{sRB}, 57344
s_cmp_gt_u32 s{sJ}, {cfg.JN}
s_subb_u32 s60, s{sJ}, 0
s_lshl_b32 s60, s60, 7
s_add_u32 s59, s59, s60
s_mov_b64 exec, 1
buffer_load_dword v43, v2, s[36:39], 0 offen
buffer_load_dword v44, v2, s[40:43], 0 offen
buffer_load_dword v45, v2, s[44:47], s59 offen
s_mov_b64 exec, -1
{l}x:""")
    a(f"s_waitcnt lgkmcnt(0)\ns_add_u32 s{sNON}, s{sNON}, 1")
    touch_flags(w, cfg)
    if cfg.A2 >= 0: a("s_barrier")
    if E:
        l = w.lab("seen")
        tick_to(1)
        if cfg.L1M == 2: level1(cfg.L1DE, comp.ev["kvr"] - 1)
        else: a(f"""s_cmp_lg_u32 s30, 0
s_cbranch_scc1 {l}
s_and_b32 s59, s{sJ}, 1
s_lshl_b32 s59, s59, 5
s_add_u32 s59, s59, s{sRB}
s_lshr_b32 s60, s59, 4
s_mul_i32 s60, s60, 112
s_add_u32 s59, s59, s60
s_add_u32 s59, s59, {NT2}
v_mov_b32 v2, s{sNON}
s_mov_b64 exec, 1
buffer_store_byte v2, v0, s[{rWS_}:{rWS_+3}], s59 offen sc1
s_mov_b64 exec, -1
{l}:""")
        a(f"""s_and_b32 s59, s{sJ}, 1
s_lshl_b32 s59, s59, 1
s_add_u32 s59, s59, s30
s_lshl_b32 s60, s59, 9
s_and_b32 s61, s{sRB}, {cfg.NREP-1}
s_mul_i32 s61, s61, 2304
s_add_u32 s60, s60, s61
s_add_u32 s60, s60, {NT1}
s_lshl_b32 s59, s59, 13
s_add_u32 s59, s59, {KVF}
s_mul_i32 s61, s30, {HALF}
s_add_u32 s61, s61, {STG + KVB}
v_lshlrev_b32 v3, 4, v0""")
        lim = comp.ev["kvr"] - 1
        poll(comp.ev["kvr"] - cfg.L2T, lim, cfg.L2N)
        w.stamp("l2go")
        for h in range(2):
            a(f"s_add_u32 m0, s61, {h*4096}\ns_add_u32 s58, s59, {h*4096}")
            for i in range(4): a(f"buffer_load_dwordx4 v3, s[{rWS_}:{rWS_+3}], s58 offen offset:{i*1024} sc1 lds")
        tick_to(lim)
        a("s_waitcnt vmcnt(0)")
        w.stamp("l2in")
    elif role == 'M':
        level1(comp.ev['l0'] + cfg.L1D, NBAR)
        if cfg.L1M != 2:
            fin2 = w.lab("fin")
            a(f"s_lshl_b32 s59, s{sRB}, 3\ns_add_u32 s59, s59, s{sJ}\ns_lshl_b32 s59, s59, 1\ns_add_u32 s59, s59, s30\ns_cmp_lg_u32 s59, 5\ns_cbranch_scc1 {fin2}\ns_mov_b32 s60, {NT2}")
            poll(comp.ev['l0'], NBAR, 2)
            a(f"{fin2}:")
    mp = cfg.MPE if E else cfg.MP; kS = max(comp.kN, NBAR - cfg.MPX)
    if mp >= 0:
        a(f"s_cmp_eq_u32 s30, 0\ns_cselect_b32 s59, {comp.ev['o'] + mp}, {comp.kN + 1 - cfg.G1}")
        tick_to("s59")
    else: tick_to(comp.kN + 1 - cfg.G1)
    a("s_waitcnt vmcnt(0)")
    gather_stage1(w, cfg)
    if mp >= 0:
        l = w.lab("mp")
        a(f"""s_cmp_lg_u32 s30, 0
s_cbranch_scc1 {l}x
s_cmp_eq_u32 s{sJ}, {cfg.JN}
s_cselect_b32 s56, 0, 0x7f
s_sub_u32 s52, s61, 4096
v_lshlrev_b32 v2, 7, v0
{l}:
s_cmp_ge_u32 s31, {kS}
s_cbranch_scc1 {l}x
s_barrier
s_add_u32 s31, s31, 1""")
        ready_mask(a)
        a(f"""s_cbranch_scc0 {l}n
s_ff1_i32_b32 s59, s57
s_bitset0_b32 s56, s59
s_lshl_b32 s59, s59, 13
s_add_u32 s59, s59, s52
buffer_load_dword v3, v2, s[36:39], s59 offen sc1
{l}n:
s_getreg_b32 s59, hwreg(HW_REG_IB_STS, 8, 4)
s_cmp_gt_u32 s59, 0
s_cbranch_scc1 {l}
s_cmp_ge_u32 s31, {kS - 1}
s_cbranch_scc1 {l}
s_load_dwordx16 s[8:23], s[48:49], 0 glc
s_branch {l}
{l}x:""")
    tick_to(kS + 1)
    gather_stage2(w, cfg); w.stamp("g0iss")
    tick_to(NBAR)
    to_gather(w, cfg, role)
    return w

def build(cfg, verbose=False):
    G = cfg.G; ns = 32 // G; ncg = 8 // ns; lg = lambda n: n.bit_length() - 1
    e = Wave("e", cfg); a = e.a; nr = 448 // G
    a("s_cmp_ge_u32 s2, 256\ns_cbranch_scc1 kernel_exit")
    if cfg.DLY:
        a(f"s_and_b32 s4, s2, 7\ns_cbranch_scc1 nodly\ns_memrealtime s[4:5]\ndly:\ns_memrealtime s[6:7]\ns_waitcnt lgkmcnt(0)\ns_sub_u32 s6, s6, s4\ns_cmp_lt_u32 s6, {cfg.DLY}\ns_cbranch_scc1 dly\nnodly:")
    a("s_load_dwordx16 s[8:23], s[0:1], 0\ns_load_dwordx4 s[24:27], s[0:1], 64\ns_load_dwordx2 s[28:29], s[0:1], 80")
    if cfg.prof or cfg.amp >= 0: a(f"s_memrealtime s[64:65]\ns_mem{'real' if cfg.prof == 2 else ''}time s[100:101]")
    pm = "s_mov_b32 s62, s100\n" if cfg.prof else ""
    disp = lambda n: f"{pm}s_cmp_gt_u32 s46, 1\ns_cbranch_scc1 {n}_M\ns_cmp_eq_u32 s46, 0\ns_cbranch_scc1 {n}_E\ns_branch {n}_N"
    assert cfg.A2 >= 0
    if cfg.EPF:
        a(f"""s_getpc_b64 s[36:37]
entry_pc:
s_and_b32 s37, s37, 0xffff
s_mov_b32 s38, role_E_end-entry_pc+{cfg.PADB}
s_mov_b32 s39, 0x20000
v_lshlrev_b32 v2, 12, v0
s_lshl_b32 s59, s2, 4
s_and_b32 s59, s59, 0xf80
buffer_load_dword v{T8+7}, v2, s[36:39], s59 offen""")
    decode = f"""s_and_b32 s{sJ}, s2, {ncg-1}
s_lshl_b32 s{sJ}, s{sJ}, {lg(ns)}
s_bfe_u32 s{sT}, s2, {hex((lg(ns) << 16) + 3 + cfg.SB)}
s_add_u32 s{sJ}, s{sJ}, s{sT}
s_lshl_b32 s{sJ}, s{sJ}, 2
s_lshr_b32 s{sJ}, {hex(cfg.JMAP)}, s{sJ}
s_and_b32 s{sJ}, s{sJ}, 7
s_sub_u32 s46, 7, s{sJ}
s_min_u32 s46, s46, s{sJ}
s_mov_b32 s{sSPIN}, {cfg.spin}"""
    gdec = f"s_lshr_b32 s{sG}, s2, 4" if cfg.SB == 0 else f"s_bfe_u32 s{sG}, s2, 0x40003" if cfg.SB == 4 else \
           f"s_lshr_b32 s{sG}, s2, {4 + cfg.SB}\ns_lshl_b32 s{sG}, s{sG}, {cfg.SB}\ns_bfe_u32 s{sT}, s2, {hex((cfg.SB << 16) + 3)}\ns_add_u32 s{sG}, s{sG}, s{sT}"
    a(f"""v_lshrrev_b32 v1, 6, v0
v_and_b32 v0, 63, v0
v_readfirstlane_b32 s3, v1
{gdec}
s_and_b32 s{sRB}, s2, {8 - ncg}
s_lshl_b32 s{sRB}, s{sRB}, {lg(G) - lg(ncg)}
s_add_u32 s{sRB}, s{sRB}, s{sG}
s_cmp_ge_u32 s3, 4
s_cbranch_scc1 helpers
v_lshrrev_b32 v4, 3, v0
v_and_b32 v5, 7, v0
v_mul_u32_u24 v6, 896, v4
v_lshl_add_u32 v6, v5, 4, v6
s_lshl_b32 s59, s{sRB}, 2
s_add_u32 s59, s59, s3
s_bfe_u32 s47, s2, {hex(0x10000 + cfg.XROT - 1) if cfg.XROT else 0}
s_lshl1_add_u32 s60, s59, s47
s_mul_i32 s59, s60, {8*896}
s_mov_b32 s34, 1835008
s_mov_b32 s35, 0x20000
s_waitcnt lgkmcnt(0)
s_mov_b32 s32, s{pX}
s_and_b32 s33, s{pX+1}, 0xffff""")
    if cfg.ampl == 'karg' or cfg.GK == 2: e.stamp('karg')
    for i in range(7): a(f"buffer_load_dwordx4 {vr(ACC[0] + 4*i, 4)}, v6, s[{rX}:{rX+3}], s59 offen offset:{i*128}")
    a(f"s_load_dword s{sNON}, s[{pWS}:{pWS+1}], 0\ns_xor_b32 s60, s60, 1\ns_mul_i32 s60, s60, {8*896}\ns_lshr_b32 s{sR}, s3, 1\ns_and_b32 s{sC}, s3, 1\n{decode}")
    common_setup(e)
    if cfg.ampl == 'pre1' or cfg.GK == 2: e.stamp('pre1')
    for i in range(7): a(f"buffer_load_dwordx4 {vr(ACC[0] + 28 + 4*i, 4)}, v6, s[{rX}:{rX+3}], s60 offen offset:{i*128}")
    if cfg.BA: a("s_barrier")
    layernorm(e)
    a(disp("comp"))
    xl = [x for x in e.ins if x.op == 'buffer_load_ushort']
    a(f"""helpers:
{decode}
s_lshl_b32 s59, s3, 8
s_sub_u32 s59, s59, 1024
v_lshl_add_u32 v{vOF}, v0, 2, s59
v_mov_b32 v2, 0
ds_write_b32 v{vOF}, v2
s_waitcnt lgkmcnt(0)
s_load_dword s{sNON}, s[{pWS}:{pWS+1}], 0""")
    if cfg.ampl == 'skew':
        srd(e, 36, pDBG, 32); a(f"v_mov_b32 v2, s64\ns_sub_u32 s59, s2, {cfg.ampb}\ns_and_b32 s59, s59, 255\ns_lshl_b32 s59, s59, 2\nv_mov_b32 v3, s59\nbuffer_store_dword v2, v3, s[36:39], 0 offen sc1")
    srd(e, 32, pQKV, 1204224)
    a("s_cmp_ge_u32 s3, 6\ns_cbranch_scc1 protos")
    a(disp("load") + "\nprotos:")
    a(f"""s_cmp_eq_u32 s3, 6
s_cselect_b32 s36, s{pB1}, s{pB2}
s_cselect_b32 s37, s{pB1+1}, s{pB2+1}
s_cselect_b32 s38, 28, 7
s_lshl_b32 s38, s38, 7
s_and_b32 s37, s37, 0xffff
s_mov_b32 s39, 0x20000
v_lshlrev_b32 v2, 11, v0
s_lshl_b32 s59, s{sG}, 7
buffer_load_dword v38, v2, s[36:39], s59 offen""")
    a(disp("proto"))
    info = {}; texts = {}
    for role in 'MNE':
        c = Compute(role, cfg); c.ins = list(xl); npre = len(c.ins); c.stamps = list(e.stamps)
        c.build()
        st = []; m, o = c.finish(st); texts['c' + role] = (m[npre:], o); info['c' + role] = c.stamps
        if verbose:
            print(role, "compute instrs", len(m), "nops", len(st), sum(p for p, _ in st), "barriers", len(c.bars), "est", int(sum(b['t'] for b in c.bars)), file=sys.stderr)
            if verbose > 1: print(" ".join(f"{int(b['t'])}:{b['need']}/{i}" for b, i in zip(c.bars, c.iss)), file=sys.stderr)
        gw = build_gather(cfg, role); m, o = gw.finish(); texts['g' + role] = (m[gw.npre:], o)
        for k, wv in (('l', build_loader(role, cfg, c)), ('p', build_proto(role, cfg, c))):
            texts[k + role] = wv.finish(); assert len(wv.stamps) <= 8
            info[k + role] = wv.stamps + ['-']*(8-len(wv.stamps)) + gw.stamps[8:] if cfg.prof else []
    out = e.finish()[0]
    lab = dict(c='comp', l='load', p='proto', g='gather')
    def sect(k): return [".p2align 6", f"{lab[k[0]]}_{k[1]}:"] + texts[k][0] + texts[k][1]
    out += ["kernel_exit:", "s_endpgm"]
    for r in 'MNE': out += [".p2align 7", f"role_{r}_start:"] + sect('p'+r) + sect('l'+r) + sect('c'+r) + sect('g'+r) + [f"role_{r}_end:"]
    out += ["s_endpgm"]*(cfg.PADB//4)
    head = f"""; fused LayerNorm + linear attention + squared-ReLU FFN, one launch of 256 workgroups x 8 waves (generated by my own script)
; @launch grid=(256,1,1) block=(512,1,1) lds=163840
.amdgcn_target "amdgcn-amd-amdhsa--gfx950"
.text
.globl {NAME}
.p2align 8
.type {NAME},@function
{NAME}:
"""
    tail = f"""
.section .rodata,"a"
.p2align 6
.amdhsa_kernel {NAME}
  .amdhsa_next_free_vgpr 256
  .amdhsa_next_free_sgpr 102
  .amdhsa_accum_offset 256
  .amdhsa_group_segment_fixed_size 0
  .amdhsa_kernarg_size 88
  .amdhsa_user_sgpr_count 2
  .amdhsa_user_sgpr_kernarg_segment_ptr 1
  .amdhsa_system_sgpr_workgroup_id_x 1
.end_amdhsa_kernel
"""
    return head + "\n".join(out) + tail, info

if __name__ == "__main__":
    import json
    kw = {}
    for x in sys.argv[2:]:
        k, v = x.split("="); kw[k] = int(v, 0) if v.lstrip("-")[0].isdigit() else v
    t, info = build(Cfg(**kw), 2)
    open(sys.argv[1], "w").write(t)
    json.dump(dict(info=info, G=Cfg(**kw).G, JMAP=Cfg(**kw).JMAP, spin=Cfg(**kw).spin), open(sys.argv[1] + ".json", "w"))
```
